```python
import torch

def _softmax(x, axis=-1):
    return torch.softmax(x, dim=axis)
def _gelu(x):
    return torch.nn.functional.gelu(x, approximate="tanh")
def _silu(x):
    return torch.nn.functional.silu(x)
def _sigmoid(x):
    return torch.sigmoid(x)
def _layernorm(x, axis=-1, eps=1e-5):
    m = x.mean(dim=axis, keepdim=True)
    v = x.var(dim=axis, keepdim=True, unbiased=False)
    return (x - m) / torch.sqrt(v + eps)
def _scatter_add(tgt, idx, src, axis=0):
    return tgt.clone().index_add_(axis, idx, src)
def _segment_sum(src, seg, n):
    out = torch.zeros((n,) + src.shape[1:], dtype=src.dtype)
    return out.index_add_(0, seg, src)
def _pad(x, pw):
    flat = tuple(v for pair in reversed(pw) for v in pair)
    return torch.nn.functional.pad(x, flat)

kernel_name = 'recurrent_scan__gqa_block_cached__mixer_channel_mlp__prompt'

def setup_inputs():

    _w = (lambda a: (lambda t: t.to(torch.bfloat16) if t.is_floating_point() else t)(torch.as_tensor(a)))
    def _A_setup():
        B, Sq, D = 1, 2048, 448
        Hq, Hkv, Sk, Dh = 16, 8, 2048, 256
        assert Hq % Hkv == 0, (Hq, Hkv)
        return {
            "x": _w((lambda *s: torch.randn(*s, dtype=torch.bfloat16) * 0.05)(B, Sq, D)),
            "k_cache": _w((lambda *s: torch.randn(*s, dtype=torch.bfloat16) * 1.6)(B, Hkv, Sk, Dh)),
            "v_cache": _w((lambda *s: torch.randn(*s, dtype=torch.bfloat16) * 0.8)(B, Hkv, Sk, Dh)),
            "wq": _w((lambda *s: torch.randn(*s, dtype=torch.bfloat16) * 1.6)(D, Hq * Dh) * (D ** -0.5)),
            "wo": _w((lambda *s: torch.randn(*s, dtype=torch.bfloat16) * 0.8)(Hq * Dh, D) * ((Hq * Dh) ** -0.5)),
        }
    _A_in = _A_setup()

    def _B_setup():
        B, S, D, F = 1, 2048, 448, 1792
        return {
            "x": _w((lambda *s: torch.randn(*s, dtype=torch.bfloat16) * 0.05)(B, S, D)),
            "w1": _w((lambda *s: torch.randn(*s, dtype=torch.bfloat16) * 1.6)(D, F) * (D ** -0.5)),
            "b1": _w((lambda *s: torch.randn(*s, dtype=torch.bfloat16) * 0.8)(F)),
            "w2": _w((lambda *s: torch.randn(*s, dtype=torch.bfloat16) * 0.2)(F, D) * (F ** -0.5)),
            "b2": _w((lambda *s: torch.randn(*s, dtype=torch.bfloat16) * 0.2)(D)),
        }
    _B_in = _B_setup()

    return {
        "A_x": _A_in["x"],
        "A_k_cache": _A_in["k_cache"],
        "A_v_cache": _A_in["v_cache"],
        "A_wq": _A_in["wq"],
        "A_wo": _A_in["wo"],
        "B_x": _B_in["x"],
        "B_w1": _B_in["w1"],
        "B_b1": _B_in["b1"],
        "B_w2": _B_in["w2"],
        "B_b2": _B_in["b2"],
    }

def reference(A_x, A_k_cache, A_v_cache, A_wq, A_wo, B_x, B_w1, B_b1, B_w2, B_b2):
    def _A_ref(x, k_cache, v_cache, wq, wo):
        B, Sq, D = x.shape
        Hq, Dh = 16, 256
        Hkv = k_cache.shape[1]
        rep = Hq // Hkv
        q = (lambda x, *d: x.permute(*d))((x @ wq).reshape(B, Sq, Hq, Dh), 0, 2, 1, 3)
        k = (lambda x, n, axis: torch.repeat_interleave(x, n, dim=axis))(k_cache, rep, axis=1)
        v = (lambda x, n, axis: torch.repeat_interleave(x, n, dim=axis))(v_cache, rep, axis=1)
        scores = torch.einsum("bhqd,bhkd->bhqk", q, k) * (Dh ** -0.5)
        p = _softmax(scores, axis=-1)
        o = torch.einsum("bhqk,bhkd->bhqd", p, v)
        return (lambda x, *d: x.permute(*d))(o, 0, 2, 1, 3).reshape(B, Sq, Hq * Dh) @ wo

    def _B_ref(x, w1, b1, w2, b2):
        y = _layernorm(x, axis=-1)
        h = _gelu(torch.einsum("bsd,df->bsf", y, w1) + b1)
        return torch.einsum("bsf,fd->bsd", h, w2) + b2

    x = A_x
    xn = _layernorm(x, axis=-1)
    s = _A_ref(xn, A_k_cache, A_v_cache, A_wq, A_wo)
    g = _silu(_B_ref(xn, B_w1, B_b1, B_w2, B_b2))
    return x + s * g
```

```python
NAME = "recurrent_scan__gqa_block_cached__mixer_channel_mlp__prompt"

HEADER_COMMENT = """; Kernarg layout for this problem (104 bytes, ptrs only, base s[0:1]):
"""

class Asm:
    def __init__(self):
        self.lines = []
    def __call__(self, s):
        for l in s.split("\n"):
            l = l.strip()
            if l:
                self.lines.append("    " + l if not l.endswith(":") else l)
    def label(self, l):
        self.lines.append(l + ":")
    def comment(self, c):
        self.lines.append("    ; " + c)
    def extend(self, lst):
        for s in lst:
            self(s)
    def text(self):
        return "\n".join(self.lines) + "\n"

def kernel_begin(label):
    return f""".globl {label}
.p2align 8
.type {label},@function
{label}:
"""

def kernel_desc(label, vgpr, sgpr, accum):
    return f""".section .rodata,"a"
.p2align 6
.amdhsa_kernel {label}
  .amdhsa_next_free_vgpr {vgpr}
  .amdhsa_next_free_sgpr {sgpr}
  .amdhsa_accum_offset {accum}
  .amdhsa_group_segment_fixed_size 0
  .amdhsa_kernarg_size 104
  .amdhsa_user_sgpr_count 2
  .amdhsa_user_sgpr_kernarg_segment_ptr 1
  .amdhsa_system_sgpr_workgroup_id_x 1
.end_amdhsa_kernel
.text
"""

def vr(base, n=1):
    return f"v{base}" if n == 1 else f"v[{base}:{base+n-1}]"
def ar(base, n=1):
    return f"a{base}" if n == 1 else f"a[{base}:{base+n-1}]"
def sr(base, n=1):
    return f"s{base}" if n == 1 else f"s[{base}:{base+n-1}]"

def cost(ins):
    op = ins.split()[0]
    if op.startswith(("v_exp", "v_log", "v_rcp", "v_rsq", "v_sqrt")):
        return 8
    return 4

def spread(gaps, fixed_cost, stream, first=0, last=None):
    n = len(gaps)
    if last is None:
        last = n - 1
    idxs = list(range(first, last + 1))
    fixed = [sum(cost(i) for i in gaps[g]) for g in idxs]
    tot = sum(fixed) + sum(cost(i) for i in stream)
    target = tot / len(idxs)
    cum_target = 0.0
    cum = 0.0
    k = 0
    for j, g in enumerate(idxs):
        cum_target += target
        cum += fixed[j]
        while k < len(stream) and (cum + cost(stream[k]) / 2 <= cum_target or j == len(idxs) - 1):
            gaps[g].append(stream[k])
            cum += cost(stream[k])
            k += 1
    assert k == len(stream)
```

```python
import sys, math, struct
from asmlib import *

OPT = dict(stamps=0, prefetch=1, thr=0x4f800000, dump="")
for x in sys.argv[2:]:
    k, v = x.split("=")
    OPT[k] = int(v, 0) if k != "dump" else v

def f32(x):
    return "0x%08x" % struct.unpack("<I", struct.pack("<f", x))[0]

UNIT = 1056; BLK = 16 * UNIT; PS = 2 * BLK
XREG = 4 * PS
LDS_TOTAL = 163840
STATS = XREG
ML = XREG + 1024
SP_OFF = 0
MP_OFF = 0x1000000
PART = 57344
STAMP_OFF = 0x7000000
DUMP_OFF = 0x2000000

S_W = 3
S_WSP = 4
S_K, S_V, S_X, S_WQ, S_WO, S_W1, S_W2, S_WS, S_B1 = 8, 12, 16, 20, 24, 28, 32, 36, 40
S_J, S_T = 44, 45
S_LDSW = 46
S_GKV = 47
S_KOFF, S_VOFF = 48, 49
S_SO = 50
S_CNT = 51
S_THR = 52
S_A, S_C = 53, 54
S_TMP = 55
S_BG1, S_BQP, S_BG2, S_BOP = 60, 61, 62, 63
S_M0 = 64
S_ST = 68

V_Q = 0; V_S = 128; V_P = 160; V_NEG = 192; V_F = 208; V_SC = 224; V_T = 232; V_L = 240
V_KA = 248; V_VA = 249; V_DO = 250; V_LANE = 251
V_AA = [252, 253]; V_DW1 = 254; V_DWQ = 255; V_DWW = 247

class VM:
    def __init__(self): self.ops = []
    def issue(self, tag): self.ops.append(tag)
    def wait(self, tag):
        idx = max([i for i, t in enumerate(self.ops) if t == tag], default=None)
        if idx is None: return
        n = len(self.ops) - 1 - idx
        a(f"s_waitcnt vmcnt({min(n,63)})")
        self.ops = self.ops[idx + 1:]
    def wait_all(self):
        a("s_waitcnt vmcnt(0)"); self.ops = []

a = Asm()
vm = VM()
KMAIN = "fused_main_kernel"
KFIN = "fused_final_kernel"
nstamp = [0]
def stamp():
    if not OPT["stamps"]: return
    i = nstamp[0]; nstamp[0] += 1
    assert i < 16
    a(f"s_memtime s[{S_ST+2*i}:{S_ST+2*i+1}]")

def srd(base, lo, hi, size):
    a(f"s_mov_b32 s{base}, s{lo}"); a(f"s_mov_b32 s{base+1}, s{hi}")
    a(f"s_mov_b32 s{base+2}, {size}"); a(f"s_mov_b32 s{base+3}, 0x20000")

def reg(spec, off, n):
    kind, base = spec
    return (vr if kind == "v" else ar)(base + off, n)

def dma_stage(kind, s, ps):
    out = []
    if kind in ("G1", "QP"):
        rs = 3584 if kind == "G1" else 8192
        sr_ = S_W1 if kind == "G1" else S_WQ
        base = S_BG1 if kind == "G1" else S_BQP
        vo = V_DW1 if kind == "G1" else V_DWQ
        for k in range(8):
            rho = 8 * (k >> 2) + (k & 3)
            rows = (64 * s if kind == "G1" else 32 * s) + rho
            out.append(([f"s_add_u32 s{S_SO}, s{base}, {rows * rs}", f"s_add_u32 m0, s{S_M0+ps}, {k*UNIT}"],
                        f"buffer_load_dwordx4 v{vo}, s[{sr_}:{sr_+3}], s{S_SO} offen lds"))
    else:
        sr_ = S_W2 if kind == "G2" else S_WO
        base = S_BG2 if kind == "G2" else S_BOP
        for k in range(8):
            sal = []
            if k % 4 == 0:
                sal.append(f"s_add_u32 s{S_SO}, s{base}, {(32 * s + k) * 896}")
            sal.append(f"s_add_u32 m0, s{S_M0+ps}, {k*UNIT - 896*(k%4)}")
            out.append((sal, f"buffer_load_dwordx4 v{V_DWW}, s[{sr_}:{sr_+3}], s{S_SO} offen offset:{896*(k%4)} lds"))
    return out

def dma_kv(which, ps):
    sr_ = S_K if which == "K" else S_V
    so = S_KOFF if which == "K" else S_VOFF
    out = []
    for k in range(8):
        sal = [f"s_add_u32 s{so}, s{so}, 0x8000", f"s_mov_b32 m0, s{S_M0+ps}"] if k == 0 else ["s_add_u32 m0, m0, 544"]
        out.append((sal, f"buffer_load_dwordx4 v{V_DO}, s[{sr_}:{sr_+3}], s{so} offen offset:{512*k} lds"))
    return out

def emit_units(units, tag):
    for sal, d in units:
        for x in sal: a(x)
        a("s_nop 0")
        a(d); vm.issue(tag)

LA = 3; R = 4
def emit_groups(groups, ring, pre_issued=False, post=None):
    n = len(groups)
    assert n % R == 0
    post = post or []
    def rlist(i):
        if i < n: return groups[i]["reads"]
        return post[i - n] if i - n < len(post) else []
    def fmt(x, i):
        o = 4 * (i % R)
        return x.format(r=reg(ring, o, 4), r0=reg(ring, o, 2), r1=reg(ring, o + 2, 2), A=reg(ring, o, 4))
    def do(x):
        if callable(x): x()
        else: a(x)
    if not pre_issued:
        for i in range(LA):
            for x in rlist(i): a(fmt(x, i))
    for i, g in enumerate(groups):
        for x in g.get("top", []): do(x)
        outstanding = sum(len(rlist(x)) for x in range(i + 1, i + LA))
        a(f"s_waitcnt lgkmcnt({outstanding})")
        nxt = rlist(i + LA)
        for q, m in enumerate(g["mf"]):
            a(fmt(m, i))
            if q < len(nxt): a(fmt(nxt[q], i + LA))
            for x in g["fill"][q]: do(x)

def place_units(groups, g0, q0, units, tag, step, track=True):
    slots = [(G, q) for G in range(len(groups)) for q in range(4)]
    pos = g0 * 4 + q0
    for sal, d in units:
        G, q = slots[pos - 1]; groups[G]["fill"][q] += sal
        G, q = slots[pos]
        if track: groups[G]["fill"][q].append(lambda d=d, t=tag: (a(d), vm.issue(t)))
        else: groups[G]["fill"][q].append(d)
        pos += step

def trd(aa, off):
    return [f"ds_read_b64_tr_b16 {{r0}}, v{aa} offset:{off}", f"ds_read_b64_tr_b16 {{r1}}, v{aa} offset:{off+512}"]
def mf16(d, b, c):
    return f"v_mfma_f32_16x16x32_bf16 {d}, {{A}}, {b}, {c}"

def gemm_groups(kind, nstage, gs0, accf, bf, dmaf, tagp, skip_dma=()):
    groups = []
    for s in range(nstage):
        gs = gs0 + s; ps = gs % 4
        aa = V_AA[ps // 2]; pso = (ps % 2) * PS
        first = len(groups)
        if kind == "G1":
            items = [(pso + blk * BLK + fb * 32, fb, 2 * s + blk) for blk in range(2) for fb in range(4)]
        elif kind == "QP":
            items = [(pso + (db // 2) * 64 + (db % 2) * 8, db, s) for db in range(8)]
        else:
            items = [(pso + nb * 32, nb, s) for nb in range(7)]
        for off, blk, ks in items:
            groups.append(dict(reads=trd(aa, off), mf=[mf16(accf(blk, qb), bf(ks, qb), accf(blk, qb) if ks > 0 else "0") for qb in range(4)],
                               fill=[[] for _ in range(4)], top=[]))
        if s > 0:
            groups[first]["top"] = [lambda gs=gs: vm.wait((tagp, gs + 1)), "s_barrier"]
        if (gs + 3) not in skip_dma:
            units = dmaf(gs + 3)
            if units:
                place_units(groups[first:], 0, 1, units, (tagp, gs + 3), 3)
    return groups

def xlane(op, v, t):
    for sw in ("v_permlane16_swap_b32", "v_permlane32_swap_b32"):
        a(f"v_mov_b32 v{t}, v{v}"); a("s_nop 1")
        a(f"{sw} v{v}, v{t}"); a("s_nop 1")
        a(f"{op} v{v}, v{v}, v{t}")
def round_bf16(v, t):
    a(f"v_cvt_pk_bf16_f32 v{t}, v{v}, v{v}")
    a(f"v_lshlrev_b32 v{v}, 16, v{t}")

dump_n = [0]
def dump_regs(name, kind, base, n):
    if OPT["dump"] != name: return
    a("s_nop 7"); a("s_nop 7")
    a(f"s_lshl_b32 s{S_TMP}, s2, 2"); a(f"s_add_u32 s{S_TMP}, s{S_TMP}, s{S_W}")
    a(f"s_mul_i32 s{S_TMP}, s{S_TMP}, {n*256}")
    a(f"s_add_u32 s{S_TMP}, s{S_TMP}, {DUMP_OFF}")
    a(f"v_lshlrev_b32 v{V_T+7}, 2, v{V_LANE}")
    for i in range(n):
        if kind == "a":
            a(f"v_accvgpr_read_b32 v{V_T+6}, a{base+i}"); src = V_T + 6
        else:
            src = base + i
        a(f"buffer_store_dword v{src}, v{V_T+7}, s[{S_WS}:{S_WS+3}], s{S_TMP} offen")
        a(f"s_add_u32 s{S_TMP}, s{S_TMP}, 256")
        if kind == "a": a("s_waitcnt vmcnt(0)")
    a("s_waitcnt vmcnt(0)")
    a("s_endpgm")

a("s_cmp_ge_u32 s2, 256")
a("s_cbranch_scc1 L_end")
a("s_load_dwordx16 s[68:83], s[0:1], 0")
a("s_load_dwordx2 s[84:85], s[0:1], 64")
a("s_load_dwordx2 s[4:5], s[0:1], 96")
a(f"v_lshrrev_b32 v{V_T}, 6, v0")
a(f"v_and_b32 v{V_LANE}, 63, v0")
a(f"v_readfirstlane_b32 s{S_W}, v{V_T}")
a(f"s_and_b32 s{S_J}, s2, 7")
a(f"s_lshr_b32 s{S_T}, s2, 3")
a("s_waitcnt lgkmcnt(0)")
PX, PK, PV_, PWQ, PWO, PW1, PB1, PW2 = 68, 70, 72, 74, 76, 80, 82, 84
a(f"s_lshl_b32 s{S_TMP}, s{S_J}, 20")
a(f"s_add_u32 s{S_K}, s{PK}, s{S_TMP}"); a(f"s_addc_u32 s{S_K+1}, s{PK+1}, 0")
a(f"s_mov_b32 s{S_K+2}, 0x100000"); a(f"s_mov_b32 s{S_K+3}, 0x20000")
a(f"s_add_u32 s{S_V}, s{PV_}, s{S_TMP}"); a(f"s_addc_u32 s{S_V+1}, s{PV_+1}, 0")
a(f"s_mov_b32 s{S_V+2}, 0x100000"); a(f"s_mov_b32 s{S_V+3}, 0x20000")
srd(S_X, PX, PX+1, 1835008)
srd(S_WQ, PWQ, PWQ+1, 3670016)
srd(S_WO, PWO, PWO+1, 3670016)
srd(S_W1, PW1, PW1+1, 1605632)
srd(S_W2, PW2, PW2+1, 1605632)
srd(S_WS, S_WSP, S_WSP+1, 0x8000000)
srd(S_B1, PB1, PB1+1, 3584)
stamp()
a(f"s_lshr_b32 s{S_A}, s{S_W}, 1"); a(f"s_and_b32 s{S_C}, s{S_W}, 1")
VQ_, VG_ = V_T + 1, V_T + 2
a(f"v_and_b32 v{VQ_}, 15, v{V_LANE}")
a(f"v_lshrrev_b32 v{VG_}, 4, v{V_LANE}")
a(f"v_mul_u32_u24 v{V_T+3}, 896, v{VQ_}")
a(f"v_lshl_add_u32 v{V_T+3}, v{VG_}, 4, v{V_T+3}")
a(f"s_lshl_b32 s{S_TMP}, s{S_T}, 6"); a(f"s_lshl_b32 s{S_TMP+1}, s{S_W}, 4"); a(f"s_add_u32 s{S_TMP}, s{S_TMP}, s{S_TMP+1}")
a(f"s_mul_i32 s{S_TMP}, s{S_TMP}, 896")
XR = 0
for ks in range(14):
    a(f"buffer_load_dwordx4 {vr(XR+4*ks,4)}, v{V_T+3}, s[{S_X}:{S_X+3}], s{S_TMP} offen offset:{64*ks}"); vm.issue("x")
a(f"s_mul_i32 s{S_TMP}, s{S_A}, {BLK}"); a(f"s_mul_i32 s{S_TMP+1}, s{S_C}, {8*UNIT}")
a(f"s_add_u32 s{S_LDSW}, s{S_TMP}, s{S_TMP+1}")
for i in range(4):
    a(f"s_add_u32 s{S_M0+i}, s{S_LDSW}, {i*PS}")
a(f"s_lshl_b32 s{S_TMP}, s{S_A}, 14"); a(f"s_lshl_b32 s{S_TMP+1}, s{S_C}, 12")
a(f"s_add_u32 s{S_GKV}, s{S_TMP}, s{S_TMP+1}")
a(f"s_lshl_b32 s{S_TMP}, s{S_A}, 5"); a(f"s_lshl_b32 s{S_TMP+1}, s{S_C}, 4"); a(f"s_add_u32 s{S_TMP}, s{S_TMP}, s{S_TMP+1}")
a(f"s_mul_i32 s{S_BG1}, s{S_TMP}, 3584"); a(f"s_lshl_b32 s{S_TMP+1}, s{S_J}, 9"); a(f"s_add_u32 s{S_BG1}, s{S_BG1}, s{S_TMP+1}")
a(f"s_lshl_b32 s{S_TMP}, s{S_C}, 17")
a(f"s_lshl_b32 s{S_TMP+1}, s{S_J}, 10"); a(f"s_add_u32 s{S_TMP}, s{S_TMP}, s{S_TMP+1}")
a(f"s_lshl_b32 s{S_TMP+1}, s{S_A}, 9"); a(f"s_add_u32 s{S_BQP}, s{S_TMP}, s{S_TMP+1}")
a(f"s_lshl_b32 s{S_TMP}, s{S_J}, 8"); a(f"s_lshl_b32 s{S_TMP+1}, s{S_C}, 3"); a(f"s_add_u32 s{S_TMP}, s{S_TMP}, s{S_TMP+1}")
a(f"s_mul_i32 s{S_BG2}, s{S_TMP}, 896"); a(f"s_mul_i32 s{S_TMP+2}, s{S_A}, 448"); a(f"s_add_u32 s{S_BG2}, s{S_BG2}, s{S_TMP+2}")
a(f"s_lshl_b32 s{S_TMP}, s{S_J}, 9"); a(f"s_add_u32 s{S_TMP}, s{S_TMP}, s{S_TMP+1}")
a(f"s_mul_i32 s{S_BOP}, s{S_TMP}, 896"); a(f"s_add_u32 s{S_BOP}, s{S_BOP}, s{S_TMP+2}")
a(f"s_mov_b32 s{S_THR}, {OPT['thr']}")
def dma_voffsets(which):
    a(f"v_lshrrev_b32 v{V_T+4}, 5, v{V_LANE}")
    a(f"v_and_b32 v{V_T+5}, 31, v{V_LANE}")
    a(f"v_lshlrev_b32 v{V_T+5}, 4, v{V_T+5}")
    if "1" in which:
        a(f"v_mul_u32_u24 v{V_DW1}, {4*3584}, v{V_T+4}"); a(f"v_add_u32 v{V_DW1}, v{V_DW1}, v{V_T+5}")
    if "q" in which:
        a(f"v_lshl_add_u32 v{V_DWQ}, v{V_T+4}, 15, v{V_T+5}")
    if "o" in which:
        a(f"v_lshl_add_u32 v{V_DO}, v{V_T+4}, 13, v{V_T+5}")
    if "w" in which:
        a(f"v_mul_u32_u24 v{V_DWW}, {16*896}, v{V_T+4}"); a(f"v_add_u32 v{V_DWW}, v{V_DWW}, v{V_T+5}")
        a(f"v_cmp_lt_u32 vcc, {27*16}, v{V_T+5}")
        a(f"v_mov_b32 v{V_T+6}, 0x40000000")
        a("s_nop 1")
        a(f"v_cndmask_b32 v{V_DWW}, v{V_DWW}, v{V_T+6}, vcc")
dma_voffsets("1qow")
def stage_dma(gs):
    if gs < 7: return dma_stage("G1", gs, gs % 4)
    if gs < 21: return dma_stage("QP", gs - 7, gs % 4)
    return None
emit_units(stage_dma(0), ("st", 0))
emit_units(stage_dma(1), ("st", 1))
A_BIAS = 224
a(f"v_lshlrev_b32 v{V_T+6}, 3, v{VG_}")
a(f"s_lshl_b32 s{S_TMP}, s{S_J}, 9"); a(f"s_lshl_b32 s{S_TMP+1}, s{S_W}, 7"); a(f"s_add_u32 s{S_TMP}, s{S_TMP}, s{S_TMP+1}")
for fb in range(4):
    a(f"buffer_load_dwordx2 {ar(A_BIAS+2*fb,2)}, v{V_T+6}, s[{S_B1}:{S_B1+3}], s{S_TMP} offen offset:{32*fb}"); vm.issue("b1")
a(f"v_bfe_u32 v{V_T+6}, v{V_LANE}, 2, 2")
a(f"v_lshl_add_u32 v{V_T+6}, v{VG_}, 2, v{V_T+6}")
a(f"v_mul_u32_u24 v{V_T+6}, {UNIT}, v{V_T+6}")
a(f"v_and_b32 v{V_T+7}, 3, v{V_LANE}")
a(f"v_accvgpr_write_b32 a232, v{V_T+6}"); a(f"v_accvgpr_write_b32 a233, v{V_T+7}")
if OPT["prefetch"]:
    VPF = 246
    a(f"v_lshlrev_b32 v{V_T+6}, 7, v{V_LANE}")
    a(f"s_lshl_b32 s{S_TMP}, s{S_T}, 15"); a(f"s_lshl_b32 s{S_TMP+1}, s{S_W}, 13"); a(f"s_add_u32 s{S_TMP}, s{S_TMP}, s{S_TMP+1}")
    a(f"buffer_load_dword v{VPF}, v{V_T+6}, s[{S_K}:{S_K+3}], s{S_TMP} offen"); vm.issue("pf")
    a(f"buffer_load_dword v{VPF}, v{V_T+6}, s[{S_V}:{S_V+3}], s{S_TMP} offen"); vm.issue("pf")

vm.wait("x")
stamp()
XF = 112
for i in range(56):
    a(f"v_lshlrev_b32 v{XF+2*i}, 16, v{XR+i}")
    a(f"v_and_b32 v{XF+2*i+1}, 0xffff0000, v{XR+i}")
ACC = 56
for c in range(4):
    a(f"v_pk_add_f32 {vr(ACC+2*c,2)}, {vr(XF+4*c,2)}, {vr(XF+4*c+2,2)}")
for n_, i in enumerate(range(8, 56)):
    c = n_ % 4
    a(f"v_pk_add_f32 {vr(ACC+2*c,2)}, {vr(ACC+2*c,2)}, {vr(XF+2*i,2)}")
a(f"v_pk_add_f32 {vr(ACC,2)}, {vr(ACC,2)}, {vr(ACC+2,2)}")
a(f"v_pk_add_f32 {vr(ACC+4,2)}, {vr(ACC+4,2)}, {vr(ACC+6,2)}")
a(f"v_pk_add_f32 {vr(ACC,2)}, {vr(ACC,2)}, {vr(ACC+4,2)}")
a(f"v_add_f32 v{ACC}, v{ACC}, v{ACC+1}")
xlane("v_add_f32", ACC, ACC+1)
VMEAN, VMB = ACC + 2, ACC + 4
a(f"v_mul_f32 v{VMEAN}, {f32(1.0/448)}, v{ACC}")
a(f"v_mov_b32 v{VMB}, v{VMEAN}")
round_bf16(VMB, ACC+1)
a(f"v_mov_b32 v{VMB+1}, v{VMB}")
VAR = 64
for i in range(56):
    a(f"v_pk_add_f32 {vr(XF+2*i,2)}, {vr(XF+2*i,2)}, {vr(VMB,2)} neg_lo:[0,1] neg_hi:[0,1]")
for i in range(56):
    c = i % 4
    if i < 4: a(f"v_pk_mul_f32 {vr(VAR+2*c,2)}, {vr(XF+2*i,2)}, {vr(XF+2*i,2)}")
    else: a(f"v_pk_fma_f32 {vr(VAR+2*c,2)}, {vr(XF+2*i,2)}, {vr(XF+2*i,2)}, {vr(VAR+2*c,2)}")
    a(f"v_cvt_pk_bf16_f32 v{XR+i}, v{XF+2*i}, v{XF+2*i+1}")
XCL = 2 * PS
a(f"v_lshlrev_b32 v{V_T+6}, 4, v{V_LANE}")
a(f"s_lshl_b32 s{S_TMP}, s{S_W}, 10"); a(f"s_add_u32 s{S_TMP}, s{S_TMP}, {XCL}")
a(f"v_add_u32 v{V_T+6}, s{S_TMP}, v{V_T+6}")
for ks in range(14):
    a(f"ds_write_b128 v{V_T+6}, {vr(XR+4*ks,4)} offset:{ks*4096}")
a(f"v_pk_add_f32 {vr(VAR,2)}, {vr(VAR,2)}, {vr(VAR+2,2)}")
a(f"v_pk_add_f32 {vr(VAR+4,2)}, {vr(VAR+4,2)}, {vr(VAR+6,2)}")
a(f"v_pk_add_f32 {vr(VAR,2)}, {vr(VAR,2)}, {vr(VAR+4,2)}")
a(f"v_add_f32 v{VAR}, v{VAR}, v{VAR+1}")
xlane("v_add_f32", VAR, VAR+1)
a(f"v_sub_f32 v{VAR+2}, v{VMEAN}, v{VMB}")
a(f"v_mul_f32 v{VAR+2}, v{VAR+2}, v{VAR+2}")
a(f"v_mov_b32 v{VAR+3}, {f32(1.0/448)}")
a(f"v_fma_f32 v{VAR}, v{VAR}, v{VAR+3}, -v{VAR+2}")
a(f"v_max_f32 v{VAR}, 0, v{VAR}")
a(f"v_mov_b32 v{VAR+4}, v{VAR}")
round_bf16(VAR+4, VAR+1)
a(f"v_add_f32 v{VAR+4}, {f32(1e-5)}, v{VAR+4}")
round_bf16(VAR+4, VAR+1)
a(f"v_sqrt_f32 v{VAR+4}, v{VAR+4}"); a("s_nop 0")
round_bf16(VAR+4, VAR+1)
a(f"v_rcp_f32 v{VAR+5}, v{VAR+4}"); a("s_nop 0")
a(f"v_mul_f32 v{VAR+6}, v{VAR+5}, v{VAR+5}")
a(f"v_mul_f32 v{VAR+6}, v{VAR+6}, v{VAR}")
round_bf16(VAR+6, VAR+1)
a(f"v_add_f32 v{VAR+6}, {f32(1e-5)}, v{VAR+6}")
round_bf16(VAR+6, VAR+1)
a(f"v_sqrt_f32 v{VAR+6}, v{VAR+6}"); a("s_nop 0")
round_bf16(VAR+6, VAR+1)
a(f"v_rcp_f32 v{VAR+6}, v{VAR+6}"); a("s_nop 0")
a(f"v_mul_f32 v{VAR+3}, v{VAR+5}, v{VAR+6}")
a(f"v_mul_f32 v{VAR+2}, {f32(math.log2(math.e)/16)}, v{VAR+5}")
a(f"s_lshl_b32 s{S_TMP}, s{S_W}, 7"); a(f"s_add_u32 s{S_TMP}, s{S_TMP}, {STATS}")
a(f"v_lshlrev_b32 v{V_T+6}, 3, v{VQ_}"); a(f"v_add_u32 v{V_T+6}, s{S_TMP}, v{V_T+6}")
a(f"ds_write_b64 v{V_T+6}, {vr(VAR+2,2)}")
a("s_waitcnt lgkmcnt(0)")
a("s_barrier")
a(f"v_lshlrev_b32 v{V_T+6}, 4, v{V_LANE}"); a(f"v_add_u32 v{V_T+6}, {XCL}, v{V_T+6}")
for f in range(56):
    a(f"ds_read_b128 {ar(4*f,4)}, v{V_T+6} offset:{f*1024}")
    if f % 12 == 11: a("s_waitcnt lgkmcnt(4)")
a(f"v_lshlrev_b32 v{V_T+7}, 3, v{VQ_}"); a(f"v_add_u32 v{V_T+7}, {STATS}, v{V_T+7}")
for qb in range(4):
    a(f"ds_read_b64 {vr(V_SC+2*qb,2)}, v{V_T+7} offset:{qb*128}")
a(f"v_accvgpr_read_b32 v{V_T}, a232"); a(f"v_accvgpr_read_b32 v{V_T+1}, a233")
a(f"s_lshl_b32 s{S_TMP}, s{S_W}, 7")
a(f"v_lshl_add_u32 v{V_AA[0]}, v{V_T+1}, 3, v{V_T}")
a(f"v_add_u32 v{V_AA[0]}, s{S_TMP}, v{V_AA[0]}")
a(f"v_add_u32 v{V_AA[1]}, {2*PS}, v{V_AA[0]}")
a("s_waitcnt lgkmcnt(0)")
vm.wait(("st", 1))
a("s_barrier")
dump_regs("xc", "a", 0, 224)
dump_regs("sc", "v", V_SC, 8)
stamp()
emit_units(stage_dma(2), ("st", 2))
emit_units(stage_dma(3), ("st", 3))

RING_A = ("a", 236)
RING_V = ("v", V_F)
xcf = lambda ks, qb: ar((ks * 4 + qb) * 4, 4)
H1 = 0
h1acc = lambda fb, qb: vr(H1 + (fb * 4 + qb) * 4, 4)
emit_groups(gemm_groups("G1", 7, 0, h1acc, xcf, stage_dma, "st", skip_dma=(3,)), RING_A)
stamp()
HP = 64
vm.wait("b1")
VB = V_F
for fb in range(4):
    a(f"v_accvgpr_read_b32 v{V_T}, a{A_BIAS+2*fb}"); a(f"v_accvgpr_read_b32 v{V_T+1}, a{A_BIAS+2*fb+1}")
    a("s_nop 0")
    a(f"v_lshlrev_b32 v{VB+4*fb}, 16, v{V_T}"); a(f"v_and_b32 v{VB+4*fb+1}, 0xffff0000, v{V_T}")
    a(f"v_lshlrev_b32 v{VB+4*fb+2}, 16, v{V_T+1}"); a(f"v_and_b32 v{VB+4*fb+3}, 0xffff0000, v{V_T+1}")
C1 = 2 * math.sqrt(2 / math.pi) * math.log2(math.e); C2 = C1 * 0.044715
a(f"s_mov_b32 s{S_TMP}, {f32(-C2)}")
a(f"v_mov_b32 v{V_T+7}, {f32(-C1)}")
a("s_nop 4")
for fb in range(4):
    for qb in range(4):
        base = H1 + (fb * 4 + qb) * 4
        for r in range(4): a(f"v_fma_f32 v{base+r}, v{base+r}, v{V_SC+2*qb+1}, v{VB+4*fb+r}")
        for r in range(4): a(f"v_mul_f32 v{V_T+r}, v{base+r}, v{base+r}")
        for r in range(4): a(f"v_fma_f32 v{V_T+r}, v{V_T+r}, s{S_TMP}, v{V_T+7}")
        for r in range(4): a(f"v_mul_f32 v{V_T+r}, v{V_T+r}, v{base+r}")
        for r in range(4): a(f"v_exp_f32 v{V_T+r}, v{V_T+r}")
        for r in range(4): a(f"v_add_f32 v{V_T+r}, 1.0, v{V_T+r}")
        for r in range(4): a(f"v_rcp_f32 v{V_T+r}, v{V_T+r}")
        for r in range(4): a(f"v_mul_f32 v{base+r}, v{base+r}, v{V_T+r}")
        hp = HP + ((fb // 2) * 4 + qb) * 4 + (fb % 2) * 2
        a(f"v_cvt_pk_bf16_f32 v{hp}, v{base}, v{base+1}")
        a(f"v_cvt_pk_bf16_f32 v{hp+1}, v{base+2}, v{base+3}")
dump_regs("hp", "v", HP, 32)
stamp()

QA = 96
qacc = lambda db, qb: vr(QA + (db * 4 + qb) * 4, 4)
a(f"v_accvgpr_read_b32 v{V_T}, a232"); a(f"v_accvgpr_read_b32 v{V_T+1}, a233")
a(f"s_mul_i32 s{S_TMP}, s{S_A}, {BLK}"); a(f"s_lshl_b32 s{S_TMP+1}, s{S_C}, 8"); a(f"s_add_u32 s{S_TMP}, s{S_TMP}, s{S_TMP+1}")
a(f"v_lshl_add_u32 v{V_AA[0]}, v{V_T+1}, 4, v{V_T}")
a(f"v_add_u32 v{V_AA[0]}, s{S_TMP}, v{V_AA[0]}")
a(f"v_add_u32 v{V_AA[1]}, {2*PS}, v{V_AA[0]}")
vm.wait(("st", 8))
a("s_barrier")
emit_units(stage_dma(10), ("st", 10))
emit_groups(gemm_groups("QP", 14, 7, qacc, xcf, stage_dma, "st", skip_dma=(10,)), RING_A)
stamp()
a("s_nop 7"); a("s_nop 1")
a("s_barrier")
QF = 0; HL = 2 * PS
a(f"v_lshlrev_b32 v{V_T+6}, 4, v{V_LANE}")
a(f"s_lshl_b32 s{S_TMP}, s{S_A}, 15"); a(f"s_lshl_b32 s{S_TMP+1}, s{S_C}, 14"); a(f"s_add_u32 s{S_TMP}, s{S_TMP}, s{S_TMP+1}")
a(f"v_add_u32 v{V_T+5}, s{S_TMP}, v{V_T+6}")
for x in range(4):
    for qb in range(4):
        for u in range(2):
            base = QA + ((2 * x + u) * 4 + qb) * 4
            for r in range(4):
                a(f"v_mul_f32 v{base+r}, v{base+r}, v{V_SC+2*qb}")
        b0 = QA + ((2 * x) * 4 + qb) * 4; b1_ = QA + ((2 * x + 1) * 4 + qb) * 4
        t = 4 * (x * 4 + qb)
        a(f"v_cvt_pk_bf16_f32 v{t}, v{b0}, v{b0+1}"); a(f"v_cvt_pk_bf16_f32 v{t+1}, v{b0+2}, v{b0+3}")
        a(f"v_cvt_pk_bf16_f32 v{t+2}, v{b1_}, v{b1_+1}"); a(f"v_cvt_pk_bf16_f32 v{t+3}, v{b1_+2}, v{b1_+3}")
        a(f"ds_write_b128 v{V_T+5}, {vr(t,4)} offset:{QF + (x*4+qb)*1024}")
a(f"s_lshl_b32 s{S_TMP}, s{S_W}, 13"); a(f"s_add_u32 s{S_TMP}, s{S_TMP}, {HL}")
a(f"v_add_u32 v{V_T+4}, s{S_TMP}, v{V_T+6}")
for f in range(8):
    a(f"ds_write_b128 v{V_T+4}, {vr(HP+4*f,4)} offset:{f*1024}")
a(f"v_accvgpr_read_b32 v{V_L}, a232"); a(f"v_accvgpr_read_b32 v{V_L+1}, a233")
a("s_waitcnt lgkmcnt(0)")
a("s_barrier")
a(f"s_lshl_b32 s{S_TMP}, s{S_A}, 15")
a(f"v_add_u32 v{V_T+5}, s{S_TMP}, v{V_T+6}")
for f in range(32):
    a(f"ds_read_b128 {vr(V_Q+4*f,4)}, v{V_T+5} offset:{QF + f*1024}")
    if f % 12 == 11: a("s_waitcnt lgkmcnt(4)")
a(f"v_add_u32 v{V_T+4}, {HL}, v{V_T+6}")
for f in range(32):
    a(f"ds_read_b128 {ar(4*f,4)}, v{V_T+4} offset:{f*1024}")
    if f % 12 == 11: a("s_waitcnt lgkmcnt(4)")
a("s_waitcnt lgkmcnt(0)")
a("s_barrier")
dump_regs("q", "v", V_Q, 128)
dump_regs("h", "a", 0, 128)
stamp()

V_ROWP, V_CC = V_L, V_L + 1
def w448_addr():
    a(f"v_lshl_add_u32 v{V_AA[0]}, v{V_CC}, 3, v{V_ROWP}")
    a(f"s_mul_i32 s{S_TMP}, s{S_A}, {BLK}"); a(f"s_mul_i32 s{S_TMP+1}, s{S_C}, 224"); a(f"s_add_u32 s{S_TMP}, s{S_TMP}, s{S_TMP+1}")
    a(f"v_add_u32 v{V_AA[0]}, s{S_TMP}, v{V_AA[0]}")
    a(f"v_add_u32 v{V_AA[1]}, {2*PS}, v{V_AA[0]}")
g2_dma = lambda s: dma_stage("G2", s, s % 4) if s < 8 else None
for s in range(3): emit_units(g2_dma(s), ("s2", s))
w448_addr()
hfrag = lambda ks, qb: ar((ks * 4 + qb) * 4, 4)
GA = 128
g2acc = lambda nb, qb: ar(GA + (nb * 4 + qb) * 4, 4)
vm.wait(("s2", 1))
a("s_barrier")
emit_groups(gemm_groups("G2", 8, 0, g2acc, hfrag, g2_dma, "s2"), RING_V)
stamp()
a("s_nop 7"); a("s_nop 1")
a("s_barrier")
a(f"s_sub_u32 s{S_KOFF}, s{S_GKV}, 0x8000"); a(f"s_sub_u32 s{S_VOFF}, s{S_GKV}, 0x8000")
emit_units(dma_kv("K", 0), "k0")
emit_units(dma_kv("K", 1), "k1")
emit_units(dma_kv("V", 2), "v0")
def store_partial(accreg, is_agpr, wsoff, tag):
    a(f"v_lshlrev_b32 v{V_T+6}, 4, v{V_LANE}")
    a(f"s_lshl_b32 s{S_TMP}, s{S_J}, 5"); a(f"s_add_u32 s{S_TMP}, s{S_TMP}, s{S_T}")
    a(f"s_lshl_b32 s{S_TMP}, s{S_TMP}, 2"); a(f"s_add_u32 s{S_TMP}, s{S_TMP}, s{S_W}")
    a(f"s_mul_i32 s{S_TMP}, s{S_TMP}, 14336"); a(f"s_add_u32 s{S_TMP}, s{S_TMP}, {wsoff}")
    for s in range(14):
        nb, qp = s // 2, s % 2
        t = V_F + 4 * (s % 4)
        for hh in range(2):
            base = accreg + (nb * 4 + 2 * qp + hh) * 4
            if is_agpr:
                for r in range(4): a(f"v_accvgpr_read_b32 v{V_T+r}, a{base+r}")
                src = V_T
            else:
                src = base
            a(f"v_cvt_pk_bf16_f32 v{t+2*hh}, v{src}, v{src+1}"); a(f"v_cvt_pk_bf16_f32 v{t+2*hh+1}, v{src+2}, v{src+3}")
        if s >= 1: a(f"s_add_u32 s{S_TMP}, s{S_TMP}, 1024")
        a(f"buffer_store_dwordx4 {vr(t,4)}, v{V_T+6}, s[{S_WS}:{S_WS+3}], s{S_TMP} offen"); vm.issue(tag)
store_partial(GA, True, MP_OFF, "mp")
stamp()

a(f"v_and_b32 v{V_T}, 15, v{V_LANE}"); a(f"v_lshrrev_b32 v{V_T+1}, 4, v{V_LANE}")
a(f"s_mul_i32 s{S_TMP}, s{S_C}, {BLK}")
a(f"v_mul_u32_u24 v{V_KA}, {UNIT}, v{V_T}")
a(f"v_lshl_add_u32 v{V_KA}, v{V_T+1}, 4, v{V_KA}")
a(f"v_add_u32 v{V_KA}, s{S_TMP}, v{V_KA}")
a(f"v_lshl_add_u32 v{V_VA}, v{V_CC}, 3, v{V_ROWP}")
a(f"v_add_u32 v{V_VA}, s{S_TMP}, v{V_VA}")
a(f"v_add_u32 v{V_VA}, {2*PS}, v{V_VA}")
a(f"v_mov_b32 v252, v{V_ROWP}"); a(f"v_mov_b32 v253, v{V_CC}")
V_ROWP, V_CC = 252, 253
for i in range(256): a(f"v_accvgpr_write_b32 a{i}, 0")
for i in range(16): a(f"v_mov_b32 v{V_NEG+i}, 0")
for i in range(8): a(f"v_mov_b32 v{V_L+i}, 0")

def att_reads(p, f):
    if f < 16:
        kb, ks = f // 8, f % 8
        return [f"ds_read_b128 {{r}}, v{V_KA} offset:{((p + 1) % 2) * PS + kb*512 + ks*64}"]
    return trd(V_VA, (p % 2) * PS + (f - 16) * 32)
def att_mf(p, f):
    out = []
    for qb in range(4):
        if f < 16:
            kb, ks = f // 8, f % 8
            S = V_S + (kb * 4 + qb) * 4
            out.append(mf16(vr(S, 4), vr(V_Q + (ks * 4 + qb) * 4, 4), vr(V_NEG + 4 * qb, 4) if ks == 0 else vr(S, 4)))
        else:
            o = ar(((f - 16) * 4 + qb) * 4, 4)
            out.append(mf16(o, vr(V_P + (p % 2) * 16 + 4 * qb, 4), o))
    return out
def sm_stream(p, kb):
    st = []
    Pb = V_P + ((p + 1) % 2) * 16
    lo = V_L + (p % 2) * 4; ln = V_L + ((p + 1) % 2) * 4
    items = [(qb, r) for qb in range(4) for r in range(4)]
    n = len(items)
    T = lambda k: V_T + (k % 8)
    for k in range(n + 3):
        if k < n:
            qb, r = items[k]
            st.append(f"v_exp_f32 v{T(k)}, v{V_S + (kb*4+qb)*4 + r}")
        if 1 <= k <= n:
            qb, r = items[k - 1]
            src = lo + qb if (kb == 0 and r == 0) else ln + qb
            st.append(f"v_add_f32 v{ln + qb}, v{T(k-1)}, v{src}")
        if k >= 3 and (k - 3) % 2 == 0 and (k - 2) < n:
            j = k - 3
            qb, r = items[j]
            st.append(f"v_cvt_pk_bf16_f32 v{Pb + qb*4 + kb*2 + r//2}, v{T(j)}, v{T(j+1)}")
    return st
def rescale(p, first):
    lo = V_L + (p % 2) * 4
    a("s_nop 7"); a("s_nop 7")
    MX = V_T
    for qb in range(4):
        b0 = V_S + qb * 4; b1_ = V_S + (4 + qb) * 4
        a(f"v_max3_f32 v{MX+qb}, v{b0}, v{b0+1}, v{b0+2}")
        a(f"v_max3_f32 v{MX+qb}, v{MX+qb}, v{b0+3}, v{b1_}")
        a(f"v_max3_f32 v{MX+qb}, v{MX+qb}, v{b1_+1}, v{b1_+2}")
        a(f"v_max_f32 v{MX+qb}, v{MX+qb}, v{b1_+3}")
    for qb in range(4):
        xlane("v_max_f32", MX + qb, V_T + 4)
        if not first: a(f"v_max_f32 v{MX+qb}, 0, v{MX+qb}")
    for qb in range(4):
        for kb in range(2):
            for r in range(4):
                a(f"v_sub_f32 v{V_S+(kb*4+qb)*4+r}, v{V_S+(kb*4+qb)*4+r}, v{MX+qb}")
        for r in range(4):
            a(f"v_sub_f32 v{V_NEG+qb*4+r}, v{V_NEG+qb*4+r}, v{MX+qb}")
    if not first:
        for qb in range(4): a(f"v_exp_f32 v{MX+qb}, -v{MX+qb}")
        a("s_nop 0")
        for qb in range(4): a(f"v_mul_f32 v{lo+qb}, v{lo+qb}, v{MX+qb}")
        for d in range(16):
            for qb in range(4):
                for r in range(4): a(f"v_accvgpr_read_b32 v{V_T+4+r}, a{(d*4+qb)*4+r}")
                a("s_nop 0")
                for r in range(4): a(f"v_mul_f32 v{V_T+4+r}, v{V_T+4+r}, v{MX+qb}")
                for r in range(4): a(f"v_accvgpr_write_b32 a{(d*4+qb)*4+r}, v{V_T+4+r}")
    for kb in range(2):
        for x in sm_stream(p, kb):
            a(x)
            if x.startswith("v_exp"): a("s_nop 0")
    a("s_nop 1")

slow = []
def period(p, qk=True, pv=True, sm=True, dK=None, dV=None, wait13="s_waitcnt vmcnt(8)", post=None, lab="", pre_issued=True):
    fl = [f for f in range(32) if (f < 16 and qk) or (f >= 16 and pv)]
    groups = [dict(reads=att_reads(p, f), mf=att_mf(p, f), fill=[[] for _ in range(4)], top=[]) for f in fl]
    if qk:
        if dV: groups[1]["top"] = ["s_barrier"]
        groups[13]["top"] = ([wait13] if wait13 else []) + ["s_barrier"]
    if dV: place_units(groups, 1, 2, dV, None, 3, track=False)
    if dK: place_units(groups, 13, 2, dK, None, 6 if pv else 1, track=False)
    if sm:
        flat = [groups[G]["fill"][q] for G in range(32) for q in range(4)]
        for G in range(32):
            nx = att_reads(p, fl[G + LA]) if G + LA < 32 else (post[G + LA - 32] if post else [])
            for q in range(len(nx)): groups[G]["fill"][q].insert(0, "#rd")
        spread(flat, None, sm_stream(p, 0), 4*9, 4*19)
        spread(flat, None, sm_stream(p, 1), 4*19+1, 4*30)
        for G in range(32):
            for q in range(4): groups[G]["fill"][q][:] = [x for x in groups[G]["fill"][q] if x != "#rd"]
        ln = V_L + ((p + 1) % 2) * 4
        groups[30]["fill"][1] += [f"v_max3_f32 v{V_T}, v{ln}, v{ln+1}, v{ln+2}"]
        groups[30]["fill"][2] += [f"v_max_f32 v{V_T}, v{V_T}, v{ln+3}"]
        groups[31]["fill"][0] += [f"v_cmp_lt_f32 vcc, s{S_THR}, v{V_T}"]
    emit_groups(groups, RING_V, pre_issued=pre_issued, post=post)
    if sm:
        a(f"s_cbranch_vccnz L_slow{lab}")
        a.label(f"L_ret{lab}")
        slow.append((p, lab))

vm.wait("k1")
a("s_barrier")
period(-1, qk=True, pv=False, sm=False, dK=dma_kv("K", 0), wait13=None, post=[att_reads(0, i) for i in range(LA)], pre_issued=False)
rescale(-1, True)
dump_regs("p0", "v", V_P, 32)
stamp()
a(f"s_mov_b32 s{S_CNT}, 15")
a(".p2align 6")
a.label("L_loop")
period(0, dK=dma_kv("K", 1), dV=dma_kv("V", 3), post=[att_reads(1, i) for i in range(LA)], lab="A")
period(1, dK=dma_kv("K", 0), dV=dma_kv("V", 2), post=[att_reads(2, i) for i in range(LA)], lab="B")
a(f"s_sub_u32 s{S_CNT}, s{S_CNT}, 1")
a(f"s_cmp_lg_u32 s{S_CNT}, 0")
a("s_cbranch_scc1 L_loop")
period(0, dK=None, dV=dma_kv("V", 3), post=None, lab="C")
a("s_waitcnt vmcnt(0)")
a("s_barrier")
period(1, qk=False, pv=True, sm=False, pre_issued=False)
vm.ops = []
stamp()

LF = V_L + 4
a("s_nop 7"); a("s_nop 7")
for qb in range(4): xlane("v_add_f32", LF + qb, V_T)
for qb in range(4):
    a(f"v_sub_f32 v{2*qb}, 0, v{V_NEG+4*qb}"); a(f"v_mov_b32 v{2*qb+1}, v{LF+qb}")
a(f"v_and_b32 v{V_T}, 15, v{V_LANE}"); a(f"v_lshlrev_b32 v{V_T}, 3, v{V_T}")
a(f"s_lshl_b32 s{S_TMP}, s{S_W}, 9"); a(f"s_add_u32 s{S_TMP}, s{S_TMP}, {ML}")
a(f"v_add_u32 v{V_T+1}, s{S_TMP}, v{V_T}")
for qb in range(4): a(f"ds_write_b64 v{V_T+1}, {vr(2*qb,2)} offset:{qb*128}")
a("s_waitcnt lgkmcnt(0)")
a("s_barrier")
a(f"s_xor_b32 s{S_TMP}, s{S_W}, 1"); a(f"s_lshl_b32 s{S_TMP}, s{S_TMP}, 9"); a(f"s_add_u32 s{S_TMP}, s{S_TMP}, {ML}")
a(f"v_add_u32 v{V_T+1}, s{S_TMP}, v{V_T}")
for qb in range(4): a(f"ds_read_b64 {vr(8+2*qb,2)}, v{V_T+1} offset:{qb*128}")
a("s_waitcnt lgkmcnt(0)")
SCL = 16
for qb in range(4):
    m, l, m2, l2 = 2*qb, 2*qb+1, 8+2*qb, 9+2*qb
    a(f"v_max_f32 v{V_T+2}, v{m}, v{m2}")
    a(f"v_sub_f32 v{m}, v{m}, v{V_T+2}"); a(f"v_sub_f32 v{m2}, v{m2}, v{V_T+2}")
    a(f"v_exp_f32 v{m}, v{m}"); a(f"v_exp_f32 v{m2}, v{m2}"); a("s_nop 0")
    a(f"v_mul_f32 v{l}, v{l}, v{m}"); a(f"v_fma_f32 v{l}, v{l2}, v{m2}, v{l}")
    a(f"v_rcp_f32 v{l}, v{l}"); a("s_nop 0")
    a(f"v_mul_f32 v{SCL+qb}, v{m}, v{l}")
a(f"v_lshlrev_b32 v{V_T+6}, 4, v{V_LANE}")
a(f"s_mul_i32 s{S_TMP}, s{S_W}, {PS}"); a(f"v_add_u32 v{V_T+5}, s{S_TMP}, v{V_T+6}")
a(f"s_xor_b32 s{S_TMP}, s{S_W}, 1"); a(f"s_mul_i32 s{S_TMP}, s{S_TMP}, {PS}"); a(f"v_add_u32 v{V_T+4}, s{S_TMP}, v{V_T+6}")
OFR = 32
def merge_variant(c):
    send0 = 8 * (1 - c); keep0 = 8 * c
    for dl in range(8):
        for qb in range(4):
            base = ((send0 + dl) * 4 + qb) * 4
            t = 96 + 4 * ((dl * 4 + qb) % 8)
            for r in range(4): a(f"v_accvgpr_read_b32 v{t+r}, a{base+r}")
            a("s_nop 0")
            for r in range(4): a(f"v_mul_f32 v{t+r}, v{t+r}, v{SCL+qb}")
            a(f"ds_write_b128 v{V_T+5}, {vr(t,4)} offset:{(dl*4+qb)*1024}")
            if (dl * 4 + qb) % 8 == 7: a("s_waitcnt lgkmcnt(0)")
    a("s_waitcnt lgkmcnt(0)")
    a("s_barrier")
    for dl in range(8):
        for qb in range(4):
            a(f"ds_read_b128 {vr(128+4*qb,4)}, v{V_T+4} offset:{(dl*4+qb)*1024}")
        for qb in range(4):
            base = ((keep0 + dl) * 4 + qb) * 4
            t = 96 + 4 * qb
            for r in range(4): a(f"v_accvgpr_read_b32 v{t+r}, a{base+r}")
        a("s_waitcnt lgkmcnt(0)")
        for qb in range(4):
            t = 96 + 4 * qb
            for r in range(4): a(f"v_fma_f32 v{t+r}, v{t+r}, v{SCL+qb}, v{128+4*qb+r}")
            o = OFR + ((dl // 2) * 4 + qb) * 4 + (dl % 2) * 2
            a(f"v_cvt_pk_bf16_f32 v{o}, v{t}, v{t+1}"); a(f"v_cvt_pk_bf16_f32 v{o+1}, v{t+2}, v{t+3}")
a(f"s_cmp_eq_u32 s{S_C}, 0")
a("s_cbranch_scc0 L_mv1")
merge_variant(0)
a("s_branch L_mvd")
a.label("L_mv1")
merge_variant(1)
a.label("L_mvd")
a("s_barrier")
a(f"s_lshl_b32 s{S_TMP}, s{S_W}, 14"); a(f"v_add_u32 v{V_T+5}, s{S_TMP}, v{V_T+6}")
for f in range(16): a(f"ds_write_b128 v{V_T+5}, {vr(OFR+4*f,4)} offset:{f*1024}")
a("s_waitcnt lgkmcnt(0)")
a("s_barrier")
for f in range(64):
    a(f"ds_read_b128 {ar(4*f,4)}, v{V_T+6} offset:{f*1024}")
    if f % 12 == 11: a("s_waitcnt lgkmcnt(4)")
a("s_waitcnt lgkmcnt(0)")
a("s_barrier")
dump_regs("o", "a", 0, 256)
stamp()

dma_voffsets("w")
op_dma = lambda s: dma_stage("OP", s, s % 4) if s < 16 else None
for s in range(3): emit_units(op_dma(s), ("s3", s))
w448_addr()
ofrag = lambda ks, qb: ar((ks * 4 + qb) * 4, 4)
OA = 0
opacc = lambda nb, qb: vr(OA + (nb * 4 + qb) * 4, 4)
vm.wait(("s3", 1))
a("s_barrier")
emit_groups(gemm_groups("OP", 16, 0, opacc, ofrag, op_dma, "s3"), RING_V)
stamp()
a("s_nop 7"); a("s_nop 1")
store_partial(OA, False, SP_OFF, "sp")
stamp()
if OPT["stamps"]:
    a("s_waitcnt vmcnt(0) lgkmcnt(0)")
    stamp()
    a(f"s_memrealtime s[{S_TMP}:{S_TMP+1}]") if False else None
    a("s_waitcnt lgkmcnt(0)")
    a(f"s_cmp_lg_u32 s{S_W}, 0"); a("s_cbranch_scc1 L_end")
    a(f"s_lshl_b32 s{S_TMP}, s2, 7"); a(f"s_add_u32 s{S_TMP}, s{S_TMP}, {STAMP_OFF}")
    a("v_mov_b32 v20, 0")
    for i in range(16):
        a(f"v_mov_b32 v{i}, s{S_ST+2*min(i, nstamp[0]-1)}")
    for q in range(4):
        a(f"buffer_store_dwordx4 {vr(4*q,4)}, v20, s[{S_WS}:{S_WS+3}], s{S_TMP} offen offset:{16*q}")
a.label("L_end")
a("s_endpgm")
for p, lab in slow:
    a.label(f"L_slow{lab}")
    rescale(p, False)
    a(f"s_branch L_ret{lab}")
main_text = a.text()

a = Asm()
a("s_cmp_ge_u32 s2, 448")
a("s_cbranch_scc1 LF_end")
a("s_load_dwordx2 s[4:5], s[0:1], 96")
a("s_load_dwordx2 s[6:7], s[0:1], 0")
a("s_load_dwordx4 s[24:27], s[0:1], 72")
a("s_lshl_b32 s3, s2, 8")
a("v_add_u32 v1, s3, v0")
a("v_lshlrev_b32 v2, 4, v1")
a("s_waitcnt lgkmcnt(0)")
srd(8, 4, 5, 0x4000000)
srd(12, 6, 7, 1835008)
srd(16, 24, 25, 896)
srd(20, 26, 27, 1835008)
JS = 32 * PART
for j in range(8):
    a(f"s_mov_b32 s28, {SP_OFF + j*JS}")
    a(f"buffer_load_dwordx4 {vr(16+4*j,4)}, v2, s[8:11], s28 offen")
for j in range(7):
    a(f"s_mov_b32 s28, {MP_OFF + j*JS}")
    a(f"buffer_load_dwordx4 {vr(48+4*j,4)}, v2, s[8:11], s28 offen")
a("v_lshrrev_b32 v3, 6, v1")
a("s_nop 0")
a("v_readfirstlane_b32 s29, v3")
a("s_mul_hi_u32 s30, s29, 0x12492493")
a("s_mul_i32 s31, s30, 14"); a("s_sub_u32 s31, s29, s31")
a("s_lshr_b32 s32, s30, 2")
a("s_and_b32 s33, s30, 3")
a("s_lshr_b32 s34, s31, 1")
a("s_and_b32 s35, s31, 1")
a("s_lshl_b32 s36, s32, 6"); a("s_lshl_b32 s37, s35, 5"); a("s_add_u32 s36, s36, s37")
a("s_mul_i32 s36, s36, 896")
a("s_mul_i32 s37, s33, 112"); a("s_lshl_b32 s38, s34, 4"); a("s_add_u32 s37, s37, s38"); a("s_lshl_b32 s37, s37, 1")
a("v_and_b32 v4, 15, v0"); a("v_bfe_u32 v5, v0, 4, 2")
a("v_mul_u32_u24 v6, 896, v4"); a("v_lshl_add_u32 v6, v5, 3, v6")
a("s_add_u32 s39, s36, s37")
a("v_add_u32 v6, s39, v6")
a("v_lshlrev_b32 v7, 3, v5"); a("v_add_u32 v7, s37, v7")
a("buffer_load_dwordx2 v[8:9], v6, s[12:15], 0 offen")
a("s_mov_b32 s28, 14336")
a("buffer_load_dwordx2 v[10:11], v6, s[12:15], s28 offen")
a("buffer_load_dwordx2 v[12:13], v7, s[16:19], 0 offen")
def unpack_add(dst, src, first):
    for i in range(4):
        if first:
            a(f"v_lshlrev_b32 v{dst+2*i}, 16, v{src+i}"); a(f"v_and_b32 v{dst+2*i+1}, 0xffff0000, v{src+i}")
        else:
            a(f"v_lshlrev_b32 v96, 16, v{src+i}"); a(f"v_and_b32 v97, 0xffff0000, v{src+i}")
            a(f"v_add_f32 v{dst+2*i}, v{dst+2*i}, v96"); a(f"v_add_f32 v{dst+2*i+1}, v{dst+2*i+1}, v97")
for j in range(8):
    a(f"s_waitcnt vmcnt({7 - j + 7 + 3})")
    unpack_add(80, 16 + 4*j, j == 0)
for j in range(7):
    a(f"s_waitcnt vmcnt({6 - j + 3})")
    unpack_add(88, 48 + 4*j, j == 0)
a("s_waitcnt vmcnt(0)")
a("v_lshlrev_b32 v100, 16, v12"); a("v_and_b32 v101, 0xffff0000, v12"); a("v_lshlrev_b32 v102, 16, v13"); a("v_and_b32 v103, 0xffff0000, v13")
for hh in range(2):
    for i in range(2):
        a(f"v_lshlrev_b32 v{104+4*hh+2*i}, 16, v{8+2*hh+i}"); a(f"v_and_b32 v{105+4*hh+2*i}, 0xffff0000, v{8+2*hh+i}")
a(f"s_mov_b32 s28, {f32(-math.log2(math.e))}")
for e in range(8):
    a(f"v_add_f32 v{88+e}, v{88+e}, v{100+e%4}")
for e in range(8):
    a(f"v_mul_f32 v{112+e}, s28, v{88+e}")
for e in range(8):
    a(f"v_exp_f32 v{112+e}, v{112+e}")
for e in range(8):
    a(f"v_add_f32 v{112+e}, 1.0, v{112+e}")
for e in range(8):
    a(f"v_rcp_f32 v{112+e}, v{112+e}")
for e in range(8):
    a(f"v_mul_f32 v{112+e}, v{112+e}, v{88+e}")
for e in range(8):
    a(f"v_fma_f32 v{112+e}, v{112+e}, v{80+e}, v{104+e}")
for hh in range(2):
    a(f"v_cvt_pk_bf16_f32 v{120+2*hh}, v{112+4*hh}, v{113+4*hh}"); a(f"v_cvt_pk_bf16_f32 v{121+2*hh}, v{114+4*hh}, v{115+4*hh}")
a("buffer_store_dwordx2 v[120:121], v6, s[20:23], 0 offen")
a("s_mov_b32 s28, 14336")
a("buffer_store_dwordx2 v[122:123], v6, s[20:23], s28 offen")
a.label("LF_end")
a("s_endpgm")
fin_text = a.text()

src = HEADER_COMMENT
src += f"; @launch kernel={KMAIN} grid=(256,1,1) block=(256,1,1) lds={LDS_TOTAL}\n"
src += f"; @launch kernel={KFIN} grid=(448,1,1) block=(256,1,1) lds=0\n"
src += '.amdgcn_target "amdgcn-amd-amdhsa--gfx950"\n.text\n'
src += kernel_begin(KMAIN) + main_text + kernel_begin(KFIN) + fin_text
src += kernel_desc(KMAIN, 512, 102, 256).replace(".text\n", "") + kernel_desc(KFIN, 128, 48, 128)
open(sys.argv[1], "w").write(src)
```

```python
import sys, math, struct
from asmlib import Asm, NAME, HEADER_COMMENT, kernel_begin, kernel_desc, vr, ar

OPT = dict(fine=0, cpf=0, tlbw=0, pfpos=3, gcap=12, tt=1, xs=1, mpf=0, spf=0, x_nodma=0, x_nobar=0, x_nosm=0, x_nopf=0, x_nolg0=0, d0=2, sm1a=68, smend=123, W=2, dstep=4, pfd=6, qlsc=0, kvpf=3, gelu_end=11, gran=128, stamps=0, prefetch=1, thr=0x4f800000, dump="", sm0a=36, sm0b=76, sm1b=120, kstep=6, vstep=3)
for x in sys.argv[2:]:
    k, v = x.split("=")
    OPT[k] = int(v, 0) if k != "dump" else v

def f32(x):
    return "0x%08x" % struct.unpack("<I", struct.pack("<f", x))[0]

UNIT = 1056; BLK = 16 * UNIT; PS = 2 * BLK
XREG = 4 * PS
LDS_TOTAL = 163840
STATS = XREG
HL = XREG
ML = XREG
SP_OFF = 0
MP_OFF = 0x1000000
QX_OFF = 0x1E00000
QX_OFF = 0x2000000
PART = 57344
DUMP_OFF = 0x3000000
STAMP_OFF = 0x7000000
WS_SIZE = 0x8000000

S_W = 3; S_WSP = 4
S_K, S_V, S_X, S_WQ, S_WO, S_W1, S_W2, S_WS, S_B1 = 8, 12, 16, 20, 24, 28, 32, 36, 40
S_J, S_T = 44, 45
S_LDSW = 46; S_GKV = 47
S_KOFF, S_VOFF = 48, 49
S_SO = 50; S_CNT = 51; S_THR = 52
S_A, S_C = 53, 54
S_TMP = 55
S_BG1, S_BQP, S_BG2, S_BOP = 60, 61, 62, 63
S_M0 = 64
S_ST = 68
S_X1 = 100; S_X2 = 101

V_Q = 0; V_S = 128; V_P = 160; V_NEG = 192; V_F = 208; V_SC = 224; V_T = 232; V_L = 240
V_KA2 = 246 + 0
V_KA2 = 224
V_KA = 248; V_VA = 249; V_DO = 250; V_LANE = 251
V_AA = [252, 253]; V_DW1 = 254; V_DWQ = 255; V_DWW = 247
V_B4 = 240
V_ROWP, V_CC = 244, 245
A_PF = 255
A_BIAS = 224

a = Asm()

class Tracker:
    def __init__(self, name, maxc): self.ops = []; self.name = name; self.maxc = maxc
    def issue(self, tag): self.ops.append(tag)
    def count(self, tag):
        idx = max([i for i, t in enumerate(self.ops) if t == tag], default=None)
        return None if idx is None else len(self.ops) - 1 - idx
    def wait(self, tag):
        n = self.count(tag)
        if n is None: return
        a(f"s_waitcnt {self.name}({min(n, self.maxc)})")
        n = min(n, self.maxc)
        self.ops = self.ops[len(self.ops) - n:] if n > 0 else []
    def wait_all(self):
        a(f"s_waitcnt {self.name}(0)"); self.ops = []
vm = Tracker("vmcnt", 63)
lg = Tracker("lgkmcnt", 15)
def vmem(ins, tag): a(ins); vm.issue(tag)
def lds(ins, tag="x"): a(ins); lg.issue(tag)

class It:
    def __init__(self, cost, fn, kind="m"): self.cost = cost; self.fn = fn; self.kind = kind
def kind_of(x):
    if isinstance(x, It): return x.kind
    op = x.split()[0]
    if op.startswith("s_"): return "s"
    if op.startswith(("ds_", "buffer_", "global_")): return "m"
    return "v"
def cost(x):
    if isinstance(x, It): return x.cost
    op = x.split()[0]
    if op.startswith("s_"): return 0
    if op.startswith(("v_exp", "v_log", "v_rcp", "v_rsq", "v_sqrt")): return 8
    if op.startswith("buffer_"): return 8
    return 4
def do(x):
    if isinstance(x, It): x.fn()
    elif callable(x): x()
    else: a(x)
def I_vm(ins, tag): return It(8, lambda: vmem(ins, tag), "m")
def I_lds(ins, tag="x"): return It(8 if "write" in ins else 4, lambda: lds(ins, tag), "m")
def I_wvm(tag): return It(0, lambda: vm.wait(tag), "s")
def I_wlg(tag): return It(0, lambda: lg.wait(tag), "s")

class Gap:
    def __init__(self): self.s = []; self.m = []; self.v = []; self.cap = 8
    def add(self, x, force=False):
        k = kind_of(x); c = cost(x)
        if k == "s":
            if self.v: self.v.append(x)
            elif self.m and getattr(self, "strict", False): self.m.append(x)
            else: self.s.append(x)
        elif k == "m":
            if self.v: self.v.append(x)
            else: self.m.append(x)
        else: self.v.append(x)
        self.cap -= c
    def items(self): return self.s + self.m + self.v

def place_stream(gaps, stream, first, last):
    idxs = list(range(first, last + 1))
    free = sum(max(gaps[g].cap, 0) for g in idxs)
    need = sum(cost(x) for x in stream)
    ratio = min(1.0, need / max(free, 1))
    k = 0; used = 0.0; budget = 0.0
    for j, g in enumerate(idxs):
        G = gaps[g]; G.strict = True
        budget += max(G.cap, 0) * ratio + 1e-9
        lastg = j == len(idxs) - 1
        while k < len(stream):
            x = stream[k]; c = cost(x)
            if lastg or c == 0 or (c <= G.cap and used + c <= budget + 4):
                if kind_of(x) == "m" and G.v and not lastg: break
                G.add(x); used += c; k += 1
            else: break
    assert k == len(stream), (k, len(stream))

KMAIN = "fused_main_kernel"; KFIN = "fused_final_kernel"
nstamp = [0]
def fstamp():
    if OPT["fine"] == 1: stamp(True)
def gstamp():
    if OPT["fine"] == 2: stamp(True)
def stamp(force=False):
    if not OPT["stamps"]: return
    if OPT["fine"] == 1 and not force and nstamp[0] >= 3: return
    if OPT["fine"] == 1 and force and nstamp[0] >= 15: return
    if OPT["fine"] == 2 and not force: return
    i = nstamp[0]; nstamp[0] += 1
    assert i < 15
    a(f"s_memtime s[{S_ST+2*i}:{S_ST+2*i+1}]")
def srd(base, lo, hi, size):
    a(f"s_mov_b32 s{base}, s{lo}"); a(f"s_mov_b32 s{base+1}, s{hi}")
    a(f"s_mov_b32 s{base+2}, {size}"); a(f"s_mov_b32 s{base+3}, 0x20000")
def reg(spec, off, n):
    kind, base = spec
    return (vr if kind == "v" else ar)(base + off, n)

def dma_stage(kind, s, ps):
    out = []
    if kind in ("G1", "QP"):
        rs = 3584 if kind == "G1" else 8192
        sr_ = S_W1 if kind == "G1" else S_WQ
        base = S_BG1 if kind == "G1" else S_BQP
        vo = V_DW1 if kind == "G1" else V_DWQ
        for k in range(8):
            rho = 8 * (k >> 2) + (k & 3)
            rows = (64 * s if kind == "G1" else 32 * s) + rho
            out.append(([f"s_add_u32 s{S_SO}, s{base}, {rows * rs}", f"s_add_u32 m0, s{S_M0+ps}, {k*UNIT}"],
                        f"buffer_load_dwordx4 v{vo}, s[{sr_}:{sr_+3}], s{S_SO} offen lds"))
    else:
        sr_ = S_W2 if kind == "G2" else S_WO
        base = S_BG2 if kind == "G2" else S_BOP
        for k in range(8):
            sal = []
            if k % 4 == 0: sal.append(f"s_add_u32 s{S_SO}, s{base}, {(32 * s + k) * 896}")
            sal.append(f"s_add_u32 m0, s{S_M0+ps}, {k*UNIT - 896*(k%4)}")
            out.append((sal, f"buffer_load_dwordx4 v{V_DWW}, s[{sr_}:{sr_+3}], s{S_SO} offen offset:{896*(k%4)} lds"))
    return out
def dma_kv(which, ps):
    sr_ = S_K if which == "K" else S_V
    so = S_KOFF if which == "K" else S_VOFF
    out = []
    for k in range(8):
        sal = [f"s_add_u32 s{so}, s{so}, 0x8000", f"s_mov_b32 m0, s{S_M0+ps}"] if k == 0 else ["s_add_u32 m0, m0, 544"]
        out.append((sal, f"buffer_load_dwordx4 v{V_DO}, s[{sr_}:{sr_+3}], s{so} offen offset:{512*k} lds"))
    return out
def emit_units(units, tag):
    for sal, d in units:
        for x in sal: a(x)
        a("s_nop 0")
        vmem(d, tag)
def stage_dma(gs):
    if gs < 7: return dma_stage("G1", gs, gs % 4)
    if gs < 21: return dma_stage("QP", gs - 7, gs % 4)
    if gs < 28: return dma_stage("G2", gs - 21, gs % 4)
    if gs == 28: return dma_kv("K", 0)
    if gs == 29: return dma_kv("K", 1)
    if gs == 30: return dma_kv("V", 2)
    return None

LA = 3; R = 4
gctr = [0]
def read_sched(groups, post, delay, pre_issued):
    n = len(groups); post = post or []; delay = delay or {}
    sched = {}
    for i in range(pre_issued, n + LA):
        G = delay.get(i, i - LA)
        rs = groups[i]["reads"] if i < n else (post[i - n][0] if i - n < len(post) else [])
        for k in range(len(rs)): sched.setdefault(G, []).append((i, k))
    return sched
def rgap(g, j):
    if g.get("stage") is not None and OPT["tt"]: return min(j // 2, 3)
    return min(j, 3)
def prep_groups(groups, pre_issued=0, post=None, delay=None):
    sched = read_sched(groups, post, delay, pre_issued)
    for G, g in enumerate(groups):
        g["gaps"] = [Gap() for _ in range(4)]
        if g.get("stage") is not None:
            for gp in g["gaps"]: gp.cap = OPT["gcap"]
        for q, _ in enumerate(sched.get(G, [])): g["gaps"][rgap(g, q)].cap -= 4
    return [gp for g in groups for gp in g["gaps"]]
def emit_groups(groups, pre_issued=0, post=None, delay=None, W=None):
    n = len(groups)
    post = post or []
    W = W or OPT["W"]
    G0 = gctr[0]
    def info(i):
        if i < n: return groups[i]["reads"], groups[i]["ring"]
        return post[i - n] if i - n < len(post) else ([], None)
    def fmt(x, i, ring):
        o = 4 * ((G0 + i) % R)
        return x.format(r=reg(ring, o, 4), r0=reg(ring, o, 2), r1=reg(ring, o + 2, 2), A=reg(ring, o, 4))
    sched = read_sched(groups, post, delay, pre_issued)
    def issue(i, k):
        rs, ring = info(i)
        lds(fmt(rs[k], i, ring), ("f", G0 + i))
    for G in sorted(g for g in sched if g < 0):
        for (i, k) in sched[G]: issue(i, k)
    for i, g in enumerate(groups):
        for x in g.get("top", []): do(x)
        if W == 2 and (G0 + i) % 2 == 0 and i + 1 < n and lg.count(("f", G0 + i + 1)) is not None and not groups[i + 1].get("top"):
            lg.wait(("f", G0 + i + 1))
        lg.wait(("f", G0 + i))
        rl = sched.get(i, [])
        for q, m in enumerate(g["mf"]):
            a(fmt(m, i, g["ring"]))
            gp = g["gaps"][q]
            for x in gp.s: do(x)
            for j, (ii, k) in enumerate(rl):
                if rgap(g, j) == q: issue(ii, k)
            for x in gp.m + gp.v: do(x)
    gctr[0] += n

def place_units(gaps, pos, units, tag, step):
    for sal, d in units:
        while gaps[pos].cap < 8: pos += 1
        tgt = gaps[pos - 1]
        assert not tgt.v
        for x in sal: (tgt.m if tgt.m else tgt.s).append(x)
        gaps[pos].add(I_vm(d, tag) if tag is not None else d)
        pos += step
def trd(aa, off):
    return [f"ds_read_b64_tr_b16 {{r0}}, v{aa} offset:{off}", f"ds_read_b64_tr_b16 {{r1}}, v{aa} offset:{off+512}"]
def mf16(d, b, c): return f"v_mfma_f32_16x16x32_bf16 {d}, {{A}}, {b}, {c}"

def gemm_groups(kind, nstage, gs0, accf, bf, ring, aa, tagp, first_top=True):
    groups = []
    for s in range(nstage):
        gs = gs0 + s; ps = gs % 4
        av = aa[ps // 2]; pso = (ps % 2) * PS
        first = len(groups)
        if kind == "G1": items = [(pso + blk * BLK + fb * 32, fb, 2 * s + blk) for blk in range(2) for fb in range(4)]
        elif kind == "QP": items = [(pso + (db // 2) * 64 + (db % 2) * 8, db, s) for db in range(8)]
        else: items = [(pso + nb * 32, nb, s) for nb in range(7)]
        for off, blk, ks in items:
            groups.append(dict(reads=trd(av, off), ring=ring, stage=gs, first=(len(groups) == first),
                               mf=[mf16(accf(blk, qb), bf(ks, qb), accf(blk, qb) if ks > 0 else "0") for qb in range(4)], top=[]))
        if s > 0 or first_top:
            groups[first]["top"] = [lambda gs=gs: vm.wait((tagp, gs + 1)), "s_barrier"]
    return groups
def gemm_dma(groups, gaps, dmaf, tagp, skip=()):
    for G, g in enumerate(groups):
        if g.get("first"):
            gs = g["stage"]
            if (gs + 3) in skip: continue
            units = dmaf(gs + 3)
            if not units: continue
            ng = sum(1 for x in groups if x["stage"] == gs)
            dq = 1 if OPT["tt"] else 2
            pos = [4 * (G + i) + dq for i in range(ng)]
            if ng < len(units): pos = sorted(pos + [4 * (G + 3) + dq + 1])
            for u, p_ in zip(units, pos): place_units(gaps, p_, [u], (tagp, gs + 3), 1)

def xlane(op, v, t):
    for sw in ("v_permlane16_swap_b32", "v_permlane32_swap_b32"):
        a(f"v_mov_b32 v{t}, v{v}"); a("s_nop 1")
        a(f"{sw} v{v}, v{t}"); a("s_nop 1")
        a(f"{op} v{v}, v{v}, v{t}")
def xlane4(op, vs, ts):
    for sw in ("v_permlane16_swap_b32", "v_permlane32_swap_b32"):
        for v, t in zip(vs, ts): a(f"v_mov_b32 v{t}, v{v}")
        for v, t in zip(vs, ts): a(f"{sw} v{v}, v{t}")
        for v, t in zip(vs, ts): a(f"{op} v{v}, v{v}, v{t}")
def round_bf16(v, t):
    a(f"v_cvt_pk_bf16_f32 v{t}, v{v}, v{v}")
    a(f"v_lshlrev_b32 v{v}, 16, v{t}")

def dump_regs(name, kind, base, n):
    if OPT["dump"] != name: return
    a("s_nop 7"); a("s_nop 7"); a("s_waitcnt vmcnt(0) lgkmcnt(0)")
    a(f"s_lshl_b32 s{S_TMP}, s2, 2"); a(f"s_add_u32 s{S_TMP}, s{S_TMP}, s{S_W}")
    a(f"s_mul_i32 s{S_TMP}, s{S_TMP}, {n*256}")
    a(f"s_add_u32 s{S_TMP}, s{S_TMP}, {DUMP_OFF}")
    a(f"v_lshlrev_b32 v{V_T+7}, 2, v{V_LANE}")
    for i in range(n):
        if kind == "a":
            a(f"v_accvgpr_read_b32 v{V_T+6}, a{base+i}"); src = V_T + 6
        else: src = base + i
        a(f"buffer_store_dword v{src}, v{V_T+7}, s[{S_WS}:{S_WS+3}], s{S_TMP} offen")
        a(f"s_add_u32 s{S_TMP}, s{S_TMP}, 256")
        if kind == "a": a("s_waitcnt vmcnt(0)")
    a("s_waitcnt vmcnt(0)")
    a("s_endpgm")

a("s_cmp_ge_u32 s2, 256")
a("s_cbranch_scc1 L_end")
if OPT["stamps"]: a("s_memtime s[98:99]")
a("s_load_dwordx16 s[68:83], s[0:1], 0")
if OPT["cpf"]:
    a("s_getpc_b64 s[6:7]")
    a("s_lshr_b32 s3, s2, 3"); a("s_lshl_b32 s3, s3, 11")
    a("v_lshrrev_b32 v1, 6, v0"); a("v_lshlrev_b32 v1, 9, v1")
    a("v_and_b32 v2, 3, v0"); a("v_lshl_add_u32 v1, v2, 7, v1")
    a("v_add_u32 v1, s3, v1")
    a(f"global_load_dword a{A_PF}, v1, s[6:7]")
    vm.issue("cpf")
a("s_load_dwordx2 s[84:85], s[0:1], 64")
a("s_load_dwordx2 s[4:5], s[0:1], 96")
a(f"v_lshrrev_b32 v{V_T}, 6, v0")
a(f"v_and_b32 v{V_LANE}, 63, v0")
a(f"v_readfirstlane_b32 s{S_W}, v{V_T}")
a(f"s_and_b32 s{S_J}, s2, 7")
a(f"s_lshr_b32 s{S_T}, s2, 3")
VQ_, VG_ = V_T + 1, V_T + 2
a(f"v_and_b32 v{VQ_}, 15, v{V_LANE}")
a(f"v_lshrrev_b32 v{VG_}, 4, v{V_LANE}")
a(f"v_mul_u32_u24 v{V_T+3}, 896, v{VQ_}")
a(f"v_lshl_add_u32 v{V_T+3}, v{VG_}, 4, v{V_T+3}")
a(f"s_lshl_b32 s{S_TMP}, s{S_T}, 6"); a(f"s_lshl_b32 s{S_TMP+1}, s{S_W}, 4"); a(f"s_add_u32 s{S_TMP}, s{S_TMP}, s{S_TMP+1}")
a(f"s_mul_i32 s{S_TMP}, s{S_TMP}, 896")
a(f"s_mov_b32 s{S_X+2}, 1835008"); a(f"s_mov_b32 s{S_X+3}, 0x20000")
a("s_waitcnt lgkmcnt(0)")
PX, PK, PV_, PWQ, PWO, PW1, PB1, PW2 = 68, 70, 72, 74, 76, 80, 82, 84
a(f"s_mov_b32 s{S_X}, s{PX}"); a(f"s_mov_b32 s{S_X+1}, s{PX+1}")
if OPT["tlbw"]:
    a(f"s_lshl_b32 s{S_X1}, s{S_T}, 2"); a(f"s_add_u32 s{S_X1}, s{S_X1}, s{S_W}"); a(f"s_and_b32 s{S_X1}, s{S_X1}, 15")
    a("v_mov_b32 v1, 0")
    pages = [(PX, None, 0), (PW1, None, 0), (PB1, None, 0), (PWQ, None, 0), (PWQ, None, 224 * 8192), (PWQ, None, 447 * 8192),
             (PW2, 200704, 0), (PK, 1 << 20, 0), (PV_, 1 << 20, 0), (PWO, 458752, 0), (S_WSP, 32 * PART, MP_OFF), (S_WSP, 32 * PART, SP_OFF),
             (S_WSP, 32 * PART, MP_OFF + 31 * PART), (S_WSP, 32 * PART, SP_OFF + 31 * PART), (PW1, None, 447 * 3584), (PX, None, 1835008 - 64)]
    for k, (ptr, jmul, off) in enumerate(pages):
        a(f"s_cmp_eq_u32 s{S_X1}, {k}")
        a(f"s_cbranch_scc0 L_tw{k}")
        if jmul:
            a(f"s_mul_i32 s{S_X2}, s{S_J}, {jmul}"); a(f"s_add_u32 s{S_X2}, s{S_X2}, {off}")
        else:
            a(f"s_mov_b32 s{S_X2}, {off}")
        a(f"s_add_u32 s6, s{ptr}, s{S_X2}"); a(f"s_addc_u32 s7, s{ptr+1}, 0")
        a(f"global_load_dword a{A_PF}, v1, s[6:7]")
        a.label(f"L_tw{k}")
    vm.issue("tw")
XR = 0
for ks in range(14):
    vmem(f"buffer_load_dwordx4 {vr(XR+4*ks,4)}, v{V_T+3}, s[{S_X}:{S_X+3}], s{S_TMP} offen offset:{64*ks}", "x")
a(f"s_lshl_b32 s{S_TMP}, s{S_J}, 20")
a(f"s_add_u32 s{S_K}, s{PK}, s{S_TMP}"); a(f"s_addc_u32 s{S_K+1}, s{PK+1}, 0")
a(f"s_mov_b32 s{S_K+2}, 0x100000"); a(f"s_mov_b32 s{S_K+3}, 0x20000")
a(f"s_add_u32 s{S_V}, s{PV_}, s{S_TMP}"); a(f"s_addc_u32 s{S_V+1}, s{PV_+1}, 0")
a(f"s_mov_b32 s{S_V+2}, 0x100000"); a(f"s_mov_b32 s{S_V+3}, 0x20000")
srd(S_WQ, PWQ, PWQ+1, 3670016)
srd(S_WO, PWO, PWO+1, 3670016)
srd(S_W1, PW1, PW1+1, 1605632)
srd(S_W2, PW2, PW2+1, 1605632)
srd(S_WS, S_WSP, S_WSP+1, WS_SIZE)
srd(S_B1, PB1, PB1+1, 3584)
stamp()
a(f"s_lshr_b32 s{S_A}, s{S_W}, 1"); a(f"s_and_b32 s{S_C}, s{S_W}, 1")
a(f"s_mul_i32 s{S_TMP}, s{S_A}, {BLK}"); a(f"s_mul_i32 s{S_TMP+1}, s{S_C}, {8*UNIT}")
a(f"s_add_u32 s{S_LDSW}, s{S_TMP}, s{S_TMP+1}")
for i in range(4): a(f"s_add_u32 s{S_M0+i}, s{S_LDSW}, {i*PS}")
a(f"s_lshl_b32 s{S_TMP}, s{S_A}, 14"); a(f"s_lshl_b32 s{S_TMP+1}, s{S_C}, 12")
a(f"s_add_u32 s{S_GKV}, s{S_TMP}, s{S_TMP+1}")
a(f"s_sub_u32 s{S_KOFF}, s{S_GKV}, 0x8000"); a(f"s_sub_u32 s{S_VOFF}, s{S_GKV}, 0x8000")
a(f"s_lshl_b32 s{S_TMP}, s{S_A}, 5"); a(f"s_lshl_b32 s{S_TMP+1}, s{S_C}, 4"); a(f"s_add_u32 s{S_TMP}, s{S_TMP}, s{S_TMP+1}")
a(f"s_mul_i32 s{S_BG1}, s{S_TMP}, 3584"); a(f"s_mul_i32 s{S_TMP+1}, s{S_J}, 448"); a(f"s_add_u32 s{S_BG1}, s{S_BG1}, s{S_TMP+1}")
a(f"s_lshl_b32 s{S_TMP}, s{S_C}, 17")
a(f"s_lshl_b32 s{S_TMP+1}, s{S_J}, 10"); a(f"s_add_u32 s{S_TMP}, s{S_TMP}, s{S_TMP+1}")
a(f"s_lshl_b32 s{S_TMP+1}, s{S_A}, 9"); a(f"s_add_u32 s{S_BQP}, s{S_TMP}, s{S_TMP+1}")
a(f"s_mul_i32 s{S_TMP}, s{S_J}, 224"); a(f"s_lshl_b32 s{S_TMP+1}, s{S_C}, 3"); a(f"s_add_u32 s{S_TMP}, s{S_TMP}, s{S_TMP+1}")
a(f"s_mul_i32 s{S_BG2}, s{S_TMP}, 896"); a(f"s_mul_i32 s{S_TMP+2}, s{S_A}, 448"); a(f"s_add_u32 s{S_BG2}, s{S_BG2}, s{S_TMP+2}")
a(f"s_lshl_b32 s{S_TMP}, s{S_J}, 9"); a(f"s_add_u32 s{S_TMP}, s{S_TMP}, s{S_TMP+1}")
a(f"s_mul_i32 s{S_BOP}, s{S_TMP}, 896"); a(f"s_add_u32 s{S_BOP}, s{S_BOP}, s{S_TMP+2}")
a(f"s_mov_b32 s{S_THR}, {OPT['thr']}")
def dma_voffsets(which):
    a(f"v_lshrrev_b32 v{V_T+4}, 5, v{V_LANE}")
    a(f"v_and_b32 v{V_T+5}, 31, v{V_LANE}")
    a(f"v_lshlrev_b32 v{V_T+5}, 4, v{V_T+5}")
    if "1" in which:
        a(f"v_mul_u32_u24 v{V_DW1}, {4*3584}, v{V_T+4}"); a(f"v_add_u32 v{V_DW1}, v{V_DW1}, v{V_T+5}")
    if "q" in which: a(f"v_lshl_add_u32 v{V_DWQ}, v{V_T+4}, 15, v{V_T+5}")
    if "o" in which: a(f"v_lshl_add_u32 v{V_DO}, v{V_T+4}, 13, v{V_T+5}")
    if "w" in which:
        a(f"v_mul_u32_u24 v{V_DWW}, {16*896}, v{V_T+4}"); a(f"v_add_u32 v{V_DWW}, v{V_DWW}, v{V_T+5}")
        a(f"v_cmp_lt_u32 vcc, {27*16}, v{V_T+5}")
        a(f"v_mov_b32 v{V_T+6}, 0x40000000")
        a("s_nop 1")
        a(f"v_cndmask_b32 v{V_DWW}, v{V_DWW}, v{V_T+6}, vcc")
dma_voffsets("1qow")
if OPT["pfpos"] < 3:
    emit_units(stage_dma(0), ("st", 0))
    emit_units(stage_dma(1), ("st", 1))
def rowp_cc():
    a(f"v_bfe_u32 v{V_ROWP}, v{V_LANE}, 2, 2")
    a(f"v_lshrrev_b32 v{V_CC}, 4, v{V_LANE}")
    a(f"v_lshl_add_u32 v{V_ROWP}, v{V_CC}, 2, v{V_ROWP}")
    a(f"v_mul_u32_u24 v{V_ROWP}, {UNIT}, v{V_ROWP}")
    a(f"v_and_b32 v{V_CC}, 3, v{V_LANE}")
rowp_cc()

PFD = OPT["pfd"]
def prefetch(kind, gran):
    sh = 6 if gran == 64 else 7
    a(f"s_lshl_b32 s{S_TMP}, s{S_T}, 2"); a(f"s_add_u32 s{S_TMP}, s{S_TMP}, s{S_W}")
    T0, T1 = V_T + 4, V_T + 5
    def masked(n):
        if n < 64:
            a(f"v_cmp_lt_u32 vcc, {n-1}, v{V_LANE}")
            a(f"v_mov_b32 v{T1}, 0x40000000")
            a("s_nop 1")
            a(f"v_cndmask_b32 v{T0}, v{T0}, v{T1}, vcc")
    if kind in ("w1", "wq"):
        rowb = 512 if kind == "w1" else 1024
        rs = 3584 if kind == "w1" else 8192
        if kind == "w1": rowb, per_row = 640, 8
        per_row = 8 if kind == "w1" else rowb // gran
        step = 64 if kind == "w1" else gran
        n = 448 * per_row // 128
        a(f"s_mul_i32 s{S_TMP}, s{S_TMP}, {n}")
        a(f"v_add_u32 v{T0}, s{S_TMP}, v{V_LANE}")
        lgp = per_row.bit_length() - 1
        a(f"v_lshrrev_b32 v{T1}, {lgp}, v{T0}")
        a(f"v_and_b32 v{T0}, {per_row-1}, v{T0}")
        a(f"v_mul_u32_u24 v{T0}, {step}, v{T0}")
        a(f"s_mov_b32 s{S_TMP+1}, {rs}")
        a(f"v_mad_u32_u24 v{T0}, v{T1}, s{S_TMP+1}, v{T0}")
        masked(n)
        a(f"s_mul_i32 s{S_TMP+1}, s{S_J}, {448 if kind == 'w1' else 1024}")
        sr_ = S_W1 if kind == "w1" else S_WQ
        vmem(f"buffer_load_dword a{A_PF}, v{T0}, s[{sr_}:{sr_+3}], s{S_TMP+1} offen", "pf")
    else:
        size = {"w2": 200704, "wo": 458752, "k": 1 << 20, "v": 1 << 20, "k0": PFD * 32768, "v0": PFD * 32768}[kind]
        sr_ = {"w2": S_W2, "wo": S_WO, "k": S_K, "v": S_V, "k0": S_K, "v0": S_V}[kind]
        n = (size // gran + 127) // 128
        a(f"s_mul_i32 s{S_TMP}, s{S_TMP}, {n*gran}")
        if kind in ("w2", "wo"):
            a(f"s_mul_i32 s{S_TMP+1}, s{S_J}, {size}"); a(f"s_add_u32 s{S_TMP}, s{S_TMP}, s{S_TMP+1}")
        a(f"v_lshlrev_b32 v{T0}, {sh}, v{V_LANE}")
        masked(n)
        for i in range((n + 63) // 64):
            vmem(f"buffer_load_dword a{A_PF}, v{T0}, s[{sr_}:{sr_+3}], s{S_TMP} offen", "pf")
            if i + 1 < (n + 63) // 64: a(f"s_add_u32 s{S_TMP}, s{S_TMP}, {64*gran}")
GR = OPT["gran"]
def early_pf(which):
    if not OPT["prefetch"]: return
    for kind in which: prefetch(kind, GR)
if OPT["pfpos"] == 0:
    early_pf(("w1", "wq", "w2", "k0", "v0"))
if OPT["pfpos"] == 4: early_pf(("w1", "wq", "w2"))
if OPT["pfpos"] in (0, 1, 4):
    a(f"v_lshlrev_b32 v{V_T+6}, 3, v{VG_}")
    a(f"s_mul_i32 s{S_TMP}, s{S_J}, 448"); a(f"s_lshl_b32 s{S_TMP+1}, s{S_W}, 7"); a(f"s_add_u32 s{S_TMP}, s{S_TMP}, s{S_TMP+1}")
    for fb in range(4):
        vmem(f"buffer_load_dwordx2 {ar(A_BIAS+2*fb,2)}, v{V_T+6}, s[{S_B1}:{S_B1+3}], s{S_TMP} offen offset:{32*fb}", "b1")
if OPT["pfpos"] == 1: early_pf(("w1",))

stamp()
vm.wait("x")
stamp()
XF = 112
for i in range(56):
    a(f"v_lshlrev_b32 v{XF+2*i}, 16, v{XR+i}")
    a(f"v_and_b32 v{XF+2*i+1}, 0xffff0000, v{XR+i}")
ACC = 56
fstamp()
if OPT["pfpos"] in (3, 4): emit_units(stage_dma(0), ("st", 0))
fstamp()
for c in range(4): a(f"v_pk_add_f32 {vr(ACC+2*c,2)}, {vr(XF+4*c,2)}, {vr(XF+4*c+2,2)}")
for n_, i in enumerate(range(8, 56)):
    c = n_ % 4
    a(f"v_pk_add_f32 {vr(ACC+2*c,2)}, {vr(ACC+2*c,2)}, {vr(XF+2*i,2)}")
a(f"v_pk_add_f32 {vr(ACC,2)}, {vr(ACC,2)}, {vr(ACC+2,2)}")
a(f"v_pk_add_f32 {vr(ACC+4,2)}, {vr(ACC+4,2)}, {vr(ACC+6,2)}")
a(f"v_pk_add_f32 {vr(ACC,2)}, {vr(ACC,2)}, {vr(ACC+4,2)}")
a(f"v_add_f32 v{ACC}, v{ACC}, v{ACC+1}")
xlane("v_add_f32", ACC, ACC+1)
VMEAN, VMB = ACC + 2, ACC + 4
a(f"v_mul_f32 v{VMEAN}, {f32(1.0/448)}, v{ACC}")
a(f"v_mov_b32 v{VMB}, v{VMEAN}")
round_bf16(VMB, ACC+1)
a(f"v_mov_b32 v{VMB+1}, v{VMB}")
VAR = 64
XCL = 2 * PS
if OPT["pfpos"] == 1: early_pf(("wq", "w2"))
fstamp()
if OPT["pfpos"] in (3, 4): emit_units(stage_dma(1), ("st", 1))
fstamp()
if OPT["pfpos"] == 2:
    a(f"v_lshlrev_b32 v{V_T+4}, 3, v{VG_}")
    a(f"s_mul_i32 s{S_TMP}, s{S_J}, 448"); a(f"s_lshl_b32 s{S_TMP+1}, s{S_W}, 7"); a(f"s_add_u32 s{S_TMP}, s{S_TMP}, s{S_TMP+1}")
    for fb in range(4):
        vmem(f"buffer_load_dwordx2 {ar(A_BIAS+2*fb,2)}, v{V_T+4}, s[{S_B1}:{S_B1+3}], s{S_TMP} offen offset:{32*fb}", "b1")
    early_pf(("w1", "wq", "w2"))

a(f"v_lshlrev_b32 v{V_T+6}, 4, v{V_LANE}")
a(f"s_lshl_b32 s{S_TMP}, s{S_W}, 10"); a(f"s_add_u32 s{S_TMP}, s{S_TMP}, {XCL}")
a(f"v_add_u32 v{V_T+6}, s{S_TMP}, v{V_T+6}")
for ks in range(14):
    for i in range(4*ks, 4*ks+4):
        a(f"v_pk_add_f32 {vr(XF+2*i,2)}, {vr(XF+2*i,2)}, {vr(VMB,2)} neg_lo:[0,1] neg_hi:[0,1]")
    for i in range(4*ks, 4*ks+4):
        c = i % 4
        if i < 4: a(f"v_pk_mul_f32 {vr(VAR+2*c,2)}, {vr(XF+2*i,2)}, {vr(XF+2*i,2)}")
        else: a(f"v_pk_fma_f32 {vr(VAR+2*c,2)}, {vr(XF+2*i,2)}, {vr(XF+2*i,2)}, {vr(VAR+2*c,2)}")
if OPT["pfpos"] == 3:
    a(f"v_lshlrev_b32 v{V_T+4}, 3, v{VG_}")
    a(f"s_mul_i32 s{S_TMP}, s{S_J}, 448"); a(f"s_lshl_b32 s{S_TMP+1}, s{S_W}, 7"); a(f"s_add_u32 s{S_TMP}, s{S_TMP}, s{S_TMP+1}")
    for fb in range(4):
        vmem(f"buffer_load_dwordx2 {ar(A_BIAS+2*fb,2)}, v{V_T+4}, s[{S_B1}:{S_B1+3}], s{S_TMP} offen offset:{32*fb}", "b1")
    early_pf(("w1", "wq", "w2"))

fstamp()
a(f"v_pk_add_f32 {vr(VAR,2)}, {vr(VAR,2)}, {vr(VAR+2,2)}")
a(f"v_pk_add_f32 {vr(VAR+4,2)}, {vr(VAR+4,2)}, {vr(VAR+6,2)}")
a(f"v_pk_add_f32 {vr(VAR,2)}, {vr(VAR,2)}, {vr(VAR+4,2)}")
a(f"v_add_f32 v{VAR}, v{VAR}, v{VAR+1}")
xlane("v_add_f32", VAR, VAR+1)
a(f"v_sub_f32 v{VAR+2}, v{VMEAN}, v{VMB}")
a(f"v_mul_f32 v{VAR+2}, v{VAR+2}, v{VAR+2}")
a(f"v_mov_b32 v{VAR+3}, {f32(1.0/448)}")
a(f"v_fma_f32 v{VAR}, v{VAR}, v{VAR+3}, -v{VAR+2}")
a(f"v_max_f32 v{VAR}, 0, v{VAR}")
a(f"v_mov_b32 v{VAR+4}, v{VAR}")
round_bf16(VAR+4, VAR+1)
a(f"v_add_f32 v{VAR+4}, {f32(1e-5)}, v{VAR+4}")
round_bf16(VAR+4, VAR+1)
a(f"v_sqrt_f32 v{VAR+4}, v{VAR+4}"); a("s_nop 0")
round_bf16(VAR+4, VAR+1)
a(f"v_rcp_f32 v{VAR+5}, v{VAR+4}"); a("s_nop 0")
fstamp()
CQ = math.log2(math.e) / 16
a(f"v_mul_f32 v{VAR+2}, {f32(CQ)}, v{VAR+5}")
a(f"v_mov_b32 v{VAR+3}, v{VAR+2}")
for ks in range(14):
    for i in range(4*ks, 4*ks+4):
        a(f"v_pk_mul_f32 {vr(XF+2*i,2)}, {vr(XF+2*i,2)}, {vr(VAR+2,2)}")
    for i in range(4*ks, 4*ks+4):
        a(f"v_cvt_pk_bf16_f32 v{XR+i}, v{XF+2*i}, v{XF+2*i+1}")
    lds(f"ds_write_b128 v{V_T+6}, {vr(XR+4*ks,4)} offset:{ks*4096}")
a(f"v_mul_f32 v{VAR+6}, v{VAR+5}, v{VAR+5}")
a(f"v_mul_f32 v{VAR+6}, v{VAR+6}, v{VAR}")
round_bf16(VAR+6, VAR+7)
a(f"v_add_f32 v{VAR+6}, {f32(1e-5)}, v{VAR+6}")
round_bf16(VAR+6, VAR+7)
a(f"v_sqrt_f32 v{VAR+6}, v{VAR+6}"); a("s_nop 0")
round_bf16(VAR+6, VAR+7)
a(f"v_rcp_f32 v{VAR+6}, v{VAR+6}"); a("s_nop 0")
a(f"v_mul_f32 v{VAR+6}, {f32(1.0/CQ)}, v{VAR+6}")
a(f"s_lshl_b32 s{S_TMP}, s{S_W}, 6"); a(f"s_add_u32 s{S_TMP}, s{S_TMP}, {STATS}")
a(f"v_lshlrev_b32 v{V_T+5}, 2, v{VQ_}"); a(f"v_add_u32 v{V_T+5}, s{S_TMP}, v{V_T+5}")
lds(f"ds_write_b32 v{V_T+5}, v{VAR+6}")
a(f"v_lshlrev_b32 v{V_T+6}, 4, v{V_LANE}"); a(f"v_add_u32 v{V_T+6}, {XCL}, v{V_T+6}")
a(f"v_lshlrev_b32 v{V_T+7}, 2, v{VQ_}"); a(f"v_add_u32 v{V_T+7}, {STATS}, v{V_T+7}")
a(f"s_lshl_b32 s{S_TMP}, s{S_W}, 7")
a(f"v_lshl_add_u32 v{V_AA[0]}, v{V_CC}, 3, v{V_ROWP}")
a(f"v_add_u32 v{V_AA[0]}, s{S_TMP}, v{V_AA[0]}")
a(f"v_add_u32 v{V_AA[1]}, {2*PS}, v{V_AA[0]}")
fstamp()
lg.wait_all()
a("s_barrier")
fstamp()
for f in range(56):
    lds(f"ds_read_b128 {ar(4*f,4)}, v{V_T+6} offset:{f*1024}", "xc")
    if f % 12 == 11: a("s_waitcnt lgkmcnt(4)"); lg.ops = lg.ops[-4:]
for qb in range(4): lds(f"ds_read_b32 v{V_SC+2*qb+1}, v{V_T+7} offset:{qb*64}", "sc")
lg.wait_all()
fstamp()
vm.wait(("st", 1))
fstamp()
a("s_barrier")
dump_regs("xc", "a", 0, 224)
stamp(OPT["fine"] != 2)
emit_units(stage_dma(2), ("st", 2))
emit_units(stage_dma(3), ("st", 3))
if OPT["pfpos"] in (1, 2, 3, 4): early_pf(("k0", "v0"))

RING_A = ("a", 236); RING_V = ("v", V_F)
xcf = lambda ks, qb: ar((ks * 4 + qb) * 4, 4)
H1 = 0; HP = 64; QA = 96; GA = 112
h1acc = lambda fb, qb: vr(H1 + (fb * 4 + qb) * 4, 4)
qacc = lambda db, qb: vr(QA + (db * 4 + qb) * 4, 4)
hfrag = lambda ks, qb: ar((ks * 4 + qb) * 4, 4)
g2acc = lambda nb, qb: ar(GA + (nb * 4 + qb) * 4, 4)
VQA = [V_DW1 - 0, 0]
VQA = [V_KA, V_VA]
a(f"s_mul_i32 s{S_TMP}, s{S_A}, {BLK}"); a(f"s_lshl_b32 s{S_TMP+1}, s{S_C}, 8"); a(f"s_add_u32 s{S_TMP}, s{S_TMP}, s{S_TMP+1}")
a(f"v_lshl_add_u32 v{VQA[0]}, v{V_CC}, 4, v{V_ROWP}")
a(f"v_add_u32 v{VQA[0]}, s{S_TMP}, v{VQA[0]}")
a(f"v_add_u32 v{VQA[1]}, {2*PS}, v{VQA[0]}")

def att_reads(p, f):
    if f < 16:
        kb, x = f // 8, f % 8
        return [f"ds_read_b128 {{r}}, v{V_KA if x < 4 else V_KA2} offset:{((p + 1) % 2) * PS + kb*512 + x*64}"]
    return trd(V_VA, (p % 2) * PS + (f - 16) * 32)
g1 = gemm_groups("G1", 7, 0, h1acc, xcf, RING_A, V_AA, "st", first_top=False)
qp = gemm_groups("QP", 14, 7, qacc, xcf, RING_A, VQA, "st")
g2 = gemm_groups("G2", 7, 21, g2acc, hfrag, RING_A, V_AA, "st")
allg = g1 + qp + g2
POSTA = [(att_reads(-1, i), RING_V) for i in range(LA)]
allgaps = prep_groups(allg, post=POSTA)
gemm_dma(allg, allgaps, stage_dma, "st", skip=(3,))
fq = allgaps[4*56:4*168]; fg = allgaps[4*168:]

C1 = 2 * math.sqrt(2 / math.pi) * math.log2(math.e); C2 = C1 * 0.044715
def gelu_stream():
    st = [f"s_mov_b32 s{S_X1}, {f32(-C2)}", f"v_mov_b32 v{V_T+7}, {f32(-C1)}", I_wvm("b1")]
    for fb in range(4):
        st += [f"v_accvgpr_read_b32 v{V_T}, a{A_BIAS+2*fb}", f"v_accvgpr_read_b32 v{V_T+1}, a{A_BIAS+2*fb+1}", "s_nop 0",
               f"v_lshlrev_b32 v{V_B4}, 16, v{V_T}", f"v_and_b32 v{V_B4+1}, 0xffff0000, v{V_T}",
               f"v_lshlrev_b32 v{V_B4+2}, 16, v{V_T+1}", f"v_and_b32 v{V_B4+3}, 0xffff0000, v{V_T+1}"]
        for qb in range(4):
            base = H1 + (fb * 4 + qb) * 4
            st += [f"v_fma_f32 v{base+r}, v{base+r}, v{V_SC+2*qb+1}, v{V_B4+r}" for r in range(4)]
            st += [f"v_mul_f32 v{V_T+r}, v{base+r}, v{base+r}" for r in range(4)]
            st += [f"v_fma_f32 v{V_T+r}, v{V_T+r}, s{S_X1}, v{V_T+7}" for r in range(4)]
            st += [f"v_mul_f32 v{V_T+r}, v{V_T+r}, v{base+r}" for r in range(4)]
            st += [f"v_exp_f32 v{V_T+r}, v{V_T+r}" for r in range(4)]
            st += [f"v_add_f32 v{V_T+r}, 1.0, v{V_T+r}" for r in range(4)]
            st += [f"v_rcp_f32 v{V_T+r}, v{V_T+r}" for r in range(4)]
            st += [f"v_mul_f32 v{base+r}, v{base+r}, v{V_T+r}" for r in range(4)]
            hp = HP + ((fb // 2) * 4 + qb) * 4 + (fb % 2) * 2
            st += [f"v_cvt_pk_bf16_f32 v{hp}, v{base}, v{base+1}", f"v_cvt_pk_bf16_f32 v{hp+1}, v{base+2}, v{base+3}"]
    st += [f"s_lshl_b32 s{S_X1}, s{S_W}, 1", f"s_add_u32 s{S_X2}, s{S_X1}, 1", f"s_min_u32 s{S_X2}, s{S_X2}, 6",
           f"s_lshl_b32 s{S_X1}, s{S_X1}, 12", f"s_lshl_b32 s{S_X2}, s{S_X2}, 12",
           f"v_lshlrev_b32 v{V_T+6}, 4, v{V_LANE}", f"v_add_u32 v{V_T+6}, {HL}, v{V_T+6}",
           f"v_add_u32 v{V_T+5}, s{S_X2}, v{V_T+6}", f"v_add_u32 v{V_T+4}, s{S_X1}, v{V_T+6}"]
    st += [I_lds(f"ds_write_b128 v{V_T+5}, {vr(HP+16+4*qb,4)} offset:{qb*1024}", "hw") for qb in range(4)]
    st += [I_lds(f"ds_write_b128 v{V_T+4}, {vr(HP+4*qb,4)} offset:{qb*1024}", "hw") for qb in range(4)]
    st += [I_wlg("hw")]
    return st
GE = OPT["gelu_end"]
place_stream(fq, gelu_stream(), 4*2, 4*(8*GE) - 1)
st = [f"s_mul_i32 s{S_X1}, s{S_A}, {BLK}", f"s_mul_i32 s{S_X2}, s{S_C}, 224", f"s_add_u32 s{S_X1}, s{S_X1}, s{S_X2}",
      f"v_lshl_add_u32 v{V_AA[0]}, v{V_CC}, 3, v{V_ROWP}", f"v_add_u32 v{V_AA[0]}, s{S_X1}, v{V_AA[0]}", f"v_add_u32 v{V_AA[1]}, {2*PS}, v{V_AA[0]}"]
st += [I_lds(f"ds_read_b128 {ar(4*f,4)}, v{V_T+6} offset:{f*1024}", "hr") for f in range(28)] + [I_wlg("hr")]
place_stream(fq, st, 4*(8*(GE+1)), 4*(8*14) - 5)

def q_frag(f):
    x, qb = f // 4, f % 4
    b0 = QA + ((2 * x) * 4 + qb) * 4; b1_ = QA + ((2 * x + 1) * 4 + qb) * 4
    st = []
    t = 4 * f
    st += [f"v_cvt_pk_bf16_f32 v{t}, v{b0}, v{b0+1}", f"v_cvt_pk_bf16_f32 v{t+1}, v{b0+2}, v{b0+3}",
           f"v_cvt_pk_bf16_f32 v{t+2}, v{b1_}, v{b1_+1}", f"v_cvt_pk_bf16_f32 v{t+3}, v{b1_+2}, v{b1_+3}"]
    return st
UQW, UQR = V_T + 5, V_T + 4
def q_write(fs, tag): return [I_lds(f"ds_write_b128 v{UQW}, {vr(4*f,4)} offset:{(f - fs[0])*1024}", tag) for f in fs] + [I_wlg(tag)]
def q_read(fs, tag): return [I_lds(f"ds_read_b128 {vr(64+4*f,4)}, v{UQR} offset:{(f - fs[0])*1024}", tag) for f in fs] + [I_wlg(tag)]
R1, R2, R3 = list(range(0, 7)), list(range(7, 14)), [14, 15]
SG = lambda s: 4 * 7 * (s - 21)
st = [f"s_mul_i32 s{S_X1}, s{S_W}, 7168", f"s_xor_b32 s{S_X2}, s{S_W}, 1", f"s_mul_i32 s{S_X2}, s{S_X2}, 7168",
      f"v_lshlrev_b32 v{V_T+6}, 4, v{V_LANE}", f"v_add_u32 v{V_T+6}, {XREG}, v{V_T+6}",
      f"v_add_u32 v{UQW}, s{S_X1}, v{V_T+6}", f"v_add_u32 v{UQR}, s{S_X2}, v{V_T+6}"]
for f in R1: st += q_frag(f)
st += q_write(R1, "qw1")
place_stream(fg, st, SG(21) + 6, SG(22) - 1)
st = q_read(R1, "qr1")
for f in R2[:4]: st += q_frag(f)
place_stream(fg, st, SG(22) + 1, SG(23) - 1)
st = []
for f in R2[4:]: st += q_frag(f)
st += q_write(R2, "qw2")
place_stream(fg, st, SG(23) + 1, SG(24) - 1)
st = q_read(R2, "qr2")
for f in R3: st += q_frag(f)
place_stream(fg, st, SG(24) + 1, SG(25) - 1)
place_stream(fg, q_write(R3, "qw3"), SG(25) + 1, SG(26) - 1)
place_stream(fg, q_read(R3, "qr3"), SG(26) + 1, SG(26) + 12)
st = [f"v_and_b32 v{V_T}, 15, v{V_LANE}", f"v_lshrrev_b32 v{V_T+1}, 4, v{V_LANE}",
      f"s_mul_i32 s{S_X1}, s{S_C}, {BLK}", f"s_lshl_b32 s{S_X2}, s{S_C}, 8",
      f"v_mul_u32_u24 v{V_KA}, {UNIT}, v{V_T}", f"v_lshl_add_u32 v{V_KA}, v{V_T+1}, 4, v{V_KA}",
      f"v_add_u32 v{V_KA}, s{S_X1}, v{V_KA}",
      f"v_subrev_u32 v{V_KA2}, s{S_X2}, v{V_KA}", f"v_add_u32 v{V_KA}, s{S_X2}, v{V_KA}",
      f"v_lshl_add_u32 v{V_VA}, v{V_CC}, 3, v{V_ROWP}", f"v_add_u32 v{V_VA}, s{S_X1}, v{V_VA}", f"v_add_u32 v{V_VA}, {2*PS}, v{V_VA}"]
st += [f"v_mov_b32 v{V_NEG+i}, 0" for i in range(16)]
def _pfs():
    a(f"s_cmp_eq_u32 s{S_C}, 0")
    a(f"s_cselect_b32 s{S_B1}, s{S_K}, s{S_V}"); a(f"s_cselect_b32 s{S_B1+1}, s{S_K+1}, s{S_V+1}")
    a(f"s_mov_b32 s{S_B1+2}, 0x100000")
    a(f"s_mov_b32 s{S_TMP+3}, {(PFD-1)*0x8000}")
    a(f"s_lshl_b32 s{S_X1}, s{S_T}, 10"); a(f"s_lshl_b32 s{S_X2}, s{S_A}, 9"); a(f"s_add_u32 s{S_X1}, s{S_X1}, s{S_X2}")
    a(f"v_lshlrev_b32 v226, 7, v{V_LANE}"); a(f"v_add_u32 v226, s{S_X1}, v226")
    a(f"v_cmp_lt_u32 vcc, 3, v{V_LANE}"); a(f"v_mov_b32 v227, 0x40000000"); a("s_nop 1")
    a(f"v_cndmask_b32 v226, v226, v227, vcc")
st += [It(8, _pfs, "v")]
place_stream(fg, st, SG(26) + 13, SG(28) - 1)

emit_groups(allg[:56], post=[(g["reads"], g["ring"]) for g in allg[56:59]])
stamp()
emit_groups(allg[56:168], pre_issued=LA, post=[(g["reads"], g["ring"]) for g in allg[168:171]])
dump_regs("hp", "v", HP, 32)
stamp()
if OPT["prefetch"] and OPT["kvpf"] == 2:
    for kind in ("k", "v"): prefetch(kind, GR)
emit_groups(allg[168:], pre_issued=LA, post=POSTA)
stamp()

def att_mf(p, f, czero=False):
    out = []
    for qb in range(4):
        if f < 16:
            kb, x = f // 8, f % 8
            S = V_S + (kb * 4 + qb) * 4
            out.append(mf16(vr(S, 4), vr(V_Q + (x * 4 + qb) * 4, 4), vr(V_NEG + 4 * qb, 4) if x == 0 else vr(S, 4)))
        else:
            o = ar(((f - 16) * 4 + qb) * 4, 4)
            out.append(mf16(o, vr(V_P + (p % 2) * 16 + 4 * qb, 4), "0" if czero else o))
    return out
def sm_stream(p, kb):
    st = []
    Pb = V_P + ((p + 1) % 2) * 16
    lo = V_L + (p % 2) * 4; ln = V_L + ((p + 1) % 2) * 4
    items = [(qb, r) for qb in range(4) for r in range(4)]
    n = len(items)
    T = lambda k: V_T + (k % 8)
    for k in range(n + 3):
        if k < n:
            qb, r = items[k]
            st.append(f"v_exp_f32 v{T(k)}, v{V_S + (kb*4+qb)*4 + r}")
        if 1 <= k <= n:
            qb, r = items[k - 1]
            src = lo + qb if (kb == 0 and r == 0) else ln + qb
            st.append(f"v_add_f32 v{ln + qb}, v{T(k-1)}, v{src}")
        if k >= 3 and (k - 3) % 2 == 0 and (k - 2) < n:
            j = k - 3
            qb, r = items[j]
            st.append(f"v_cvt_pk_bf16_f32 v{Pb + qb*4 + kb*2 + r//2}, v{T(j)}, v{T(j+1)}")
    return st
def rescale(p, first):
    lo = V_L + (p % 2) * 4
    a("s_nop 7"); a("s_nop 3")
    MX = V_T
    for qb in range(4):
        b0 = V_S + qb * 4; b1_ = V_S + (4 + qb) * 4
        a(f"v_max3_f32 v{MX+qb}, v{b0}, v{b0+1}, v{b0+2}")
    for qb in range(4):
        b0 = V_S + qb * 4; b1_ = V_S + (4 + qb) * 4
        a(f"v_max3_f32 v{MX+qb}, v{MX+qb}, v{b0+3}, v{b1_}")
    for qb in range(4):
        b0 = V_S + qb * 4; b1_ = V_S + (4 + qb) * 4
        a(f"v_max3_f32 v{MX+qb}, v{MX+qb}, v{b1_+1}, v{b1_+2}")
    for qb in range(4):
        b1_ = V_S + (4 + qb) * 4
        a(f"v_max_f32 v{MX+qb}, v{MX+qb}, v{b1_+3}")
    a("s_nop 0")
    xlane4("v_max_f32", [MX + q for q in range(4)], [V_T + 4 + q for q in range(4)])
    if not first:
        for qb in range(4): a(f"v_max_f32 v{MX+qb}, 0, v{MX+qb}")
    for qb in range(4):
        for kb in range(2):
            for r in range(4):
                a(f"v_sub_f32 v{V_S+(kb*4+qb)*4+r}, v{V_S+(kb*4+qb)*4+r}, v{MX+qb}")
        for r in range(4):
            a(f"v_sub_f32 v{V_NEG+qb*4+r}, v{V_NEG+qb*4+r}, v{MX+qb}")
    if not first:
        for qb in range(4): a(f"v_exp_f32 v{MX+qb}, -v{MX+qb}")
        a("s_nop 0")
        for qb in range(4): a(f"v_mul_f32 v{lo+qb}, v{lo+qb}, v{MX+qb}")
        for d in range(16):
            for qb in range(4):
                for r in range(4): a(f"v_accvgpr_read_b32 v{V_T+4+r}, a{(d*4+qb)*4+r}")
                a("s_nop 0")
                for r in range(4): a(f"v_mul_f32 v{V_T+4+r}, v{V_T+4+r}, v{MX+qb}")
                for r in range(4): a(f"v_accvgpr_write_b32 a{(d*4+qb)*4+r}, v{V_T+4+r}")
    for kb in range(2):
        st = sm_stream(p, kb)
        for i, x in enumerate(st):
            a(x)
            if x.startswith("v_exp") and i + 1 < len(st) and not st[i+1].startswith("v_exp"):
                dst = x.split()[1].rstrip(",")
                if dst in st[i+1]: a("s_nop 0")
    a("s_nop 1")
slow = []
V_PFO, V_PFD = 226, 227
S_PFS = S_B1; S_PFO = S_TMP + 3
def sm_place(gaps, p, g_s0, g_s1, g_end):
    Pb = V_P + ((p + 1) % 2) * 16
    lo = V_L + (p % 2) * 4; ln = V_L + ((p + 1) % 2) * 4
    items = [(kb, qb, r) for kb in range(2) for qb in range(4) for r in range(4)]
    NT = 8
    T = lambda k: V_T + (k % NT)
    E = [f"v_exp_f32 v{T(k)}, v{V_S + (kb*4+qb)*4 + r}" for k, (kb, qb, r) in enumerate(items)]
    A = []
    for k, (kb, qb, r) in enumerate(items):
        src = lo + qb if (kb == 0 and r == 0) else ln + qb
        A.append(f"v_add_f32 v{ln + qb}, v{T(k)}, v{src}")
    C = [f"v_cvt_pk_bf16_f32 v{Pb + items[2*j][1]*4 + items[2*j][0]*2 + items[2*j][2]//2}, v{T(2*j)}, v{T(2*j+1)}" for j in range(16)]
    e = a_ = c = 0
    egap = {}
    for g in range(g_s0, g_end + 1):
        G = gaps[g]
        while G.cap >= 4:
            ra = a_ < 32 and a_ < e and egap[a_] < g
            rc = c < 16 and 2*c + 1 < e and egap[2*c+1] < g
            can_e = e < 32 and G.cap >= 8 and not G.v and (e < 16 or g >= g_s1) and (e < NT or (a_ > e - NT and c > (e - NT) // 2))
            pending = (e - a_) + (e // 2 - c)
            remaining_gaps = g_end - g
            if can_e and (pending < 5 or not (ra or rc)):
                G.add(E[e]); egap[e] = g; e += 1; break
            elif rc and (c <= a_ // 2 or not ra):
                G.add(C[c]); c += 1
            elif ra:
                G.add(A[a_]); a_ += 1
            elif rc:
                G.add(C[c]); c += 1
            else: break
    assert e == 32 and a_ == 32 and c == 16, (e, a_, c)

def period(p, qk=True, pv=True, sm=True, dK=None, dV=None, wait30="s_waitcnt vmcnt(1)", post=None, lab="", pre_issued=LA,
           czero=False, extra=None, top0=None, dtag=None, pf=False, nobar=False, midbar=None):
    fl = [f for f in range(32) if (f < 16 and qk) or (f >= 16 and pv)]
    n = len(fl)
    groups = [dict(reads=att_reads(p, f), mf=att_mf(p, f, czero), top=[], ring=RING_V) for f in fl]
    if top0: groups[0]["top"] = top0
    delay = {}
    inloop = lab in ("A", "B")
    if not nobar:
        groups[n - 2]["top"] = [wait30, "s_waitcnt lgkmcnt(0)", lambda: lg.ops.clear(), "s_barrier"]
        if inloop and OPT["x_nobar"] == 1: groups[n - 2]["top"] = ["s_waitcnt lgkmcnt(0)", lambda: lg.ops.clear()]
        if inloop and OPT["x_nobar"] == 2: groups[n - 2]["top"] = ["s_waitcnt lgkmcnt(0)", lambda: lg.ops.clear(), "s_barrier"]
        delay = {n: n - 2}
    if inloop and OPT["x_nodma"]: dK = dV = None
    if inloop and OPT["x_nopf"]: pf = False
    if inloop and OPT["x_nosm"]: sm = False
    if midbar is not None: groups[midbar]["top"] = groups[midbar]["top"] + ["s_barrier"]
    gaps = prep_groups(groups, pre_issued, post, delay)
    units = (dK or []) + (dV or [])
    if units: place_units(gaps, OPT["d0"], units, dtag, min(OPT["dstep"], (4 * n - 12) // len(units)))
    if pf:
        ins = f"buffer_load_dword v{V_PFD}, v{V_PFO}, s[{S_PFS}:{S_PFS+3}], s{S_PFO} offen"
        pos = min(4 * (n - 4), OPT["d0"] + 16 * OPT["dstep"] + 2)
        place_units(gaps, pos, [([f"s_add_u32 s{S_PFO}, s{S_PFO}, 0x8000"], ins)], "pf" if dtag else None, 1)
    if sm:
        sm_place(gaps, p, OPT["sm0a"], OPT["sm1a"], OPT["smend"])
        ln = V_L + ((p + 1) % 2) * 4
        tail = [f"v_max3_f32 v{V_T}, v{ln}, v{ln+1}, v{ln+2}", f"v_max_f32 v{V_T}, v{V_T}, v{ln+3}", f"v_cmp_lt_f32 vcc, s{S_THR}, v{V_T}"]
        for k, x in enumerate(tail): gaps[OPT["smend"] + 1 + k].add(x)
    if extra:
        for st, f0, f1 in extra: place_stream(gaps, st, f0, f1)
    emit_groups(groups, pre_issued=pre_issued, post=post, delay=delay)
    if sm:
        a(f"s_cbranch_vccnz L_slow{lab}")
        a.label(f"L_ret{lab}")
        slow.append((p, lab))
PR = lambda p, base=0: [(att_reads(p, base + i), RING_V) for i in range(LA)]

def store_stream(accreg, is_agpr, wsoff, tag, sreg, flags=""):
    st = [f"v_lshlrev_b32 v{V_T+6}, 4, v{V_LANE}",
          f"s_lshl_b32 s{sreg}, s{S_J}, 5", f"s_add_u32 s{sreg}, s{sreg}, s{S_T}",
          f"s_lshl_b32 s{sreg}, s{sreg}, 2", f"s_add_u32 s{sreg}, s{sreg}, s{S_W}",
          f"s_mul_i32 s{sreg}, s{sreg}, 14336", f"s_add_u32 s{sreg}, s{sreg}, {wsoff}"]
    return st
def store_body(accreg, is_agpr, tag, sreg, stage_regs, tmp, flags=""):
    st = []
    for s in range(14):
        nb, qp_ = s // 2, s % 2
        t = stage_regs + 4 * (s % 2)
        for hh in range(2):
            base = accreg + (nb * 4 + 2 * qp_ + hh) * 4
            if is_agpr:
                st += [f"v_accvgpr_read_b32 v{tmp+r}, a{base+r}" for r in range(4)] + ["s_nop 0"]
                src = tmp
            else: src = base
            st += [f"v_cvt_pk_bf16_f32 v{t+2*hh}, v{src}, v{src+1}", f"v_cvt_pk_bf16_f32 v{t+2*hh+1}, v{src+2}, v{src+3}"]
        st += [I_vm(f"buffer_store_dwordx4 {vr(t,4)}, v{V_T+6}, s[{S_WS}:{S_WS+3}], s{sreg} offen{flags}", tag), f"s_add_u32 s{sreg}, s{sreg}, 1024"]
    return st

mp = store_stream(GA, True, MP_OFF, "mp", S_X1) + store_body(GA, True, "mp", S_X1, V_P + 16, V_T, ["", " sc1", " nt", " sc0 sc1"][OPT["mpf"]])
top0 = [lambda: vm.wait(("st", 29)), "s_barrier"]
period(-1, qk=True, pv=False, sm=False, wait30=(lambda: vm.wait(("st", 30))), post=PR(0), top0=top0, extra=[(mp, 6, 63)], dtag="kk")
for i in range(8): a(f"v_mov_b32 v{V_L+i}, 0")
if OPT["prefetch"]: prefetch("wo", GR)
rescale(-1, True)
dump_regs("q", "v", V_Q, 128)
stamp()
PFL = OPT["kvpf"] == 3
W30 = "s_waitcnt vmcnt(1)" if PFL else "s_waitcnt vmcnt(0)"
period(0, dK=dma_kv("K", 0), dV=dma_kv("V", 3), post=PR(1), lab="Z", czero=True, wait30=W30, pf=PFL)
vm.ops = []
stamp()
a(f"s_mov_b32 s{S_CNT}, 14")
a(".p2align 6")
a.label("L_loop")
sv = list(lg.ops)
period(1, dK=dma_kv("K", 1), dV=dma_kv("V", 2), post=PR(2), lab="A", pf=PFL, wait30=W30)
period(2, dK=dma_kv("K", 0), dV=dma_kv("V", 3), post=PR(3), lab="B", pf=PFL, wait30=W30)
assert len(lg.ops) == len(sv), (lg.ops, sv)
a(f"s_sub_u32 s{S_CNT}, s{S_CNT}, 1")
a(f"s_cmp_lg_u32 s{S_CNT}, 0")
a("s_cbranch_scc1 L_loop")
stamp()
V_DWW = V_SC + 1
dma_voffsets("w")
op_dma = lambda s: dma_stage("OP", s, s % 4) if s < 16 else None
period(1, dK=dma_kv("K", 1), dV=dma_kv("V", 2), post=PR(2), lab="C", wait30="s_waitcnt vmcnt(0)")
period(2, dK=op_dma(0), dV=dma_kv("V", 3), post=PR(3, 16), lab="D", wait30="s_waitcnt vmcnt(0)")
vm.ops = []
LF = V_L + 4 * ((30 + 1) % 2)
SCL = 16; SCP = 24
VA1, VA2, VMGW, VMGR, VL16 = 28, 29, 30, 31, 228
def stats_a():
    st = []
    vs = [LF + q for q in range(4)]; ts = [q for q in range(4)]
    for sw in ("v_permlane16_swap_b32", "v_permlane32_swap_b32"):
        st += [f"v_mov_b32 v{t}, v{v}" for v, t in zip(vs, ts)]
        st += [f"{sw} v{v}, v{t}" for v, t in zip(vs, ts)]
        st += [f"v_add_f32 v{v}, v{v}, v{t}" for v, t in zip(vs, ts)]
    for qb in range(4):
        st += [f"v_sub_f32 v{2*qb}, 0, v{V_NEG+4*qb}", f"v_mov_b32 v{2*qb+1}, v{LF+qb}"]
    st += [f"v_and_b32 v{VA2}, 15, v{V_LANE}", f"v_lshlrev_b32 v{VA2}, 3, v{VA2}",
           f"s_lshl_b32 s{S_X1}, s{S_W}, 9", f"s_add_u32 s{S_X1}, s{S_X1}, {ML}", f"v_add_u32 v{VA1}, s{S_X1}, v{VA2}",
           f"s_xor_b32 s{S_X1}, s{S_X1}, 512", f"v_add_u32 v{VA2}, s{S_X1}, v{VA2}"]
    st += [I_lds(f"ds_write_b64 v{VA1}, {vr(2*qb,2)} offset:{qb*128}", "mlw") for qb in range(4)]
    st += [I_wlg("mlw")]
    return st
def stats_b():
    st = [I_lds(f"ds_read_b64 {vr(8+2*qb,2)}, v{VA2} offset:{qb*128}", "mlr") for qb in range(4)]
    st += [f"v_lshlrev_b32 v{VL16}, 4, v{V_LANE}",
           f"s_lshl_b32 s{S_X1}, s{S_W}, 14", f"s_add_u32 s{S_X1}, s{S_X1}, {2*PS}", f"v_add_u32 v{VMGW}, s{S_X1}, v{VL16}",
           f"s_xor_b32 s{S_X2}, s{S_W}, 1", f"s_lshl_b32 s{S_X2}, s{S_X2}, 14", f"s_add_u32 s{S_X2}, s{S_X2}, {2*PS}", f"v_add_u32 v{VMGR}, s{S_X2}, v{VL16}"]
    st += [I_wlg("mlr")]
    st += [f"v_max_f32 v{20+qb}, v{2*qb}, v{8+2*qb}" for qb in range(4)]
    for qb in range(4): st += [f"v_sub_f32 v{2*qb}, v{2*qb}, v{20+qb}", f"v_sub_f32 v{8+2*qb}, v{8+2*qb}, v{20+qb}"]
    for qb in range(4): st += [f"v_exp_f32 v{2*qb}, v{2*qb}", f"v_exp_f32 v{8+2*qb}, v{8+2*qb}"]
    st += [f"v_mul_f32 v{2*qb+1}, v{2*qb+1}, v{2*qb}" for qb in range(4)]
    st += [f"v_fma_f32 v{2*qb+1}, v{9+2*qb}, v{8+2*qb}, v{2*qb+1}" for qb in range(4)]
    st += [f"v_rcp_f32 v{2*qb+1}, v{2*qb+1}" for qb in range(4)]
    st += [f"v_mul_f32 v{SCL+qb}, v{2*qb}, v{2*qb+1}" for qb in range(4)]
    st += [f"v_mul_f32 v{SCP+qb}, v{8+2*qb}, v{2*qb+1}" for qb in range(4)]
    return st
assert ML % 1024 == 0
period(1, qk=False, pv=True, sm=False, dK=op_dma(1), dtag=("s3", 1), nobar=True,
       extra=[(stats_a(), 1, 27), (stats_b(), 29, 63)], midbar=7)
stamp()

gstamp()
a("s_nop 7"); a("s_nop 3")
a("s_barrier")
gstamp()
OFR = 32
TS = 96
TK = 160
def bsel(reg):
    if reg % 2 == 0: return vr(reg, 2), "op_sel_hi:[1,0]", "op_sel_hi:[1,0,1]"
    return vr(reg - 1, 2), "op_sel:[0,1]", "op_sel:[0,1,0]"
def merge_variant(c):
    send0 = 8 * (1 - c); keep0 = 8 * c
    for rho in range(2):
        blocks = [(dl, qb) for dl in range(4) for qb in range(4)]
        for k, (dl, qb) in enumerate(blocks):
            sb = ((send0 + 4*rho + dl) * 4 + qb) * 4
            lds(f"ds_write_b128 v{VMGW}, {ar(sb,4)} offset:{k*1024}")
            kb_ = ((keep0 + 4*rho + dl) * 4 + qb) * 4
            t = TS + 4 * k
            for r in range(4): a(f"v_accvgpr_read_b32 v{t+r}, a{kb_+r}")
            pr, s2, s3 = bsel(SCL + qb)
            for r in (0, 2): a(f"v_pk_mul_f32 {vr(t+r,2)}, {vr(t+r,2)}, {pr} {s2}")
        if c == 0: gstamp()
        lg.wait_all()
        a("s_barrier")
        if c == 0: gstamp()
        for k in range(16): lds(f"ds_read_b128 {vr(TK+4*k,4)}, v{VMGR} offset:{k*1024}", ("mr", k // 2))
        for k2 in range(8):
            lg.wait(("mr", k2))
            for k in (2*k2, 2*k2+1):
                dl, qb = blocks[k]
                t = TS + 4 * k; u = TK + 4 * k
                pr, s2, s3 = bsel(SCP + qb)
                for r in (0, 2): a(f"v_pk_fma_f32 {vr(t+r,2)}, {vr(u+r,2)}, {pr}, {vr(t+r,2)} {s3}")
            for k in (2*k2, 2*k2+1):
                dl, qb = blocks[k]
                t = TS + 4 * k
                d = 4 * rho + dl
                o = OFR + ((d // 2) * 4 + qb) * 4 + (d % 2) * 2
                a(f"v_cvt_pk_bf16_f32 v{o}, v{t}, v{t+1}"); a(f"v_cvt_pk_bf16_f32 v{o+1}, v{t+2}, v{t+3}")
        if c == 0: gstamp()
        a("s_barrier")
sv = list(lg.ops)
a(f"s_cmp_eq_u32 s{S_C}, 0")
a("s_cbranch_scc0 L_mv1")
merge_variant(0)
a("s_branch L_mvd")
a.label("L_mv1")
lg.ops = list(sv)
merge_variant(1)
a.label("L_mvd")
for f in range(16): lds(f"ds_write_b128 v{VMGW}, {vr(OFR+4*f,4)} offset:{f*1024}")
a(f"v_add_u32 v{VL16}, {2*PS}, v{VL16}")
rowp_cc()
a(f"v_lshl_add_u32 v{V_AA[0]}, v{V_CC}, 3, v{V_ROWP}")
a(f"s_mul_i32 s{S_TMP}, s{S_A}, {BLK}"); a(f"s_mul_i32 s{S_TMP+1}, s{S_C}, 224"); a(f"s_add_u32 s{S_TMP}, s{S_TMP}, s{S_TMP+1}")
a(f"v_add_u32 v{V_AA[0]}, s{S_TMP}, v{V_AA[0]}")
a(f"v_add_u32 v{V_AA[1]}, {2*PS}, v{V_AA[0]}")
lg.wait_all()
gstamp()
a("s_barrier")
gstamp()
for f in range(64):
    lds(f"ds_read_b128 {ar(4*f,4)}, v{VL16} offset:{f*1024}")
    if f % 12 == 11: a("s_waitcnt lgkmcnt(4)"); lg.ops = lg.ops[-4:]
lg.wait_all()
vm.wait(("s3", 1))
a("s_barrier")
dump_regs("o", "a", 0, 256)
stamp(OPT["fine"] == 2)
emit_units(op_dma(2), ("s3", 2))
emit_units(op_dma(3), ("s3", 3))

ofrag = lambda ks, qb: ar((ks * 4 + qb) * 4, 4)
OA = 0
opacc = lambda nb, qb: vr(OA + (nb * 4 + qb) * 4, 4)
op = gemm_groups("OP", 16, 0, opacc, ofrag, RING_V, V_AA, "s3", first_top=False)
opgaps = prep_groups(op)
gemm_dma(op, opgaps, op_dma, "s3", skip=(3,))
emit_groups(op)
stamp()
a("s_nop 7"); a("s_nop 1")
for x in store_stream(OA, False, SP_OFF, "sp", S_X1) + store_body(OA, False, "sp", S_X1, V_F, V_T, ["", " sc1", " nt", " sc0 sc1"][OPT["spf"]]): do(x)
stamp()
if OPT["stamps"]:
    a("s_waitcnt vmcnt(0) lgkmcnt(0)")
    stamp()
    a("s_waitcnt lgkmcnt(0)")
    a(f"s_cmp_lg_u32 s{S_W}, 0"); a("s_cbranch_scc1 L_end")
    a(f"s_lshl_b32 s{S_TMP}, s2, 7"); a(f"s_add_u32 s{S_TMP}, s{S_TMP}, {STAMP_OFF}")
    a("v_mov_b32 v20, 0")
    a("v_mov_b32 v0, s98")
    for i in range(15): a(f"v_mov_b32 v{i+1}, s{S_ST+2*min(i, nstamp[0]-1)}")
    for q in range(4): a(f"buffer_store_dwordx4 {vr(4*q,4)}, v20, s[{S_WS}:{S_WS+3}], s{S_TMP} offen offset:{16*q}")
a.label("L_end")
a("s_endpgm")
for p, lab in slow:
    a.label(f"L_slow{lab}")
    rescale(p, False)
    a(f"s_branch L_ret{lab}")
main_text = a.text()

a = Asm()
a("s_cmp_ge_u32 s2, 448")
a("s_cbranch_scc1 LF_end")
a("s_load_dwordx2 s[4:5], s[0:1], 96")
a("s_load_dwordx2 s[6:7], s[0:1], 0")
a("s_load_dwordx4 s[24:27], s[0:1], 72")
a("s_lshl_b32 s3, s2, 8")
a("v_add_u32 v1, s3, v0")
a("v_lshlrev_b32 v2, 4, v1")
a("s_waitcnt lgkmcnt(0)")
srd(8, 4, 5, 0x4000000)
srd(12, 6, 7, 1835008)
srd(16, 24, 25, 896)
srd(20, 26, 27, 1835008)
JS = 32 * PART
for j in range(8):
    a(f"s_mov_b32 s28, {SP_OFF + j*JS}")
    a(f"buffer_load_dwordx4 {vr(16+4*j,4)}, v2, s[8:11], s28 offen")
for j in range(8):
    a(f"s_mov_b32 s28, {MP_OFF + j*JS}")
    a(f"buffer_load_dwordx4 {vr(48+4*j,4)}, v2, s[8:11], s28 offen")
a("v_lshrrev_b32 v3, 6, v1")
a("s_nop 0")
a("v_readfirstlane_b32 s29, v3")
a("s_mul_hi_u32 s30, s29, 0x12492493")
a("s_mul_i32 s31, s30, 14"); a("s_sub_u32 s31, s29, s31")
a("s_lshr_b32 s32, s30, 2")
a("s_and_b32 s33, s30, 3")
a("s_lshr_b32 s34, s31, 1")
a("s_and_b32 s35, s31, 1")
a("s_lshl_b32 s36, s32, 6"); a("s_lshl_b32 s37, s35, 5"); a("s_add_u32 s36, s36, s37")
a("s_mul_i32 s36, s36, 896")
a("s_mul_i32 s37, s33, 112"); a("s_lshl_b32 s38, s34, 4"); a("s_add_u32 s37, s37, s38"); a("s_lshl_b32 s37, s37, 1")
a("v_and_b32 v4, 15, v0"); a("v_bfe_u32 v5, v0, 4, 2")
a("v_mul_u32_u24 v6, 896, v4"); a("v_lshl_add_u32 v6, v5, 3, v6")
a("s_add_u32 s39, s36, s37")
a("v_add_u32 v6, s39, v6")
a("v_lshlrev_b32 v7, 3, v5"); a("v_add_u32 v7, s37, v7")
a("buffer_load_dwordx2 v[8:9], v6, s[12:15], 0 offen")
a("s_mov_b32 s28, 14336")
a("buffer_load_dwordx2 v[10:11], v6, s[12:15], s28 offen")
a("buffer_load_dwordx2 v[12:13], v7, s[16:19], 0 offen")
def unpack_add(dst, src, first):
    for i in range(4):
        if first:
            a(f"v_lshlrev_b32 v{dst+2*i}, 16, v{src+i}"); a(f"v_and_b32 v{dst+2*i+1}, 0xffff0000, v{src+i}")
        else:
            a(f"v_lshlrev_b32 v96, 16, v{src+i}"); a(f"v_and_b32 v97, 0xffff0000, v{src+i}")
            a(f"v_add_f32 v{dst+2*i}, v{dst+2*i}, v96"); a(f"v_add_f32 v{dst+2*i+1}, v{dst+2*i+1}, v97")
for j in range(8):
    a(f"s_waitcnt vmcnt({7 - j + 8 + 3})")
    unpack_add(80, 16 + 4*j, j == 0)
for j in range(8):
    a(f"s_waitcnt vmcnt({7 - j + 3})")
    unpack_add(88, 48 + 4*j, j == 0)
a("s_waitcnt vmcnt(0)")
a("v_lshlrev_b32 v100, 16, v12"); a("v_and_b32 v101, 0xffff0000, v12"); a("v_lshlrev_b32 v102, 16, v13"); a("v_and_b32 v103, 0xffff0000, v13")
for hh in range(2):
    for i in range(2):
        a(f"v_lshlrev_b32 v{104+4*hh+2*i}, 16, v{8+2*hh+i}"); a(f"v_and_b32 v{105+4*hh+2*i}, 0xffff0000, v{8+2*hh+i}")
a(f"s_mov_b32 s28, {f32(-math.log2(math.e))}")
for e in range(8): a(f"v_add_f32 v{88+e}, v{88+e}, v{100+e%4}")
for e in range(8): a(f"v_mul_f32 v{112+e}, s28, v{88+e}")
for e in range(8): a(f"v_exp_f32 v{112+e}, v{112+e}")
for e in range(8): a(f"v_add_f32 v{112+e}, 1.0, v{112+e}")
for e in range(8): a(f"v_rcp_f32 v{112+e}, v{112+e}")
for e in range(8): a(f"v_mul_f32 v{112+e}, v{112+e}, v{88+e}")
for e in range(8): a(f"v_fma_f32 v{112+e}, v{112+e}, v{80+e}, v{104+e}")
for hh in range(2):
    a(f"v_cvt_pk_bf16_f32 v{120+2*hh}, v{112+4*hh}, v{113+4*hh}"); a(f"v_cvt_pk_bf16_f32 v{121+2*hh}, v{114+4*hh}, v{115+4*hh}")
a("buffer_store_dwordx2 v[120:121], v6, s[20:23], 0 offen")
a("s_mov_b32 s28, 14336")
a("buffer_store_dwordx2 v[122:123], v6, s[20:23], s28 offen")
a.label("LF_end")
a("s_endpgm")
fin_text = a.text()

src = HEADER_COMMENT
src += f"; @launch kernel={KMAIN} grid=(256,1,1) block=(256,1,1) lds={LDS_TOTAL}\n"
src += f"; @launch kernel={KFIN} grid=(448,1,1) block=(256,1,1) lds=0\n"
src += '.amdgcn_target "amdgcn-amd-amdhsa--gfx950"\n.text\n'
src += kernel_begin(KMAIN) + main_text + kernel_begin(KFIN) + fin_text
src += kernel_desc(KMAIN, 512, 102, 256).replace(".text\n", "") + kernel_desc(KFIN, 128, 48, 128)
open(sys.argv[1], "w").write(src)
```

```python
import sys, math, struct
from asmlib import Asm, NAME, HEADER_COMMENT, kernel_begin, kernel_desc, vr, ar

OPT = dict(slp=4, polls=64, noearly=0, xdma=0, swave=0, fine=0, cpf=0, tlbw=0, pfpos=3, gcap=12, tt=1, xs=1, mpf=1, spf=1, x_nodma=0, x_nobar=0, x_nosm=0, x_nopf=0, x_nolg0=0, d0=2, sm1a=68, smend=123, W=2, dstep=4, pfd=6, qlsc=0, kvpf=3, gelu_end=11, gran=128, stamps=0, prefetch=1, thr=0x4f800000, dump="", sm0a=36, sm0b=76, sm1b=120, kstep=6, vstep=3)
for x in sys.argv[2:]:
    k, v = x.split("=")
    OPT[k] = int(v, 0) if k != "dump" else v

def f32(x):
    return "0x%08x" % struct.unpack("<I", struct.pack("<f", x))[0]

UNIT = 1056; BLK = 16 * UNIT; PS = 2 * BLK
XREG = 4 * PS
LDS_TOTAL = 163840
STATS = XREG
HL = XREG
ML = XREG
SP_OFF = 0
MP_OFF = 0x1000000
QX_OFF = 0x1E00000
QX_OFF = 0x2000000
FLG_OFF = 0x2000000
PART = 57344
DUMP_OFF = 0x3000000
STAMP_OFF = 0x7000000
WS_SIZE = 0x8000000

S_W = 3; S_WSP = 4
S_K, S_V, S_X, S_WQ, S_WO, S_W1, S_W2, S_WS, S_B1 = 8, 12, 16, 20, 24, 28, 32, 36, 40
S_J, S_T = 44, 45
S_LDSW = 46; S_GKV = 47
S_KOFF, S_VOFF = 48, 49
S_SO = 50; S_CNT = 51; S_THR = 52
S_A, S_C = 53, 54
S_TMP = 55
S_BG1, S_BQP, S_BG2, S_BOP = 60, 61, 62, 63
S_M0 = 64
S_ST = 68
S_X1 = 100; S_X2 = 101
S_NONCE = 59

V_Q = 0; V_S = 128; V_P = 160; V_NEG = 192; V_F = 208; V_SC = 224; V_T = 232; V_L = 240
V_KA2 = 246 + 0
V_KA2 = 224
V_KA = 248; V_VA = 249; V_DO = 250; V_LANE = 251
V_AA = [252, 253]; V_DW1 = 254; V_DWQ = 255; V_DWW = 247
V_B4 = 240
V_ROWP, V_CC = 244, 245
A_PF = 255
A_BIAS = 224

a = Asm()

class Tracker:
    def __init__(self, name, maxc): self.ops = []; self.name = name; self.maxc = maxc
    def issue(self, tag): self.ops.append(tag)
    def count(self, tag):
        idx = max([i for i, t in enumerate(self.ops) if t == tag], default=None)
        return None if idx is None else len(self.ops) - 1 - idx
    def wait(self, tag):
        n = self.count(tag)
        if n is None: return
        a(f"s_waitcnt {self.name}({min(n, self.maxc)})")
        n = min(n, self.maxc)
        self.ops = self.ops[len(self.ops) - n:] if n > 0 else []
    def wait_all(self):
        a(f"s_waitcnt {self.name}(0)"); self.ops = []
vm = Tracker("vmcnt", 63)
lg = Tracker("lgkmcnt", 15)
def vmem(ins, tag): a(ins); vm.issue(tag)
def lds(ins, tag="x"): a(ins); lg.issue(tag)

class It:
    def __init__(self, cost, fn, kind="m"): self.cost = cost; self.fn = fn; self.kind = kind
def kind_of(x):
    if isinstance(x, It): return x.kind
    op = x.split()[0]
    if op.startswith("s_"): return "s"
    if op.startswith(("ds_", "buffer_", "global_")): return "m"
    return "v"
def cost(x):
    if isinstance(x, It): return x.cost
    op = x.split()[0]
    if op.startswith("s_"): return 0
    if op.startswith(("v_exp", "v_log", "v_rcp", "v_rsq", "v_sqrt")): return 8
    if op.startswith("buffer_"): return 8
    return 4
def do(x):
    if isinstance(x, It): x.fn()
    elif callable(x): x()
    else: a(x)
def I_vm(ins, tag): return It(8, lambda: vmem(ins, tag), "m")
def I_lds(ins, tag="x"): return It(8 if "write" in ins else 4, lambda: lds(ins, tag), "m")
def I_wvm(tag): return It(0, lambda: vm.wait(tag), "s")
def I_wlg(tag): return It(0, lambda: lg.wait(tag), "s")

class Gap:
    def __init__(self): self.s = []; self.m = []; self.v = []; self.cap = 8
    def add(self, x, force=False):
        k = kind_of(x); c = cost(x)
        if k == "s":
            if self.v: self.v.append(x)
            elif self.m and getattr(self, "strict", False): self.m.append(x)
            else: self.s.append(x)
        elif k == "m":
            if self.v: self.v.append(x)
            else: self.m.append(x)
        else: self.v.append(x)
        self.cap -= c
    def items(self): return self.s + self.m + self.v

def place_stream(gaps, stream, first, last):
    idxs = list(range(first, last + 1))
    free = sum(max(gaps[g].cap, 0) for g in idxs)
    need = sum(cost(x) for x in stream)
    ratio = min(1.0, need / max(free, 1))
    k = 0; used = 0.0; budget = 0.0
    for j, g in enumerate(idxs):
        G = gaps[g]; G.strict = True
        budget += max(G.cap, 0) * ratio + 1e-9
        lastg = j == len(idxs) - 1
        while k < len(stream):
            x = stream[k]; c = cost(x)
            if lastg or c == 0 or (c <= G.cap and used + c <= budget + 4):
                if kind_of(x) == "m" and G.v and not lastg: break
                G.add(x); used += c; k += 1
            else: break
    assert k == len(stream), (k, len(stream))

KMAIN = "fused_main_kernel"; KFIN = "fused_final_kernel"
nstamp = [0]
def fstamp():
    if OPT["fine"] == 1: stamp(True)
def gstamp():
    if OPT["fine"] == 2: stamp(True)
def hstamp():
    if OPT["fine"] == 3: stamp(True)
def stamp(force=False):
    if not OPT["stamps"]: return
    if OPT["fine"] == 1 and not force and nstamp[0] >= 3: return
    if OPT["fine"] == 1 and force and nstamp[0] >= 15: return
    if OPT["fine"] in (2, 3) and not force: return
    i = nstamp[0]; nstamp[0] += 1
    assert i < 12, i
    a(f"s_memtime s[{S_ST+2*i}:{S_ST+2*i+1}]")
def srd(base, lo, hi, size):
    a(f"s_mov_b32 s{base}, s{lo}"); a(f"s_mov_b32 s{base+1}, s{hi}")
    a(f"s_mov_b32 s{base+2}, {size}"); a(f"s_mov_b32 s{base+3}, 0x20000")
def reg(spec, off, n):
    kind, base = spec
    return (vr if kind == "v" else ar)(base + off, n)

def dma_stage(kind, s, ps):
    out = []
    if kind in ("G1", "QP"):
        rs = 3584 if kind == "G1" else 8192
        sr_ = S_W1 if kind == "G1" else S_WQ
        base = S_BG1 if kind == "G1" else S_BQP
        vo = V_DW1 if kind == "G1" else V_DWQ
        for k in range(8):
            rho = 8 * (k >> 2) + (k & 3)
            rows = (64 * s if kind == "G1" else 32 * s) + rho
            out.append(([f"s_add_u32 s{S_SO}, s{base}, {rows * rs}", f"s_add_u32 m0, s{S_M0+ps}, {k*UNIT}"],
                        f"buffer_load_dwordx4 v{vo}, s[{sr_}:{sr_+3}], s{S_SO} offen lds"))
    else:
        sr_ = S_W2 if kind == "G2" else S_WO
        base = S_BG2 if kind == "G2" else S_BOP
        for k in range(8):
            sal = []
            if k % 4 == 0: sal.append(f"s_add_u32 s{S_SO}, s{base}, {(32 * s + k) * 896}")
            sal.append(f"s_add_u32 m0, s{S_M0+ps}, {k*UNIT - 896*(k%4)}")
            out.append((sal, f"buffer_load_dwordx4 v{V_DWW}, s[{sr_}:{sr_+3}], s{S_SO} offen offset:{896*(k%4)} lds"))
    return out
def dma_kv(which, ps):
    sr_ = S_K if which == "K" else S_V
    so = S_KOFF if which == "K" else S_VOFF
    out = []
    for k in range(8):
        sal = [f"s_add_u32 s{so}, s{so}, 0x8000", f"s_mov_b32 m0, s{S_M0+ps}"] if k == 0 else ["s_add_u32 m0, m0, 544"]
        out.append((sal, f"buffer_load_dwordx4 v{V_DO}, s[{sr_}:{sr_+3}], s{so} offen offset:{512*k} lds"))
    return out
def emit_units(units, tag):
    for sal, d in units:
        for x in sal: a(x)
        a("s_nop 0")
        vmem(d, tag)
def stage_dma(gs):
    if gs < 7: return dma_stage("G1", gs, gs % 4)
    if gs < 21: return dma_stage("QP", gs - 7, gs % 4)
    if gs < 28: return dma_stage("G2", gs - 21, gs % 4)
    if gs == 28: return dma_kv("K", 0)
    if gs == 29: return dma_kv("K", 1)
    if gs == 30: return dma_kv("V", 2)
    return None

LA = 3; R = 4
gctr = [0]
def read_sched(groups, post, delay, pre_issued):
    n = len(groups); post = post or []; delay = delay or {}
    sched = {}
    for i in range(pre_issued, n + LA):
        G = delay.get(i, i - LA)
        rs = groups[i]["reads"] if i < n else (post[i - n][0] if i - n < len(post) else [])
        for k in range(len(rs)): sched.setdefault(G, []).append((i, k))
    return sched
def rgap(g, j):
    if g.get("stage") is not None and OPT["tt"]: return min(j // 2, 3)
    return min(j, 3)
def prep_groups(groups, pre_issued=0, post=None, delay=None):
    sched = read_sched(groups, post, delay, pre_issued)
    for G, g in enumerate(groups):
        g["gaps"] = [Gap() for _ in range(4)]
        if g.get("stage") is not None:
            for gp in g["gaps"]: gp.cap = OPT["gcap"]
        for q, _ in enumerate(sched.get(G, [])): g["gaps"][rgap(g, q)].cap -= 4
    return [gp for g in groups for gp in g["gaps"]]
def emit_groups(groups, pre_issued=0, post=None, delay=None, W=None):
    n = len(groups)
    post = post or []
    W = W or OPT["W"]
    G0 = gctr[0]
    def info(i):
        if i < n: return groups[i]["reads"], groups[i]["ring"]
        return post[i - n] if i - n < len(post) else ([], None)
    def fmt(x, i, ring):
        o = 4 * ((G0 + i) % R)
        return x.format(r=reg(ring, o, 4), r0=reg(ring, o, 2), r1=reg(ring, o + 2, 2), A=reg(ring, o, 4))
    sched = read_sched(groups, post, delay, pre_issued)
    def issue(i, k):
        rs, ring = info(i)
        lds(fmt(rs[k], i, ring), ("f", G0 + i))
    for G in sorted(g for g in sched if g < 0):
        for (i, k) in sched[G]: issue(i, k)
    for i, g in enumerate(groups):
        for x in g.get("top", []): do(x)
        if W == 2 and (G0 + i) % 2 == 0 and i + 1 < n and lg.count(("f", G0 + i + 1)) is not None and not groups[i + 1].get("top"):
            lg.wait(("f", G0 + i + 1))
        lg.wait(("f", G0 + i))
        rl = sched.get(i, [])
        for q, m in enumerate(g["mf"]):
            a(fmt(m, i, g["ring"]))
            gp = g["gaps"][q]
            for x in gp.s: do(x)
            for j, (ii, k) in enumerate(rl):
                if rgap(g, j) == q: issue(ii, k)
            for x in gp.m + gp.v: do(x)
    gctr[0] += n

def place_units(gaps, pos, units, tag, step):
    for sal, d in units:
        while gaps[pos].cap < 8: pos += 1
        tgt = gaps[pos - 1]
        assert not tgt.v
        for x in sal: (tgt.m if tgt.m else tgt.s).append(x)
        gaps[pos].add(I_vm(d, tag) if tag is not None else d)
        pos += step
def trd(aa, off):
    return [f"ds_read_b64_tr_b16 {{r0}}, v{aa} offset:{off}", f"ds_read_b64_tr_b16 {{r1}}, v{aa} offset:{off+512}"]
def mf16(d, b, c): return f"v_mfma_f32_16x16x32_bf16 {d}, {{A}}, {b}, {c}"

def gemm_groups(kind, nstage, gs0, accf, bf, ring, aa, tagp, first_top=True):
    groups = []
    for s in range(nstage):
        gs = gs0 + s; ps = gs % 4
        av = aa[ps // 2]; pso = (ps % 2) * PS
        first = len(groups)
        if kind == "G1": items = [(pso + blk * BLK + fb * 32, fb, 2 * s + blk) for blk in range(2) for fb in range(4)]
        elif kind == "QP": items = [(pso + (db // 2) * 64 + (db % 2) * 8, db, s) for db in range(8)]
        else: items = [(pso + nb * 32, nb, s) for nb in range(7)]
        for off, blk, ks in items:
            groups.append(dict(reads=trd(av, off), ring=ring, stage=gs, first=(len(groups) == first),
                               mf=[mf16(accf(blk, qb), bf(ks, qb), accf(blk, qb) if ks > 0 else "0") for qb in range(4)], top=[]))
        if s > 0 or first_top:
            groups[first]["top"] = [lambda gs=gs: vm.wait((tagp, gs + 1)), "s_barrier"]
    return groups
def gemm_dma(groups, gaps, dmaf, tagp, skip=()):
    for G, g in enumerate(groups):
        if g.get("first"):
            gs = g["stage"]
            if (gs + 3) in skip: continue
            units = dmaf(gs + 3)
            if not units: continue
            ng = sum(1 for x in groups if x["stage"] == gs)
            dq = 1 if OPT["tt"] else 2
            pos = [4 * (G + i) + dq for i in range(ng)]
            if ng < len(units): pos = sorted(pos + [4 * (G + 3) + dq + 1])
            for u, p_ in zip(units, pos): place_units(gaps, p_, [u], (tagp, gs + 3), 1)

def xlane(op, v, t):
    for sw in ("v_permlane16_swap_b32", "v_permlane32_swap_b32"):
        a(f"v_mov_b32 v{t}, v{v}"); a("s_nop 1")
        a(f"{sw} v{v}, v{t}"); a("s_nop 1")
        a(f"{op} v{v}, v{v}, v{t}")
def xlane4(op, vs, ts):
    for sw in ("v_permlane16_swap_b32", "v_permlane32_swap_b32"):
        for v, t in zip(vs, ts): a(f"v_mov_b32 v{t}, v{v}")
        for v, t in zip(vs, ts): a(f"{sw} v{v}, v{t}")
        for v, t in zip(vs, ts): a(f"{op} v{v}, v{v}, v{t}")
def round_bf16(v, t):
    a(f"v_cvt_pk_bf16_f32 v{t}, v{v}, v{v}")
    a(f"v_lshlrev_b32 v{v}, 16, v{t}")

def dump_regs(name, kind, base, n):
    if OPT["dump"] != name: return
    a("s_nop 7"); a("s_nop 7"); a("s_waitcnt vmcnt(0) lgkmcnt(0)")
    a(f"s_lshl_b32 s{S_TMP}, s2, 2"); a(f"s_add_u32 s{S_TMP}, s{S_TMP}, s{S_W}")
    a(f"s_mul_i32 s{S_TMP}, s{S_TMP}, {n*256}")
    a(f"s_add_u32 s{S_TMP}, s{S_TMP}, {DUMP_OFF}")
    a(f"v_lshlrev_b32 v{V_T+7}, 2, v{V_LANE}")
    for i in range(n):
        if kind == "a":
            a(f"v_accvgpr_read_b32 v{V_T+6}, a{base+i}"); src = V_T + 6
        else: src = base + i
        a(f"buffer_store_dword v{src}, v{V_T+7}, s[{S_WS}:{S_WS+3}], s{S_TMP} offen")
        a(f"s_add_u32 s{S_TMP}, s{S_TMP}, 256")
        if kind == "a": a("s_waitcnt vmcnt(0)")
    a("s_waitcnt vmcnt(0)")
    a("s_endpgm")

a("s_cmp_ge_u32 s2, 256")
a("s_cbranch_scc1 L_end")
if OPT["stamps"]: a("s_memtime s[98:99]")
a("s_load_dwordx16 s[68:83], s[0:1], 0")
if OPT["cpf"]:
    a("s_getpc_b64 s[6:7]")
    a("s_lshr_b32 s3, s2, 3"); a("s_lshl_b32 s3, s3, 11")
    a("v_lshrrev_b32 v1, 6, v0"); a("v_lshlrev_b32 v1, 9, v1")
    a("v_and_b32 v2, 3, v0"); a("v_lshl_add_u32 v1, v2, 7, v1")
    a("v_add_u32 v1, s3, v1")
    a(f"global_load_dword a{A_PF}, v1, s[6:7]")
    vm.issue("cpf")
a("s_load_dwordx2 s[84:85], s[0:1], 64")
a("s_load_dwordx2 s[4:5], s[0:1], 96")
a("s_load_dwordx4 s[92:95], s[0:1], 72")
a("s_load_dwordx2 s[96:97], s[0:1], 88")
a(f"v_lshrrev_b32 v{V_T}, 6, v0")
a(f"v_and_b32 v{V_LANE}, 63, v0")
a(f"v_readfirstlane_b32 s{S_W}, v{V_T}")
a(f"s_and_b32 s{S_J}, s2, 7")
a(f"s_lshr_b32 s{S_T}, s2, 3")
VQ_, VG_ = V_T + 1, V_T + 2
a(f"v_and_b32 v{VQ_}, 15, v{V_LANE}")
a(f"v_lshrrev_b32 v{VG_}, 4, v{V_LANE}")
a(f"v_mul_u32_u24 v{V_T+3}, 896, v{VQ_}")
a(f"v_lshl_add_u32 v{V_T+3}, v{VG_}, 4, v{V_T+3}")
a(f"s_lshl_b32 s{S_TMP}, s{S_T}, 6"); a(f"s_lshl_b32 s{S_TMP+1}, s{S_W}, 4"); a(f"s_add_u32 s{S_TMP}, s{S_TMP}, s{S_TMP+1}")
a(f"s_mul_i32 s{S_TMP}, s{S_TMP}, 896")
a(f"s_mov_b32 s{S_X+2}, 1835008"); a(f"s_mov_b32 s{S_X+3}, 0x20000")
a("s_waitcnt lgkmcnt(0)")
PX, PK, PV_, PWQ, PWO, PW1, PB1, PW2 = 68, 70, 72, 74, 76, 80, 82, 84
a(f"s_mov_b32 s{S_X}, s{PX}"); a(f"s_mov_b32 s{S_X+1}, s{PX+1}")
if OPT["tlbw"]:
    a(f"s_lshl_b32 s{S_X1}, s{S_T}, 2"); a(f"s_add_u32 s{S_X1}, s{S_X1}, s{S_W}"); a(f"s_and_b32 s{S_X1}, s{S_X1}, 15")
    a("v_mov_b32 v1, 0")
    pages = [(PX, None, 0), (PW1, None, 0), (PB1, None, 0), (PWQ, None, 0), (PWQ, None, 224 * 8192), (PWQ, None, 447 * 8192),
             (PW2, 200704, 0), (PK, 1 << 20, 0), (PV_, 1 << 20, 0), (PWO, 458752, 0), (S_WSP, 32 * PART, MP_OFF), (S_WSP, 32 * PART, SP_OFF),
             (S_WSP, 32 * PART, MP_OFF + 31 * PART), (S_WSP, 32 * PART, SP_OFF + 31 * PART), (PW1, None, 447 * 3584), (PX, None, 1835008 - 64)]
    for k, (ptr, jmul, off) in enumerate(pages):
        a(f"s_cmp_eq_u32 s{S_X1}, {k}")
        a(f"s_cbranch_scc0 L_tw{k}")
        if jmul:
            a(f"s_mul_i32 s{S_X2}, s{S_J}, {jmul}"); a(f"s_add_u32 s{S_X2}, s{S_X2}, {off}")
        else:
            a(f"s_mov_b32 s{S_X2}, {off}")
        a(f"s_add_u32 s6, s{ptr}, s{S_X2}"); a(f"s_addc_u32 s7, s{ptr+1}, 0")
        a(f"global_load_dword a{A_PF}, v1, s[6:7]")
        a.label(f"L_tw{k}")
    vm.issue("tw")
XR = 0
if OPT["xdma"]:
    a(f"s_lshl_b32 s{S_TMP+1}, s{S_W}, 10"); a(f"s_add_u32 s{S_TMP+1}, s{S_TMP+1}, {2*PS}")
    for ks in range(14):
        a(f"s_add_u32 m0, s{S_TMP+1}, {ks*4096 - 64*ks}")
        a("s_nop 0")
        vmem(f"buffer_load_dwordx4 v{V_T+3}, s[{S_X}:{S_X+3}], s{S_TMP} offen offset:{64*ks} lds", "x")
else:
    for ks in range(14):
        vmem(f"buffer_load_dwordx4 {vr(XR+4*ks,4)}, v{V_T+3}, s[{S_X}:{S_X+3}], s{S_TMP} offen offset:{64*ks}", "x")
a(f"s_cmp_lg_u32 s{S_W}, 0"); a("s_cbranch_scc1 L_nonce")
a("s_memrealtime s[6:7]")
a(f"s_mov_b32 s{S_B1}, s96"); a(f"s_mov_b32 s{S_B1+1}, s97"); a(f"s_mov_b32 s{S_B1+2}, 256"); a(f"s_mov_b32 s{S_B1+3}, 0x20000")
a(f"s_lshl_b32 s{S_X1}, s{S_T}, 2"); a(f"s_add_u32 s{S_X1}, s{S_X1}, 128")
a("s_waitcnt lgkmcnt(0)")
a(f"s_or_b32 s{S_NONCE}, s6, 1")
a("s_mov_b64 exec, 1")
a(f"v_mov_b32 v96, s{S_NONCE}"); a("v_mov_b32 v97, 0"); a("v_mov_b32 v98, 0")
a(f"buffer_atomic_cmpswap v[96:97], v98, s[{S_B1}:{S_B1+3}], s{S_X1} offen sc0")
a("s_mov_b64 exec, -1")
a.label("L_nonce")
a(f"s_lshl_b32 s{S_TMP}, s{S_J}, 20")
a(f"s_add_u32 s{S_K}, s{PK}, s{S_TMP}"); a(f"s_addc_u32 s{S_K+1}, s{PK+1}, 0")
a(f"s_mov_b32 s{S_K+2}, 0x100000"); a(f"s_mov_b32 s{S_K+3}, 0x20000")
a(f"s_add_u32 s{S_V}, s{PV_}, s{S_TMP}"); a(f"s_addc_u32 s{S_V+1}, s{PV_+1}, 0")
a(f"s_mov_b32 s{S_V+2}, 0x100000"); a(f"s_mov_b32 s{S_V+3}, 0x20000")
srd(S_WQ, PWQ, PWQ+1, 3670016)
srd(S_WO, PWO, PWO+1, 3670016)
srd(S_W1, PW1, PW1+1, 1605632)
srd(S_W2, PW2, PW2+1, 1605632)
srd(S_WS, S_WSP, S_WSP+1, WS_SIZE)
srd(S_B1, PB1, PB1+1, 3584)
stamp()
a(f"s_lshr_b32 s{S_A}, s{S_W}, 1"); a(f"s_and_b32 s{S_C}, s{S_W}, 1")
a(f"s_mul_i32 s{S_TMP}, s{S_A}, {BLK}"); a(f"s_mul_i32 s{S_TMP+1}, s{S_C}, {8*UNIT}")
a(f"s_add_u32 s{S_LDSW}, s{S_TMP}, s{S_TMP+1}")
for i in range(4): a(f"s_add_u32 s{S_M0+i}, s{S_LDSW}, {i*PS}")
a(f"s_lshl_b32 s{S_TMP}, s{S_A}, 14"); a(f"s_lshl_b32 s{S_TMP+1}, s{S_C}, 12")
a(f"s_add_u32 s{S_GKV}, s{S_TMP}, s{S_TMP+1}")
a(f"s_sub_u32 s{S_KOFF}, s{S_GKV}, 0x8000"); a(f"s_sub_u32 s{S_VOFF}, s{S_GKV}, 0x8000")
a(f"s_lshl_b32 s{S_TMP}, s{S_A}, 5"); a(f"s_lshl_b32 s{S_TMP+1}, s{S_C}, 4"); a(f"s_add_u32 s{S_TMP}, s{S_TMP}, s{S_TMP+1}")
a(f"s_mul_i32 s{S_BG1}, s{S_TMP}, 3584"); a(f"s_mul_i32 s{S_TMP+1}, s{S_J}, 448"); a(f"s_add_u32 s{S_BG1}, s{S_BG1}, s{S_TMP+1}")
a(f"s_lshl_b32 s{S_TMP}, s{S_C}, 17")
a(f"s_lshl_b32 s{S_TMP+1}, s{S_J}, 10"); a(f"s_add_u32 s{S_TMP}, s{S_TMP}, s{S_TMP+1}")
a(f"s_lshl_b32 s{S_TMP+1}, s{S_A}, 9"); a(f"s_add_u32 s{S_BQP}, s{S_TMP}, s{S_TMP+1}")
a(f"s_mul_i32 s{S_TMP}, s{S_J}, 224"); a(f"s_lshl_b32 s{S_TMP+1}, s{S_C}, 3"); a(f"s_add_u32 s{S_TMP}, s{S_TMP}, s{S_TMP+1}")
a(f"s_mul_i32 s{S_BG2}, s{S_TMP}, 896"); a(f"s_mul_i32 s{S_TMP+2}, s{S_A}, 448"); a(f"s_add_u32 s{S_BG2}, s{S_BG2}, s{S_TMP+2}")
a(f"s_lshl_b32 s{S_TMP}, s{S_J}, 9"); a(f"s_add_u32 s{S_TMP}, s{S_TMP}, s{S_TMP+1}")
a(f"s_mul_i32 s{S_BOP}, s{S_TMP}, 896"); a(f"s_add_u32 s{S_BOP}, s{S_BOP}, s{S_TMP+2}")
a(f"s_mov_b32 s{S_THR}, {OPT['thr']}")
def dma_voffsets(which):
    a(f"v_lshrrev_b32 v{V_T+4}, 5, v{V_LANE}")
    a(f"v_and_b32 v{V_T+5}, 31, v{V_LANE}")
    a(f"v_lshlrev_b32 v{V_T+5}, 4, v{V_T+5}")
    if "1" in which:
        a(f"v_mul_u32_u24 v{V_DW1}, {4*3584}, v{V_T+4}"); a(f"v_add_u32 v{V_DW1}, v{V_DW1}, v{V_T+5}")
    if "q" in which: a(f"v_lshl_add_u32 v{V_DWQ}, v{V_T+4}, 15, v{V_T+5}")
    if "o" in which: a(f"v_lshl_add_u32 v{V_DO}, v{V_T+4}, 13, v{V_T+5}")
    if "w" in which:
        a(f"v_mul_u32_u24 v{V_DWW}, {16*896}, v{V_T+4}"); a(f"v_add_u32 v{V_DWW}, v{V_DWW}, v{V_T+5}")
        a(f"v_cmp_lt_u32 vcc, {27*16}, v{V_T+5}")
        a(f"v_mov_b32 v{V_T+6}, 0x40000000")
        a("s_nop 1")
        a(f"v_cndmask_b32 v{V_DWW}, v{V_DWW}, v{V_T+6}, vcc")
dma_voffsets("1qow")
if OPT["pfpos"] < 3:
    emit_units(stage_dma(0), ("st", 0))
    emit_units(stage_dma(1), ("st", 1))
def rowp_cc():
    a(f"v_bfe_u32 v{V_ROWP}, v{V_LANE}, 2, 2")
    a(f"v_lshrrev_b32 v{V_CC}, 4, v{V_LANE}")
    a(f"v_lshl_add_u32 v{V_ROWP}, v{V_CC}, 2, v{V_ROWP}")
    a(f"v_mul_u32_u24 v{V_ROWP}, {UNIT}, v{V_ROWP}")
    a(f"v_and_b32 v{V_CC}, 3, v{V_LANE}")
rowp_cc()

PFD = OPT["pfd"]
def prefetch(kind, gran):
    sh = 6 if gran == 64 else 7
    a(f"s_lshl_b32 s{S_TMP}, s{S_T}, 2"); a(f"s_add_u32 s{S_TMP}, s{S_TMP}, s{S_W}")
    T0, T1 = V_T + 4, V_T + 5
    def masked(n):
        if n < 64:
            a(f"v_cmp_lt_u32 vcc, {n-1}, v{V_LANE}")
            a(f"v_mov_b32 v{T1}, 0x40000000")
            a("s_nop 1")
            a(f"v_cndmask_b32 v{T0}, v{T0}, v{T1}, vcc")
    if kind in ("w1", "wq"):
        rowb = 512 if kind == "w1" else 1024
        rs = 3584 if kind == "w1" else 8192
        if kind == "w1": rowb, per_row = 640, 8
        per_row = 8 if kind == "w1" else rowb // gran
        step = 64 if kind == "w1" else gran
        n = 448 * per_row // 128
        a(f"s_mul_i32 s{S_TMP}, s{S_TMP}, {n}")
        a(f"v_add_u32 v{T0}, s{S_TMP}, v{V_LANE}")
        lgp = per_row.bit_length() - 1
        a(f"v_lshrrev_b32 v{T1}, {lgp}, v{T0}")
        a(f"v_and_b32 v{T0}, {per_row-1}, v{T0}")
        a(f"v_mul_u32_u24 v{T0}, {step}, v{T0}")
        a(f"s_mov_b32 s{S_TMP+1}, {rs}")
        a(f"v_mad_u32_u24 v{T0}, v{T1}, s{S_TMP+1}, v{T0}")
        masked(n)
        a(f"s_mul_i32 s{S_TMP+1}, s{S_J}, {448 if kind == 'w1' else 1024}")
        sr_ = S_W1 if kind == "w1" else S_WQ
        vmem(f"buffer_load_dword a{A_PF}, v{T0}, s[{sr_}:{sr_+3}], s{S_TMP+1} offen", "pf")
    else:
        size = {"w2": 200704, "wo": 458752, "k": 1 << 20, "v": 1 << 20, "k0": PFD * 32768, "v0": PFD * 32768}[kind]
        sr_ = {"w2": S_W2, "wo": S_WO, "k": S_K, "v": S_V, "k0": S_K, "v0": S_V}[kind]
        n = (size // gran + 127) // 128
        a(f"s_mul_i32 s{S_TMP}, s{S_TMP}, {n*gran}")
        if kind in ("w2", "wo"):
            a(f"s_mul_i32 s{S_TMP+1}, s{S_J}, {size}"); a(f"s_add_u32 s{S_TMP}, s{S_TMP}, s{S_TMP+1}")
        a(f"v_lshlrev_b32 v{T0}, {sh}, v{V_LANE}")
        masked(n)
        for i in range((n + 63) // 64):
            vmem(f"buffer_load_dword a{A_PF}, v{T0}, s[{sr_}:{sr_+3}], s{S_TMP} offen", "pf")
            if i + 1 < (n + 63) // 64: a(f"s_add_u32 s{S_TMP}, s{S_TMP}, {64*gran}")
GR = OPT["gran"]
def early_pf(which):
    if not OPT["prefetch"]: return
    for kind in which: prefetch(kind, GR)
if OPT["pfpos"] == 0:
    early_pf(("w1", "wq", "w2", "k0", "v0"))
if OPT["pfpos"] == 4: early_pf(("w1", "wq", "w2"))
if OPT["pfpos"] in (0, 1, 4):
    a(f"v_lshlrev_b32 v{V_T+6}, 3, v{VG_}")
    a(f"s_mul_i32 s{S_TMP}, s{S_J}, 448"); a(f"s_lshl_b32 s{S_TMP+1}, s{S_W}, 7"); a(f"s_add_u32 s{S_TMP}, s{S_TMP}, s{S_TMP+1}")
    for fb in range(4):
        vmem(f"buffer_load_dwordx2 {ar(A_BIAS+2*fb,2)}, v{V_T+6}, s[{S_B1}:{S_B1+3}], s{S_TMP} offen offset:{32*fb}", "b1")
if OPT["pfpos"] == 1: early_pf(("w1",))

vm.wait("x")
if OPT["xdma"]:
    a(f"v_lshlrev_b32 v{V_T+6}, 4, v{V_LANE}")
    a(f"s_lshl_b32 s{S_TMP}, s{S_W}, 10"); a(f"s_add_u32 s{S_TMP}, s{S_TMP}, {2*PS}")
    a(f"v_add_u32 v{V_T+6}, s{S_TMP}, v{V_T+6}")
    for ks in range(14): lds(f"ds_read_b128 {vr(XR+4*ks,4)}, v{V_T+6} offset:{ks*4096}", "xr")
    lg.wait_all()
stamp()
XF = 112
for i in range(56):
    a(f"v_lshlrev_b32 v{XF+2*i}, 16, v{XR+i}")
    a(f"v_and_b32 v{XF+2*i+1}, 0xffff0000, v{XR+i}")
ACC = 56
fstamp()
if OPT["pfpos"] in (3, 4): emit_units(stage_dma(0), ("st", 0))
fstamp()
for c in range(4): a(f"v_pk_add_f32 {vr(ACC+2*c,2)}, {vr(XF+4*c,2)}, {vr(XF+4*c+2,2)}")
for n_, i in enumerate(range(8, 56)):
    c = n_ % 4
    a(f"v_pk_add_f32 {vr(ACC+2*c,2)}, {vr(ACC+2*c,2)}, {vr(XF+2*i,2)}")
a(f"v_pk_add_f32 {vr(ACC,2)}, {vr(ACC,2)}, {vr(ACC+2,2)}")
a(f"v_pk_add_f32 {vr(ACC+4,2)}, {vr(ACC+4,2)}, {vr(ACC+6,2)}")
a(f"v_pk_add_f32 {vr(ACC,2)}, {vr(ACC,2)}, {vr(ACC+4,2)}")
a(f"v_add_f32 v{ACC}, v{ACC}, v{ACC+1}")
xlane("v_add_f32", ACC, ACC+1)
VMEAN, VMB = ACC + 2, ACC + 4
a(f"v_mul_f32 v{VMEAN}, {f32(1.0/448)}, v{ACC}")
a(f"v_mov_b32 v{VMB}, v{VMEAN}")
round_bf16(VMB, ACC+1)
a(f"v_mov_b32 v{VMB+1}, v{VMB}")
VAR = 64
XCL = 2 * PS
if OPT["pfpos"] == 1: early_pf(("wq", "w2"))
fstamp()
if OPT["pfpos"] in (3, 4): emit_units(stage_dma(1), ("st", 1))
fstamp()
if OPT["pfpos"] == 2:
    a(f"v_lshlrev_b32 v{V_T+4}, 3, v{VG_}")
    a(f"s_mul_i32 s{S_TMP}, s{S_J}, 448"); a(f"s_lshl_b32 s{S_TMP+1}, s{S_W}, 7"); a(f"s_add_u32 s{S_TMP}, s{S_TMP}, s{S_TMP+1}")
    for fb in range(4):
        vmem(f"buffer_load_dwordx2 {ar(A_BIAS+2*fb,2)}, v{V_T+4}, s[{S_B1}:{S_B1+3}], s{S_TMP} offen offset:{32*fb}", "b1")
    early_pf(("w1", "wq", "w2"))

a(f"v_lshlrev_b32 v{V_T+6}, 4, v{V_LANE}")
a(f"s_lshl_b32 s{S_TMP}, s{S_W}, 10"); a(f"s_add_u32 s{S_TMP}, s{S_TMP}, {XCL}")
a(f"v_add_u32 v{V_T+6}, s{S_TMP}, v{V_T+6}")
for ks in range(14):
    for i in range(4*ks, 4*ks+4):
        a(f"v_pk_add_f32 {vr(XF+2*i,2)}, {vr(XF+2*i,2)}, {vr(VMB,2)} neg_lo:[0,1] neg_hi:[0,1]")
    for i in range(4*ks, 4*ks+4):
        c = i % 4
        if i < 4: a(f"v_pk_mul_f32 {vr(VAR+2*c,2)}, {vr(XF+2*i,2)}, {vr(XF+2*i,2)}")
        else: a(f"v_pk_fma_f32 {vr(VAR+2*c,2)}, {vr(XF+2*i,2)}, {vr(XF+2*i,2)}, {vr(VAR+2*c,2)}")
if OPT["pfpos"] == 3:
    a(f"v_lshlrev_b32 v{V_T+4}, 3, v{VG_}")
    a(f"s_mul_i32 s{S_TMP}, s{S_J}, 448"); a(f"s_lshl_b32 s{S_TMP+1}, s{S_W}, 7"); a(f"s_add_u32 s{S_TMP}, s{S_TMP}, s{S_TMP+1}")
    for fb in range(4):
        vmem(f"buffer_load_dwordx2 {ar(A_BIAS+2*fb,2)}, v{V_T+4}, s[{S_B1}:{S_B1+3}], s{S_TMP} offen offset:{32*fb}", "b1")
    early_pf(("w1", "wq", "w2"))

fstamp()
a(f"v_pk_add_f32 {vr(VAR,2)}, {vr(VAR,2)}, {vr(VAR+2,2)}")
a(f"v_pk_add_f32 {vr(VAR+4,2)}, {vr(VAR+4,2)}, {vr(VAR+6,2)}")
a(f"v_pk_add_f32 {vr(VAR,2)}, {vr(VAR,2)}, {vr(VAR+4,2)}")
a(f"v_add_f32 v{VAR}, v{VAR}, v{VAR+1}")
xlane("v_add_f32", VAR, VAR+1)
a(f"v_sub_f32 v{VAR+2}, v{VMEAN}, v{VMB}")
a(f"v_mul_f32 v{VAR+2}, v{VAR+2}, v{VAR+2}")
a(f"v_mov_b32 v{VAR+3}, {f32(1.0/448)}")
a(f"v_fma_f32 v{VAR}, v{VAR}, v{VAR+3}, -v{VAR+2}")
a(f"v_max_f32 v{VAR}, 0, v{VAR}")
a(f"v_mov_b32 v{VAR+4}, v{VAR}")
round_bf16(VAR+4, VAR+1)
a(f"v_add_f32 v{VAR+4}, {f32(1e-5)}, v{VAR+4}")
round_bf16(VAR+4, VAR+1)
a(f"v_sqrt_f32 v{VAR+4}, v{VAR+4}"); a("s_nop 0")
round_bf16(VAR+4, VAR+1)
a(f"v_rcp_f32 v{VAR+5}, v{VAR+4}"); a("s_nop 0")
fstamp()
CQ = math.log2(math.e) / 16
a(f"v_mul_f32 v{VAR+2}, {f32(CQ)}, v{VAR+5}")
a(f"v_mov_b32 v{VAR+3}, v{VAR+2}")
for ks in range(14):
    for i in range(4*ks, 4*ks+4):
        a(f"v_pk_mul_f32 {vr(XF+2*i,2)}, {vr(XF+2*i,2)}, {vr(VAR+2,2)}")
    for i in range(4*ks, 4*ks+4):
        a(f"v_cvt_pk_bf16_f32 v{XR+i}, v{XF+2*i}, v{XF+2*i+1}")
    lds(f"ds_write_b128 v{V_T+6}, {vr(XR+4*ks,4)} offset:{ks*4096}")
a(f"v_mul_f32 v{VAR+6}, v{VAR+5}, v{VAR+5}")
a(f"v_mul_f32 v{VAR+6}, v{VAR+6}, v{VAR}")
round_bf16(VAR+6, VAR+7)
a(f"v_add_f32 v{VAR+6}, {f32(1e-5)}, v{VAR+6}")
round_bf16(VAR+6, VAR+7)
a(f"v_sqrt_f32 v{VAR+6}, v{VAR+6}"); a("s_nop 0")
round_bf16(VAR+6, VAR+7)
a(f"v_rcp_f32 v{VAR+6}, v{VAR+6}"); a("s_nop 0")
a(f"v_mul_f32 v{VAR+6}, {f32(1.0/CQ)}, v{VAR+6}")
a(f"s_lshl_b32 s{S_TMP}, s{S_W}, 6"); a(f"s_add_u32 s{S_TMP}, s{S_TMP}, {STATS}")
a(f"v_lshlrev_b32 v{V_T+5}, 2, v{VQ_}"); a(f"v_add_u32 v{V_T+5}, s{S_TMP}, v{V_T+5}")
lds(f"ds_write_b32 v{V_T+5}, v{VAR+6}")
a(f"v_lshlrev_b32 v{V_T+6}, 4, v{V_LANE}"); a(f"v_add_u32 v{V_T+6}, {XCL}, v{V_T+6}")
a(f"v_lshlrev_b32 v{V_T+7}, 2, v{VQ_}"); a(f"v_add_u32 v{V_T+7}, {STATS}, v{V_T+7}")
a(f"s_lshl_b32 s{S_TMP}, s{S_W}, 7")
a(f"v_lshl_add_u32 v{V_AA[0]}, v{V_CC}, 3, v{V_ROWP}")
a(f"v_add_u32 v{V_AA[0]}, s{S_TMP}, v{V_AA[0]}")
a(f"v_add_u32 v{V_AA[1]}, {2*PS}, v{V_AA[0]}")
a(f"s_cmp_lg_u32 s{S_W}, 0"); a("s_cbranch_scc1 L_nonce2")
a("s_waitcnt vmcnt(0)") if False else None
vm_n = vm.count(("st", 0))
a(f"s_waitcnt vmcnt({min(63, len(vm.ops) - [i for i, t in enumerate(vm.ops) if t == ('st', 0)][0])})")
a(f"v_readfirstlane_b32 s{S_TMP}, v96")
a(f"s_cmp_eq_u32 s{S_TMP}, 0"); a(f"s_cselect_b32 s{S_NONCE}, s{S_NONCE}, s{S_TMP}")
a(f"v_mov_b32 v97, s{S_NONCE}"); a(f"v_mov_b32 v98, {STATS + 512}")
a("ds_write_b32 v98, v97")
a.label("L_nonce2")
fstamp()
lg.wait_all()
a("s_barrier")
fstamp()
a(f"v_mov_b32 v98, {STATS + 512}")
lds("ds_read_b32 v97, v98", "nn")
for f in range(56):
    lds(f"ds_read_b128 {ar(4*f,4)}, v{V_T+6} offset:{f*1024}", "xc")
    if f % 12 == 11: a("s_waitcnt lgkmcnt(4)"); lg.ops = lg.ops[-4:]
for qb in range(4): lds(f"ds_read_b32 v{V_SC+2*qb+1}, v{V_T+7} offset:{qb*64}", "sc")
lg.wait_all()
a(f"v_readfirstlane_b32 s{S_NONCE}, v97")
fstamp()
vm.wait(("st", 1))
fstamp()
a("s_barrier")
dump_regs("xc", "a", 0, 224)
stamp(OPT["fine"] not in (2, 3))
emit_units(stage_dma(2), ("st", 2))
emit_units(stage_dma(3), ("st", 3))
if OPT["pfpos"] in (1, 2, 3, 4): early_pf(("k0", "v0"))

RING_A = ("a", 236); RING_V = ("v", V_F)
xcf = lambda ks, qb: ar((ks * 4 + qb) * 4, 4)
H1 = 0; HP = 64; QA = 96; GA = 112
h1acc = lambda fb, qb: vr(H1 + (fb * 4 + qb) * 4, 4)
qacc = lambda db, qb: vr(QA + (db * 4 + qb) * 4, 4)
hfrag = lambda ks, qb: ar((ks * 4 + qb) * 4, 4)
g2acc = lambda nb, qb: ar(GA + (nb * 4 + qb) * 4, 4)
VQA = [V_DW1 - 0, 0]
VQA = [V_KA, V_VA]
a(f"s_mul_i32 s{S_TMP}, s{S_A}, {BLK}"); a(f"s_lshl_b32 s{S_TMP+1}, s{S_C}, 8"); a(f"s_add_u32 s{S_TMP}, s{S_TMP}, s{S_TMP+1}")
a(f"v_lshl_add_u32 v{VQA[0]}, v{V_CC}, 4, v{V_ROWP}")
a(f"v_add_u32 v{VQA[0]}, s{S_TMP}, v{VQA[0]}")
a(f"v_add_u32 v{VQA[1]}, {2*PS}, v{VQA[0]}")

def att_reads(p, f):
    if f < 16:
        kb, x = f // 8, f % 8
        return [f"ds_read_b128 {{r}}, v{V_KA if x < 4 else V_KA2} offset:{((p + 1) % 2) * PS + kb*512 + x*64}"]
    return trd(V_VA, (p % 2) * PS + (f - 16) * 32)
g1 = gemm_groups("G1", 7, 0, h1acc, xcf, RING_A, V_AA, "st", first_top=False)
qp = gemm_groups("QP", 14, 7, qacc, xcf, RING_A, VQA, "st")
g2 = gemm_groups("G2", 7, 21, g2acc, hfrag, RING_A, V_AA, "st")
allg = g1 + qp + g2
POSTA = [(att_reads(-1, i), RING_V) for i in range(LA)]
allgaps = prep_groups(allg, post=POSTA)
gemm_dma(allg, allgaps, stage_dma, "st", skip=(3,))
fq = allgaps[4*56:4*168]; fg = allgaps[4*168:]

C1 = 2 * math.sqrt(2 / math.pi) * math.log2(math.e); C2 = C1 * 0.044715
def gelu_stream():
    st = [f"s_mov_b32 s{S_X1}, {f32(-C2)}", f"v_mov_b32 v{V_T+7}, {f32(-C1)}", I_wvm("b1")]
    for fb in range(4):
        st += [f"v_accvgpr_read_b32 v{V_T}, a{A_BIAS+2*fb}", f"v_accvgpr_read_b32 v{V_T+1}, a{A_BIAS+2*fb+1}", "s_nop 0",
               f"v_lshlrev_b32 v{V_B4}, 16, v{V_T}", f"v_and_b32 v{V_B4+1}, 0xffff0000, v{V_T}",
               f"v_lshlrev_b32 v{V_B4+2}, 16, v{V_T+1}", f"v_and_b32 v{V_B4+3}, 0xffff0000, v{V_T+1}"]
        for qb in range(4):
            base = H1 + (fb * 4 + qb) * 4
            st += [f"v_fma_f32 v{base+r}, v{base+r}, v{V_SC+2*qb+1}, v{V_B4+r}" for r in range(4)]
            st += [f"v_mul_f32 v{V_T+r}, v{base+r}, v{base+r}" for r in range(4)]
            st += [f"v_fma_f32 v{V_T+r}, v{V_T+r}, s{S_X1}, v{V_T+7}" for r in range(4)]
            st += [f"v_mul_f32 v{V_T+r}, v{V_T+r}, v{base+r}" for r in range(4)]
            st += [f"v_exp_f32 v{V_T+r}, v{V_T+r}" for r in range(4)]
            st += [f"v_add_f32 v{V_T+r}, 1.0, v{V_T+r}" for r in range(4)]
            st += [f"v_rcp_f32 v{V_T+r}, v{V_T+r}" for r in range(4)]
            st += [f"v_mul_f32 v{base+r}, v{base+r}, v{V_T+r}" for r in range(4)]
            hp = HP + ((fb // 2) * 4 + qb) * 4 + (fb % 2) * 2
            st += [f"v_cvt_pk_bf16_f32 v{hp}, v{base}, v{base+1}", f"v_cvt_pk_bf16_f32 v{hp+1}, v{base+2}, v{base+3}"]
    st += [f"s_lshl_b32 s{S_X1}, s{S_W}, 1", f"s_add_u32 s{S_X2}, s{S_X1}, 1", f"s_min_u32 s{S_X2}, s{S_X2}, 6",
           f"s_lshl_b32 s{S_X1}, s{S_X1}, 12", f"s_lshl_b32 s{S_X2}, s{S_X2}, 12",
           f"v_lshlrev_b32 v{V_T+6}, 4, v{V_LANE}", f"v_add_u32 v{V_T+6}, {HL}, v{V_T+6}",
           f"v_add_u32 v{V_T+5}, s{S_X2}, v{V_T+6}", f"v_add_u32 v{V_T+4}, s{S_X1}, v{V_T+6}"]
    st += [I_lds(f"ds_write_b128 v{V_T+5}, {vr(HP+16+4*qb,4)} offset:{qb*1024}", "hw") for qb in range(4)]
    st += [I_lds(f"ds_write_b128 v{V_T+4}, {vr(HP+4*qb,4)} offset:{qb*1024}", "hw") for qb in range(4)]
    st += [I_wlg("hw")]
    return st
GE = OPT["gelu_end"]
place_stream(fq, gelu_stream(), 4*2, 4*(8*GE) - 1)
st = [f"s_mul_i32 s{S_X1}, s{S_A}, {BLK}", f"s_mul_i32 s{S_X2}, s{S_C}, 224", f"s_add_u32 s{S_X1}, s{S_X1}, s{S_X2}",
      f"v_lshl_add_u32 v{V_AA[0]}, v{V_CC}, 3, v{V_ROWP}", f"v_add_u32 v{V_AA[0]}, s{S_X1}, v{V_AA[0]}", f"v_add_u32 v{V_AA[1]}, {2*PS}, v{V_AA[0]}"]
st += [I_lds(f"ds_read_b128 {ar(4*f,4)}, v{V_T+6} offset:{f*1024}", "hr") for f in range(28)] + [I_wlg("hr")]
place_stream(fq, st, 4*(8*(GE+1)), 4*(8*14) - 5)

def q_frag(f):
    x, qb = f // 4, f % 4
    b0 = QA + ((2 * x) * 4 + qb) * 4; b1_ = QA + ((2 * x + 1) * 4 + qb) * 4
    st = []
    t = 4 * f
    st += [f"v_cvt_pk_bf16_f32 v{t}, v{b0}, v{b0+1}", f"v_cvt_pk_bf16_f32 v{t+1}, v{b0+2}, v{b0+3}",
           f"v_cvt_pk_bf16_f32 v{t+2}, v{b1_}, v{b1_+1}", f"v_cvt_pk_bf16_f32 v{t+3}, v{b1_+2}, v{b1_+3}"]
    return st
UQW, UQR = V_T + 5, V_T + 4
def q_write(fs, tag): return [I_lds(f"ds_write_b128 v{UQW}, {vr(4*f,4)} offset:{(f - fs[0])*1024}", tag) for f in fs] + [I_wlg(tag)]
def q_read(fs, tag): return [I_lds(f"ds_read_b128 {vr(64+4*f,4)}, v{UQR} offset:{(f - fs[0])*1024}", tag) for f in fs] + [I_wlg(tag)]
R1, R2, R3 = list(range(0, 7)), list(range(7, 14)), [14, 15]
SG = lambda s: 4 * 7 * (s - 21)
st = [f"s_mul_i32 s{S_X1}, s{S_W}, 7168", f"s_xor_b32 s{S_X2}, s{S_W}, 1", f"s_mul_i32 s{S_X2}, s{S_X2}, 7168",
      f"v_lshlrev_b32 v{V_T+6}, 4, v{V_LANE}", f"v_add_u32 v{V_T+6}, {XREG}, v{V_T+6}",
      f"v_add_u32 v{UQW}, s{S_X1}, v{V_T+6}", f"v_add_u32 v{UQR}, s{S_X2}, v{V_T+6}"]
for f in R1: st += q_frag(f)
st += q_write(R1, "qw1")
place_stream(fg, st, SG(21) + 6, SG(22) - 1)
st = q_read(R1, "qr1")
for f in R2[:4]: st += q_frag(f)
place_stream(fg, st, SG(22) + 1, SG(23) - 1)
st = []
for f in R2[4:]: st += q_frag(f)
st += q_write(R2, "qw2")
place_stream(fg, st, SG(23) + 1, SG(24) - 1)
st = q_read(R2, "qr2")
for f in R3: st += q_frag(f)
place_stream(fg, st, SG(24) + 1, SG(25) - 1)
place_stream(fg, q_write(R3, "qw3"), SG(25) + 1, SG(26) - 1)
place_stream(fg, q_read(R3, "qr3"), SG(26) + 1, SG(26) + 12)
st = [f"v_and_b32 v{V_T}, 15, v{V_LANE}", f"v_lshrrev_b32 v{V_T+1}, 4, v{V_LANE}",
      f"s_mul_i32 s{S_X1}, s{S_C}, {BLK}", f"s_lshl_b32 s{S_X2}, s{S_C}, 8",
      f"v_mul_u32_u24 v{V_KA}, {UNIT}, v{V_T}", f"v_lshl_add_u32 v{V_KA}, v{V_T+1}, 4, v{V_KA}",
      f"v_add_u32 v{V_KA}, s{S_X1}, v{V_KA}",
      f"v_subrev_u32 v{V_KA2}, s{S_X2}, v{V_KA}", f"v_add_u32 v{V_KA}, s{S_X2}, v{V_KA}",
      f"v_lshl_add_u32 v{V_VA}, v{V_CC}, 3, v{V_ROWP}", f"v_add_u32 v{V_VA}, s{S_X1}, v{V_VA}", f"v_add_u32 v{V_VA}, {2*PS}, v{V_VA}"]
st += [f"v_mov_b32 v{V_NEG+i}, 0" for i in range(16)]
def _pfs():
    a(f"s_cmp_eq_u32 s{S_C}, 0")
    a(f"s_cselect_b32 s{S_B1}, s{S_K}, s{S_V}"); a(f"s_cselect_b32 s{S_B1+1}, s{S_K+1}, s{S_V+1}")
    a(f"s_mov_b32 s{S_B1+2}, 0x100000")
    a(f"s_mov_b32 s{S_TMP+3}, {(PFD-1)*0x8000}")
    a(f"s_mov_b32 s{S_W2}, s96"); a(f"s_mov_b32 s{S_W2+1}, s97"); a(f"s_mov_b32 s{S_W2+2}, 256")
    a(f"s_lshl_b32 s{S_X1}, s{S_T}, 10"); a(f"s_lshl_b32 s{S_X2}, s{S_A}, 9"); a(f"s_add_u32 s{S_X1}, s{S_X1}, s{S_X2}")
    a(f"v_lshlrev_b32 v226, 7, v{V_LANE}"); a(f"v_add_u32 v226, s{S_X1}, v226")
    a(f"v_cmp_lt_u32 vcc, 3, v{V_LANE}"); a(f"v_mov_b32 v227, 0x40000000"); a("s_nop 1")
    a(f"v_cndmask_b32 v226, v226, v227, vcc")
st += [It(8, _pfs, "v")]
place_stream(fg, st, SG(26) + 13, SG(28) - 1)

emit_groups(allg[:56], post=[(g["reads"], g["ring"]) for g in allg[56:59]])
stamp()
emit_groups(allg[56:168], pre_issued=LA, post=[(g["reads"], g["ring"]) for g in allg[168:171]])
dump_regs("hp", "v", HP, 32)
stamp()
if OPT["prefetch"] and OPT["kvpf"] == 2:
    for kind in ("k", "v"): prefetch(kind, GR)
emit_groups(allg[168:], pre_issued=LA, post=POSTA)
stamp()

def att_mf(p, f, czero=False):
    out = []
    for qb in range(4):
        if f < 16:
            kb, x = f // 8, f % 8
            S = V_S + (kb * 4 + qb) * 4
            out.append(mf16(vr(S, 4), vr(V_Q + (x * 4 + qb) * 4, 4), vr(V_NEG + 4 * qb, 4) if x == 0 else vr(S, 4)))
        else:
            o = ar(((f - 16) * 4 + qb) * 4, 4)
            out.append(mf16(o, vr(V_P + (p % 2) * 16 + 4 * qb, 4), "0" if czero else o))
    return out
def sm_stream(p, kb):
    st = []
    Pb = V_P + ((p + 1) % 2) * 16
    lo = V_L + (p % 2) * 4; ln = V_L + ((p + 1) % 2) * 4
    items = [(qb, r) for qb in range(4) for r in range(4)]
    n = len(items)
    T = lambda k: V_T + (k % 8)
    for k in range(n + 3):
        if k < n:
            qb, r = items[k]
            st.append(f"v_exp_f32 v{T(k)}, v{V_S + (kb*4+qb)*4 + r}")
        if 1 <= k <= n:
            qb, r = items[k - 1]
            src = lo + qb if (kb == 0 and r == 0) else ln + qb
            st.append(f"v_add_f32 v{ln + qb}, v{T(k-1)}, v{src}")
        if k >= 3 and (k - 3) % 2 == 0 and (k - 2) < n:
            j = k - 3
            qb, r = items[j]
            st.append(f"v_cvt_pk_bf16_f32 v{Pb + qb*4 + kb*2 + r//2}, v{T(j)}, v{T(j+1)}")
    return st
def rescale(p, first):
    lo = V_L + (p % 2) * 4
    a("s_nop 7"); a("s_nop 3")
    MX = V_T
    for qb in range(4):
        b0 = V_S + qb * 4; b1_ = V_S + (4 + qb) * 4
        a(f"v_max3_f32 v{MX+qb}, v{b0}, v{b0+1}, v{b0+2}")
    for qb in range(4):
        b0 = V_S + qb * 4; b1_ = V_S + (4 + qb) * 4
        a(f"v_max3_f32 v{MX+qb}, v{MX+qb}, v{b0+3}, v{b1_}")
    for qb in range(4):
        b0 = V_S + qb * 4; b1_ = V_S + (4 + qb) * 4
        a(f"v_max3_f32 v{MX+qb}, v{MX+qb}, v{b1_+1}, v{b1_+2}")
    for qb in range(4):
        b1_ = V_S + (4 + qb) * 4
        a(f"v_max_f32 v{MX+qb}, v{MX+qb}, v{b1_+3}")
    a("s_nop 0")
    xlane4("v_max_f32", [MX + q for q in range(4)], [V_T + 4 + q for q in range(4)])
    if not first:
        for qb in range(4): a(f"v_max_f32 v{MX+qb}, 0, v{MX+qb}")
    for qb in range(4):
        for kb in range(2):
            for r in range(4):
                a(f"v_sub_f32 v{V_S+(kb*4+qb)*4+r}, v{V_S+(kb*4+qb)*4+r}, v{MX+qb}")
        for r in range(4):
            a(f"v_sub_f32 v{V_NEG+qb*4+r}, v{V_NEG+qb*4+r}, v{MX+qb}")
    if not first:
        for qb in range(4): a(f"v_exp_f32 v{MX+qb}, -v{MX+qb}")
        a("s_nop 0")
        for qb in range(4): a(f"v_mul_f32 v{lo+qb}, v{lo+qb}, v{MX+qb}")
        for d in range(16):
            for qb in range(4):
                for r in range(4): a(f"v_accvgpr_read_b32 v{V_T+4+r}, a{(d*4+qb)*4+r}")
                a("s_nop 0")
                for r in range(4): a(f"v_mul_f32 v{V_T+4+r}, v{V_T+4+r}, v{MX+qb}")
                for r in range(4): a(f"v_accvgpr_write_b32 a{(d*4+qb)*4+r}, v{V_T+4+r}")
    for kb in range(2):
        st = sm_stream(p, kb)
        for i, x in enumerate(st):
            a(x)
            if x.startswith("v_exp") and i + 1 < len(st) and not st[i+1].startswith("v_exp"):
                dst = x.split()[1].rstrip(",")
                if dst in st[i+1]: a("s_nop 0")
    a("s_nop 1")
slow = []
V_PFO, V_PFD = 226, 227
S_PFS = S_B1; S_PFO = S_TMP + 3
def sm_place(gaps, p, g_s0, g_s1, g_end):
    Pb = V_P + ((p + 1) % 2) * 16
    lo = V_L + (p % 2) * 4; ln = V_L + ((p + 1) % 2) * 4
    items = [(kb, qb, r) for kb in range(2) for qb in range(4) for r in range(4)]
    NT = 8
    T = lambda k: V_T + (k % NT)
    E = [f"v_exp_f32 v{T(k)}, v{V_S + (kb*4+qb)*4 + r}" for k, (kb, qb, r) in enumerate(items)]
    A = []
    for k, (kb, qb, r) in enumerate(items):
        src = lo + qb if (kb == 0 and r == 0) else ln + qb
        A.append(f"v_add_f32 v{ln + qb}, v{T(k)}, v{src}")
    C = [f"v_cvt_pk_bf16_f32 v{Pb + items[2*j][1]*4 + items[2*j][0]*2 + items[2*j][2]//2}, v{T(2*j)}, v{T(2*j+1)}" for j in range(16)]
    e = a_ = c = 0
    egap = {}
    for g in range(g_s0, g_end + 1):
        G = gaps[g]
        while G.cap >= 4:
            ra = a_ < 32 and a_ < e and egap[a_] < g
            rc = c < 16 and 2*c + 1 < e and egap[2*c+1] < g
            can_e = e < 32 and G.cap >= 8 and not G.v and (e < 16 or g >= g_s1) and (e < NT or (a_ > e - NT and c > (e - NT) // 2))
            pending = (e - a_) + (e // 2 - c)
            remaining_gaps = g_end - g
            if can_e and (pending < 5 or not (ra or rc)):
                G.add(E[e]); egap[e] = g; e += 1; break
            elif rc and (c <= a_ // 2 or not ra):
                G.add(C[c]); c += 1
            elif ra:
                G.add(A[a_]); a_ += 1
            elif rc:
                G.add(C[c]); c += 1
            else: break
    assert e == 32 and a_ == 32 and c == 16, (e, a_, c)

def period(p, qk=True, pv=True, sm=True, dK=None, dV=None, wait30="s_waitcnt vmcnt(1)", post=None, lab="", pre_issued=LA,
           czero=False, extra=None, top0=None, dtag=None, pf=False, nobar=False, midbar=None, postbar=None):
    fl = [f for f in range(32) if (f < 16 and qk) or (f >= 16 and pv)]
    n = len(fl)
    groups = [dict(reads=att_reads(p, f), mf=att_mf(p, f, czero), top=[], ring=RING_V) for f in fl]
    if top0: groups[0]["top"] = top0
    delay = {}
    inloop = lab in ("A", "B")
    if not nobar:
        groups[n - 2]["top"] = [wait30, "s_waitcnt lgkmcnt(0)", lambda: lg.ops.clear(), "s_barrier"]
        if inloop and OPT["x_nobar"] == 1: groups[n - 2]["top"] = ["s_waitcnt lgkmcnt(0)", lambda: lg.ops.clear()]
        if inloop and OPT["x_nobar"] == 2: groups[n - 2]["top"] = ["s_waitcnt lgkmcnt(0)", lambda: lg.ops.clear(), "s_barrier"]
        if postbar: groups[n - 2]["top"] = groups[n - 2]["top"] + [postbar]
        delay = {n: n - 2}
    if inloop and OPT["x_nodma"]: dK = dV = None
    if inloop and OPT["x_nopf"]: pf = False
    if inloop and OPT["x_nosm"]: sm = False
    if midbar is not None: groups[midbar]["top"] = groups[midbar]["top"] + ["s_barrier"]
    gaps = prep_groups(groups, pre_issued, post, delay)
    units = (dK or []) + (dV or [])
    if units: place_units(gaps, OPT["d0"], units, dtag, min(OPT["dstep"], (4 * n - 12) // len(units)))
    if pf:
        ins = f"buffer_load_dword v{V_PFD}, v{V_PFO}, s[{S_PFS}:{S_PFS+3}], s{S_PFO} offen"
        pos = min(4 * (n - 4), OPT["d0"] + 16 * OPT["dstep"] + 2)
        place_units(gaps, pos, [([f"s_add_u32 s{S_PFO}, s{S_PFO}, 0x8000"], ins)], "pf" if dtag else None, 1)
    if sm:
        sm_place(gaps, p, OPT["sm0a"], OPT["sm1a"], OPT["smend"])
        ln = V_L + ((p + 1) % 2) * 4
        tail = [f"v_max3_f32 v{V_T}, v{ln}, v{ln+1}, v{ln+2}", f"v_max_f32 v{V_T}, v{V_T}, v{ln+3}", f"v_cmp_lt_f32 vcc, s{S_THR}, v{V_T}"]
        for k, x in enumerate(tail): gaps[OPT["smend"] + 1 + k].add(x)
    if extra:
        for st, f0, f1 in extra: place_stream(gaps, st, f0, f1)
    emit_groups(groups, pre_issued=pre_issued, post=post, delay=delay)
    if sm:
        a(f"s_cbranch_vccnz L_slow{lab}")
        a.label(f"L_ret{lab}")
        slow.append((p, lab))
PR = lambda p, base=0: [(att_reads(p, base + i), RING_V) for i in range(LA)]

def store_stream(accreg, is_agpr, wsoff, tag, sreg, flags=""):
    st = [f"v_lshlrev_b32 v{V_T+6}, 4, v{V_LANE}",
          f"s_lshl_b32 s{sreg}, s{S_J}, 5", f"s_add_u32 s{sreg}, s{sreg}, s{S_T}",
          f"s_lshl_b32 s{sreg}, s{sreg}, 2", f"s_add_u32 s{sreg}, s{sreg}, s{S_W}",
          f"s_mul_i32 s{sreg}, s{sreg}, 14336", f"s_add_u32 s{sreg}, s{sreg}, {wsoff}"]
    return st
def store_body(accreg, is_agpr, tag, sreg, stage_regs, tmp, flags=""):
    st = []
    for s in range(14):
        nb, qp_ = s // 2, s % 2
        t = stage_regs + 4 * (s % 2)
        for hh in range(2):
            base = accreg + (nb * 4 + 2 * qp_ + hh) * 4
            if is_agpr:
                st += [f"v_accvgpr_read_b32 v{tmp+r}, a{base+r}" for r in range(4)] + ["s_nop 0"]
                src = tmp
            else: src = base
            st += [f"v_cvt_pk_bf16_f32 v{t+2*hh}, v{src}, v{src+1}", f"v_cvt_pk_bf16_f32 v{t+2*hh+1}, v{src+2}, v{src+3}"]
        st += [I_vm(f"buffer_store_dwordx4 {vr(t,4)}, v{V_T+6}, s[{S_WS}:{S_WS+3}], s{sreg} offen{flags}", tag), f"s_add_u32 s{sreg}, s{sreg}, 1024"]
    return st

mp = store_stream(GA, True, MP_OFF, "mp", S_X1) + store_body(GA, True, "mp", S_X1, V_P + 16, V_T, ["", " sc1", " nt", " sc0 sc1"][OPT["mpf"]])
top0 = [lambda: vm.wait(("st", 29)), "s_barrier"]
period(-1, qk=True, pv=False, sm=False, wait30=(lambda: vm.wait(("st", 30))), post=PR(0), top0=top0, extra=[(mp, 6, 63)], dtag="kk")
for i in range(8): a(f"v_mov_b32 v{V_L+i}, 0")
if OPT["prefetch"]: prefetch("wo", GR)
rescale(-1, True)
dump_regs("q", "v", V_Q, 128)
stamp()
PFL = OPT["kvpf"] == 3
W30 = "s_waitcnt vmcnt(1)" if PFL else "s_waitcnt vmcnt(0)"
S_DBG = S_W2
def mp_signal():
    a(f"s_cmp_lg_u32 s{S_W}, 0"); a("s_cbranch_scc1 L_mpsig")
    a(f"s_lshl_b32 s{S_X1}, s{S_T}, 8"); a(f"s_lshl_b32 s{S_X2}, s{S_J}, 2"); a(f"s_add_u32 s{S_X1}, s{S_X1}, s{S_X2}"); a(f"s_add_u32 s{S_X1}, s{S_X1}, {FLG_OFF}")
    a("s_mov_b64 exec, 1")
    a(f"v_mov_b32 v228, s{S_NONCE}"); a("v_mov_b32 v229, 0")
    a(f"buffer_store_dword v228, v229, s[{S_WS}:{S_WS+3}], s{S_X1} offen sc1")
    a("s_mov_b64 exec, -1")
    a.label("L_mpsig")
period(0, dK=dma_kv("K", 0), dV=dma_kv("V", 3), post=PR(1), lab="Z", czero=True, wait30=W30, pf=PFL, postbar=mp_signal)
vm.ops = []
a(f"s_mov_b32 s{S_CNT}, 14")
a(".p2align 6")
a.label("L_loop")
sv = list(lg.ops)
period(1, dK=dma_kv("K", 1), dV=dma_kv("V", 2), post=PR(2), lab="A", pf=PFL, wait30=W30)
period(2, dK=dma_kv("K", 0), dV=dma_kv("V", 3), post=PR(3), lab="B", pf=PFL, wait30=W30)
assert len(lg.ops) == len(sv), (lg.ops, sv)
a(f"s_sub_u32 s{S_CNT}, s{S_CNT}, 1")
a(f"s_cmp_lg_u32 s{S_CNT}, 0")
a("s_cbranch_scc1 L_loop")
stamp()
V_DWW = V_SC + 1
dma_voffsets("w")
op_dma = lambda s: dma_stage("OP", s, s % 4) if s < 16 else None
period(1, dK=dma_kv("K", 1), dV=dma_kv("V", 2), post=PR(2), lab="C", wait30="s_waitcnt vmcnt(0)")
period(2, dK=op_dma(0), dV=dma_kv("V", 3), post=PR(3, 16), lab="D", wait30="s_waitcnt vmcnt(0)")
vm.ops = []
LF = V_L + 4 * ((30 + 1) % 2)
SCL = 16; SCP = 24
VA1, VA2, VMGW, VMGR, VL16 = 28, 29, 30, 31, 228
def stats_a():
    st = []
    vs = [LF + q for q in range(4)]; ts = [q for q in range(4)]
    for sw in ("v_permlane16_swap_b32", "v_permlane32_swap_b32"):
        st += [f"v_mov_b32 v{t}, v{v}" for v, t in zip(vs, ts)]
        st += [f"{sw} v{v}, v{t}" for v, t in zip(vs, ts)]
        st += [f"v_add_f32 v{v}, v{v}, v{t}" for v, t in zip(vs, ts)]
    for qb in range(4):
        st += [f"v_sub_f32 v{2*qb}, 0, v{V_NEG+4*qb}", f"v_mov_b32 v{2*qb+1}, v{LF+qb}"]
    st += [f"v_and_b32 v{VA2}, 15, v{V_LANE}", f"v_lshlrev_b32 v{VA2}, 3, v{VA2}",
           f"s_lshl_b32 s{S_X1}, s{S_W}, 9", f"s_add_u32 s{S_X1}, s{S_X1}, {ML}", f"v_add_u32 v{VA1}, s{S_X1}, v{VA2}",
           f"s_xor_b32 s{S_X1}, s{S_X1}, 512", f"v_add_u32 v{VA2}, s{S_X1}, v{VA2}"]
    st += [I_lds(f"ds_write_b64 v{VA1}, {vr(2*qb,2)} offset:{qb*128}", "mlw") for qb in range(4)]
    st += [I_wlg("mlw")]
    return st
def stats_b():
    st = [I_lds(f"ds_read_b64 {vr(8+2*qb,2)}, v{VA2} offset:{qb*128}", "mlr") for qb in range(4)]
    st += [f"v_lshlrev_b32 v{VL16}, 4, v{V_LANE}",
           f"s_lshl_b32 s{S_X1}, s{S_W}, 14", f"s_add_u32 s{S_X1}, s{S_X1}, {2*PS}", f"v_add_u32 v{VMGW}, s{S_X1}, v{VL16}",
           f"s_xor_b32 s{S_X2}, s{S_W}, 1", f"s_lshl_b32 s{S_X2}, s{S_X2}, 14", f"s_add_u32 s{S_X2}, s{S_X2}, {2*PS}", f"v_add_u32 v{VMGR}, s{S_X2}, v{VL16}"]
    st += [I_wlg("mlr")]
    st += [f"v_max_f32 v{20+qb}, v{2*qb}, v{8+2*qb}" for qb in range(4)]
    for qb in range(4): st += [f"v_sub_f32 v{2*qb}, v{2*qb}, v{20+qb}", f"v_sub_f32 v{8+2*qb}, v{8+2*qb}, v{20+qb}"]
    for qb in range(4): st += [f"v_exp_f32 v{2*qb}, v{2*qb}", f"v_exp_f32 v{8+2*qb}, v{8+2*qb}"]
    st += [f"v_mul_f32 v{2*qb+1}, v{2*qb+1}, v{2*qb}" for qb in range(4)]
    st += [f"v_fma_f32 v{2*qb+1}, v{9+2*qb}, v{8+2*qb}, v{2*qb+1}" for qb in range(4)]
    st += [f"v_rcp_f32 v{2*qb+1}, v{2*qb+1}" for qb in range(4)]
    st += [f"v_mul_f32 v{SCL+qb}, v{2*qb}, v{2*qb+1}" for qb in range(4)]
    st += [f"v_mul_f32 v{SCP+qb}, v{8+2*qb}, v{2*qb+1}" for qb in range(4)]
    return st
assert ML % 1024 == 0
period(1, qk=False, pv=True, sm=False, dK=op_dma(1), dtag=("s3", 1), nobar=True,
       extra=[(stats_a(), 1, 27), (stats_b(), 29, 63)], midbar=7)
stamp()

gstamp()
a("s_nop 7"); a("s_nop 3")
a("s_barrier")
gstamp()
OFR = 32
TS = 96
TK = 160
def bsel(reg):
    if reg % 2 == 0: return vr(reg, 2), "op_sel_hi:[1,0]", "op_sel_hi:[1,0,1]"
    return vr(reg - 1, 2), "op_sel:[0,1]", "op_sel:[0,1,0]"
def merge_variant(c):
    send0 = 8 * (1 - c); keep0 = 8 * c
    for rho in range(2):
        blocks = [(dl, qb) for dl in range(4) for qb in range(4)]
        for k, (dl, qb) in enumerate(blocks):
            sb = ((send0 + 4*rho + dl) * 4 + qb) * 4
            lds(f"ds_write_b128 v{VMGW}, {ar(sb,4)} offset:{k*1024}")
            kb_ = ((keep0 + 4*rho + dl) * 4 + qb) * 4
            t = TS + 4 * k
            for r in range(4): a(f"v_accvgpr_read_b32 v{t+r}, a{kb_+r}")
            pr, s2, s3 = bsel(SCL + qb)
            for r in (0, 2): a(f"v_pk_mul_f32 {vr(t+r,2)}, {vr(t+r,2)}, {pr} {s2}")
        if c == 0: gstamp()
        lg.wait_all()
        a("s_barrier")
        if c == 0: gstamp()
        for k in range(16): lds(f"ds_read_b128 {vr(TK+4*k,4)}, v{VMGR} offset:{k*1024}", ("mr", k // 2))
        for k2 in range(8):
            lg.wait(("mr", k2))
            for k in (2*k2, 2*k2+1):
                dl, qb = blocks[k]
                t = TS + 4 * k; u = TK + 4 * k
                pr, s2, s3 = bsel(SCP + qb)
                for r in (0, 2): a(f"v_pk_fma_f32 {vr(t+r,2)}, {vr(u+r,2)}, {pr}, {vr(t+r,2)} {s3}")
            for k in (2*k2, 2*k2+1):
                dl, qb = blocks[k]
                t = TS + 4 * k
                d = 4 * rho + dl
                o = OFR + ((d // 2) * 4 + qb) * 4 + (d % 2) * 2
                a(f"v_cvt_pk_bf16_f32 v{o}, v{t}, v{t+1}"); a(f"v_cvt_pk_bf16_f32 v{o+1}, v{t+2}, v{t+3}")
        if c == 0: gstamp()
        a("s_barrier")
sv = list(lg.ops)
a(f"s_cmp_eq_u32 s{S_C}, 0")
a("s_cbranch_scc0 L_mv1")
merge_variant(0)
a("s_branch L_mvd")
a.label("L_mv1")
lg.ops = list(sv)
merge_variant(1)
a.label("L_mvd")
for f in range(16): lds(f"ds_write_b128 v{VMGW}, {vr(OFR+4*f,4)} offset:{f*1024}")
a(f"v_add_u32 v{VL16}, {2*PS}, v{VL16}")
rowp_cc()
a(f"v_lshl_add_u32 v{V_AA[0]}, v{V_CC}, 3, v{V_ROWP}")
a(f"s_mul_i32 s{S_TMP}, s{S_A}, {BLK}"); a(f"s_mul_i32 s{S_TMP+1}, s{S_C}, 224"); a(f"s_add_u32 s{S_TMP}, s{S_TMP}, s{S_TMP+1}")
a(f"v_add_u32 v{V_AA[0]}, s{S_TMP}, v{V_AA[0]}")
a(f"v_add_u32 v{V_AA[1]}, {2*PS}, v{V_AA[0]}")
lg.wait_all()
gstamp()
a("s_barrier")
gstamp()
for f in range(64):
    lds(f"ds_read_b128 {ar(4*f,4)}, v{VL16} offset:{f*1024}")
    if f % 12 == 11: a("s_waitcnt lgkmcnt(4)"); lg.ops = lg.ops[-4:]
lg.wait_all()
vm.wait(("s3", 1))
a("s_barrier")
dump_regs("o", "a", 0, 256)
stamp(OPT["fine"] in (0, 2, 3))
emit_units(op_dma(2), ("s3", 2))
emit_units(op_dma(3), ("s3", 3))

ofrag = lambda ks, qb: ar((ks * 4 + qb) * 4, 4)
OA = 0
opacc = lambda nb, qb: vr(OA + (nb * 4 + qb) * 4, 4)
S_OUT = S_W1; S_B2 = S_WQ; S_FL = 8
S_MPOK = S_CNT; S_SH = S_KOFF; S_MASK = S_VOFF
S_PO = [S_BG1, S_BQP]; S_RO = [S_BG2, S_GKV]; S_BO = [S_LDSW, S_PFO]
VMP = 112; VG_G = 176; VXR = 192; VB2 = 200; VLN = 204; VXO = 205; VBO = 206
JS = 32 * PART
uid = [0]
def share_scalars(sh):
    for b in range(2):
        t0, t1, t2 = S_TMP, S_TMP + 1, S_TMP + 2
        a(f"s_mul_i32 s{t0}, s{sh}, 7"); a(f"s_add_u32 s{t0}, s{t0}, s{S_W}")
        if b: a(f"s_add_u32 s{t0}, s{t0}, 4")
        a(f"s_mul_i32 s{S_PO[b]}, s{S_T}, {PART}"); a(f"s_lshl_b32 s{t1}, s{t0}, 10"); a(f"s_add_u32 s{S_PO[b]}, s{S_PO[b]}, s{t1}")
        a(f"s_mul_hi_u32 s{t1}, s{t0}, 0x12492493")
        a(f"s_mul_i32 s{t2}, s{t1}, 14"); a(f"s_sub_u32 s{t2}, s{t0}, s{t2}")
        a(f"s_mul_i32 s{t1}, s{t1}, 112"); a(f"s_lshr_b32 s{t0}, s{t2}, 1"); a(f"s_lshl_b32 s{t0}, s{t0}, 4"); a(f"s_add_u32 s{t1}, s{t1}, s{t0}")
        a(f"s_lshl_b32 s{S_BO[b]}, s{t1}, 1")
        a(f"s_and_b32 s{t2}, s{t2}, 1"); a(f"s_lshl_b32 s{t2}, s{t2}, 5"); a(f"s_lshl_b32 s{t0}, s{S_T}, 6"); a(f"s_add_u32 s{t2}, s{t2}, s{t0}")
        a(f"s_mul_i32 s{t2}, s{t2}, 896"); a(f"s_add_u32 s{S_RO[b]}, s{t2}, s{S_BO[b]}")
        if b:
            a(f"s_cmp_lt_u32 s{S_W}, 3")
            for r_ in (S_PO[b], S_RO[b], S_BO[b]): a(f"s_cselect_b32 s{r_}, s{r_}, 0x40000000")
def load_mp(tag):
    for b in range(2):
        for jj in range(8):
            a(f"s_add_u32 s{S_SO}, s{S_PO[b]}, {MP_OFF + jj*JS}")
            vmem(f"buffer_load_dwordx4 {vr(VMP + (b*8+jj)*4,4)}, v{VLN}, s[{S_WS}:{S_WS+3}], s{S_SO} offen sc1", tag)
    for b in range(2):
        vmem(f"buffer_load_dwordx2 {vr(VXR+4*b,2)}, v{VXO}, s[{S_X}:{S_X+3}], s{S_RO[b]} offen", tag)
        a(f"s_add_u32 s{S_SO}, s{S_RO[b]}, 14336")
        vmem(f"buffer_load_dwordx2 {vr(VXR+4*b+2,2)}, v{VXO}, s[{S_X}:{S_X+3}], s{S_SO} offen", tag)
        vmem(f"buffer_load_dwordx2 {vr(VB2+2*b,2)}, v{VBO}, s[{S_B2}:{S_B2+3}], s{S_BO[b]} offen", tag)
def sum8(dst, src0, T0):
    for jj in range(8):
        for i in range(4):
            r = src0 + 4*jj + i
            if jj == 0:
                a(f"v_lshlrev_b32 v{dst+2*i}, 16, v{r}"); a(f"v_and_b32 v{dst+2*i+1}, 0xffff0000, v{r}")
            else:
                a(f"v_lshlrev_b32 v{T0}, 16, v{r}"); a(f"v_and_b32 v{T0+1}, 0xffff0000, v{r}")
                a(f"v_pk_add_f32 {vr(dst+2*i,2)}, {vr(dst+2*i,2)}, {vr(T0,2)}")
def calc_g():
    a(f"s_mov_b32 s{S_SO}, {f32(-math.log2(math.e))}")
    for b in range(2):
        g = VG_G + 8*b
        sum8(g, VMP + b*32, V_T)
        for i in range(2):
            a(f"v_lshlrev_b32 v{V_T+2+2*i}, 16, v{VB2+2*b+i}"); a(f"v_and_b32 v{V_T+3+2*i}, 0xffff0000, v{VB2+2*b+i}")
        for e in range(8): a(f"v_add_f32 v{g+e}, v{g+e}, v{V_T+2+e%4}")
        E = V_F + 8*b
        for e in range(8): a(f"v_mul_f32 v{E+e}, s{S_SO}, v{g+e}")
        for e in range(8): a(f"v_exp_f32 v{E+e}, v{E+e}")
        for e in range(8): a(f"v_add_f32 v{E+e}, 1.0, v{E+e}")
        for e in range(8): a(f"v_rcp_f32 v{E+e}, v{E+e}")
        a("s_nop 0")
        for e in range(8): a(f"v_mul_f32 v{g+e}, v{g+e}, v{E+e}")
def fin():
    VSP = 0
    for b in range(2):
        for jj in range(8):
            a(f"s_add_u32 s{S_SO}, s{S_PO[b]}, {SP_OFF + jj*JS}")
            a(f"buffer_load_dwordx4 {vr(VSP + (b*8+jj)*4,4)}, v{VLN}, s[{S_WS}:{S_WS+3}], s{S_SO} offen sc1")
    for b in range(2):
        a(f"s_waitcnt vmcnt({8 if b == 0 else 0})")
        sm_ = 64 + 8*b
        sum8(sm_, VSP + b*32, V_T)
        for hh in range(2):
            for i in range(2):
                a(f"v_lshlrev_b32 v{V_T+2}, 16, v{VXR+4*b+2*hh+i}"); a(f"v_and_b32 v{V_T+3}, 0xffff0000, v{VXR+4*b+2*hh+i}")
                e = 4*hh + 2*i
                a(f"v_fma_f32 v{sm_+e}, v{sm_+e}, v{VG_G+8*b+e}, v{V_T+2}"); a(f"v_fma_f32 v{sm_+e+1}, v{sm_+e+1}, v{VG_G+8*b+e+1}, v{V_T+3}")
        o = 80 + 4*b
        for hh in range(2):
            a(f"v_cvt_pk_bf16_f32 v{o+2*hh}, v{sm_+4*hh}, v{sm_+4*hh+1}"); a(f"v_cvt_pk_bf16_f32 v{o+2*hh+1}, v{sm_+4*hh+2}, v{sm_+4*hh+3}")
        a(f"buffer_store_dwordx2 {vr(o,2)}, v{VXO}, s[{S_OUT}:{S_OUT+3}], s{S_RO[b]} offen")
        a(f"s_add_u32 s{S_SO}, s{S_RO[b]}, 14336")
        a(f"buffer_store_dwordx2 {vr(o+2,2)}, v{VXO}, s[{S_OUT}:{S_OUT+3}], s{S_SO} offen")

op = gemm_groups("OP", 16, 0, opacc, ofrag, RING_V, V_AA, "s3", first_top=False)
def op_pre():
    srd(S_OUT, 94, 95, 1835008); srd(S_B2, 92, 93, 896)
    a(f"v_lshlrev_b32 v{VLN}, 4, v{V_LANE}")
    a(f"v_and_b32 v{V_T}, 15, v{V_LANE}"); a(f"v_lshrrev_b32 v{V_T+1}, 4, v{V_LANE}")
    a(f"v_mul_u32_u24 v{VXO}, 896, v{V_T}"); a(f"v_lshl_add_u32 v{VXO}, v{V_T+1}, 3, v{VXO}")
    a(f"v_lshlrev_b32 v{VBO}, 3, v{V_T+1}")
    a(f"s_lshl_b32 s{S_X1}, s{S_T}, 8"); a(f"s_add_u32 s{S_X1}, s{S_X1}, {FLG_OFF}")
    a(f"s_load_dwordx8 s[{S_FL}:{S_FL+7}], s[{S_WSP}:{S_WSP+1}], s{S_X1}")
def op_flag():
    a("s_waitcnt lgkmcnt(0)"); lg.ops.clear()
    a(f"s_mov_b32 s{S_X2}, 0")
    for k in range(8):
        a(f"s_xor_b32 s{S_FL+k}, s{S_FL+k}, s{S_NONCE}"); a(f"s_or_b32 s{S_X2}, s{S_X2}, s{S_FL+k}")
    a(f"s_cmp_eq_u32 s{S_X2}, {0 if not OPT['noearly'] else 99}")
    a(f"s_cselect_b32 s{S_MPOK}, 1, 0")
    share_scalars_x(S_J)
def share_scalars_x(sh):
    share_scalars(sh)
op[7 * 9]["top"].append(op_pre)
op[7 * 12]["top"].append(op_flag)
opgaps = prep_groups(op)
gemm_dma(op, opgaps, op_dma, "s3", skip=(3,))
st = []
for b in range(2):
    for jj in range(8):
        st += [f"s_add_u32 s{S_X2}, s{S_PO[b]}, {MP_OFF + jj*JS}",
               I_vm(f"buffer_load_dwordx4 {vr(VMP + (b*8+jj)*4,4)}, v{VLN}, s[{S_WS}:{S_WS+3}], s{S_X2} offen sc1", "mpl")]
for b in range(2):
    st += [I_vm(f"buffer_load_dwordx2 {vr(VXR+4*b,2)}, v{VXO}, s[{S_X}:{S_X+3}], s{S_RO[b]} offen", "mpl"),
           f"s_add_u32 s{S_X2}, s{S_RO[b]}, 14336",
           I_vm(f"buffer_load_dwordx2 {vr(VXR+4*b+2,2)}, v{VXO}, s[{S_X}:{S_X+3}], s{S_X2} offen", "mpl"),
           I_vm(f"buffer_load_dwordx2 {vr(VB2+2*b,2)}, v{VBO}, s[{S_B2}:{S_B2+3}], s{S_BO[b]} offen", "mpl")]
place_stream(opgaps, st, 4 * 7 * 13 + 1, 4 * 7 * 16 - 1)
emit_groups(op)
stamp(); hstamp()
a("s_nop 7"); a("s_nop 1")
for x in store_stream(OA, False, SP_OFF, "sp", S_X1) + store_body(OA, False, "sp", S_X1, V_F, V_T + 4, " sc1"): do(x)
hstamp()
vm.wait("mpl")
calc_g()
hstamp()
a("s_waitcnt vmcnt(0)")
hstamp()
a("s_barrier")
hstamp()
a(f"s_cmp_lg_u32 s{S_W}, 0"); a("s_cbranch_scc1 L_sync_done")
a(f"s_lshl_b32 s{S_X1}, s{S_T}, 2")
a(f"s_lshl_b32 s{S_X2}, s{S_T}, 8"); a(f"s_add_u32 s{S_X2}, s{S_X2}, {FLG_OFF + 128}")
a(f"v_lshlrev_b32 v3, 2, v{V_LANE}")
a("s_mov_b64 exec, 1")
a(f"s_lshl_b32 s{S_TMP}, s{S_J}, 2"); a(f"v_mov_b32 v2, s{S_TMP}"); a(f"v_mov_b32 v4, s{S_NONCE}")
a(f"buffer_store_dword v4, v2, s[{S_WS}:{S_WS+3}], s{S_X2} offen sc1")
a("v_mov_b32 v0, 1"); a("v_mov_b32 v1, 0")
a(f"buffer_atomic_add v0, v1, s[{S_DBG}:{S_DBG+3}], s{S_X1} offen sc0")
a(f"s_lshl_b32 s{S_MASK}, 1, s{S_J}")
a(f"s_mov_b32 s{S_TMP+2}, {OPT['polls']}")
a("s_mov_b64 exec, 0xff")
a.label("L_poll")
a(f"s_cmp_eq_u32 s{S_TMP+2}, 0"); a("s_cbranch_scc1 L_abandon")
a(f"buffer_load_dword v5, v3, s[{S_WS}:{S_WS+3}], s{S_X2} offen sc1")
a("s_waitcnt vmcnt(0)")
a(f"v_cmp_eq_u32 vcc, s{S_NONCE}, v5")
a("s_nop 4")
a("s_cmp_eq_u64 vcc, 0xff"); a("s_cbranch_scc1 L_polled")
a(f"s_sub_u32 s{S_TMP+2}, s{S_TMP+2}, 1")
a(f"s_sleep {OPT['slp']}")
a("s_branch L_poll")
a.label("L_abandon")
a("s_mov_b64 exec, 1")
a("s_waitcnt vmcnt(0)")
a(f"v_readfirstlane_b32 s{S_TMP}, v0")
a(f"s_and_b32 s{S_TMP}, s{S_TMP}, 0xff")
a(f"s_cmp_eq_u32 s{S_TMP}, 7"); a("s_cbranch_scc1 L_polled")
a(f"s_add_u32 s{S_TMP+1}, s{S_J}, 8"); a(f"s_lshl_b32 s{S_TMP+1}, 1, s{S_TMP+1}")
a(f"v_mov_b32 v6, s{S_TMP+1}")
a(f"buffer_atomic_or v6, v1, s[{S_DBG}:{S_DBG+3}], s{S_X1} offen sc0")
a("s_waitcnt vmcnt(0)")
a(f"v_readfirstlane_b32 s{S_TMP}, v6")
a(f"s_and_b32 s{S_TMP}, s{S_TMP}, 0xff")
a(f"s_cmp_eq_u32 s{S_TMP}, 8")
a(f"s_cselect_b32 s{S_MASK}, s{S_MASK}, 0")
a("s_branch L_decided")
a.label("L_polled")
a("s_mov_b64 exec, 1")
a(f"v_readfirstlane_b32 s{S_TMP}, v0")
a(f"s_and_b32 s{S_TMP+1}, s{S_TMP}, 0xff")
a(f"s_cmp_eq_u32 s{S_TMP+1}, 7"); a("s_cbranch_scc0 L_decided")
a(f"s_bfe_u32 s{S_TMP+1}, s{S_TMP}, 0x80008"); a(f"s_or_b32 s{S_MASK}, s{S_MASK}, s{S_TMP+1}")
a.label("L_decided")
a(f"v_mov_b32 v0, s{S_MASK}"); a(f"v_mov_b32 v1, {XREG}")
a("ds_write_b32 v1, v0")
a("s_waitcnt lgkmcnt(0)")
a("s_mov_b64 exec, -1")
a.label("L_sync_done")
a("s_barrier")
a(f"v_mov_b32 v1, {XREG}")
a("ds_read_b32 v0, v1")
a("s_waitcnt lgkmcnt(0)")
a(f"v_readfirstlane_b32 s{S_MASK}, v0")
hstamp()
a.label("L_shares")
a(f"s_cmp_eq_u32 s{S_MASK}, 0"); a("s_cbranch_scc1 L_fin_done")
a(f"s_ff1_i32_b32 s{S_SH}, s{S_MASK}")
a(f"s_bitset0_b32 s{S_MASK}, s{S_SH}")
a(f"s_cmp_eq_u32 s{S_SH}, s{S_J}"); a(f"s_cselect_b32 s{S_X1}, s{S_MPOK}, 0")
a(f"s_cmp_eq_u32 s{S_X1}, 1"); a("s_cbranch_scc1 L_haveg")
share_scalars(S_SH)
load_mp("mpl2")
a("s_waitcnt vmcnt(0)")
calc_g()
a(f"s_mov_b32 s{S_MPOK}, 0")
a.label("L_haveg")
fin()
a("s_branch L_shares")
a.label("L_fin_done")
hstamp()
vm.ops = []
if OPT["stamps"]:
    a("s_waitcnt vmcnt(0) lgkmcnt(0)")
    stamp(True)
    a("s_waitcnt lgkmcnt(0)")
    a(f"s_cmp_lg_u32 s{S_W}, {OPT['swave']}"); a("s_cbranch_scc1 L_end")
    a(f"s_lshl_b32 s{S_TMP}, s2, 7"); a(f"s_add_u32 s{S_TMP}, s{S_TMP}, {STAMP_OFF}")
    a("v_mov_b32 v20, 0")
    a("v_mov_b32 v0, s98")
    for i in range(15): a(f"v_mov_b32 v{i+1}, s{S_ST+2*min(i, nstamp[0]-1)}")
    for q in range(4): a(f"buffer_store_dwordx4 {vr(4*q,4)}, v20, s[{S_WS}:{S_WS+3}], s{S_TMP} offen offset:{16*q}")
a.label("L_end")
a("s_endpgm")
for p, lab in slow:
    a.label(f"L_slow{lab}")
    rescale(p, False)
    a(f"s_branch L_ret{lab}")
main_text = a.text()

KMAIN = NAME + "_kernel"
src = HEADER_COMMENT
src += f"; @launch grid=(256,1,1) block=(256,1,1) lds={LDS_TOTAL}\n"
src += '.amdgcn_target "amdgcn-amd-amdhsa--gfx950"\n.text\n'
src += kernel_begin(KMAIN) + main_text
src += kernel_desc(KMAIN, 512, 102, 256)
open(sys.argv[1], "w").write(src)
```

```python
import sys, math, struct
from asmlib import Asm, NAME, HEADER_COMMENT, kernel_begin, kernel_desc, vr, ar

OPT = dict(xdma=0, swave=0, fine=0, cpf=0, tlbw=0, pfpos=3, gcap=12, tt=1, xs=1, mpf=0, spf=0, x_nodma=0, x_nobar=0, x_nosm=0, x_nopf=0, x_nolg0=0, d0=2, sm1a=68, smend=123, W=2, dstep=4, pfd=6, qlsc=0, kvpf=3, gelu_end=11, gran=128, stamps=0, prefetch=1, thr=0x4f800000, dump="", sm0a=36, sm0b=76, sm1b=120, kstep=6, vstep=3)
for x in sys.argv[2:]:
    k, v = x.split("=")
    OPT[k] = int(v, 0) if k != "dump" else v

def f32(x):
    return "0x%08x" % struct.unpack("<I", struct.pack("<f", x))[0]

UNIT = 1056; BLK = 16 * UNIT; PS = 2 * BLK
XREG = 4 * PS
LDS_TOTAL = 163840
STATS = XREG
HL = XREG
ML = XREG
SP_OFF = 0
MP_OFF = 0x1000000
QX_OFF = 0x1E00000
QX_OFF = 0x2000000
PART = 57344
DUMP_OFF = 0x3000000
STAMP_OFF = 0x7000000
WS_SIZE = 0x8000000

S_W = 3; S_WSP = 4
S_K, S_V, S_X, S_WQ, S_WO, S_W1, S_W2, S_WS, S_B1 = 8, 12, 16, 20, 24, 28, 32, 36, 40
S_J, S_T = 44, 45
S_LDSW = 46; S_GKV = 47
S_KOFF, S_VOFF = 48, 49
S_SO = 50; S_CNT = 51; S_THR = 52
S_A, S_C = 53, 54
S_TMP = 55
S_BG1, S_BQP, S_BG2, S_BOP = 60, 61, 62, 63
S_M0 = 64
S_ST = 68
S_X1 = 100; S_X2 = 101

V_Q = 0; V_S = 128; V_P = 160; V_NEG = 192; V_F = 208; V_SC = 224; V_T = 232; V_L = 240
V_KA2 = 246 + 0
V_KA2 = 224
V_KA = 248; V_VA = 249; V_DO = 250; V_LANE = 251
V_AA = [252, 253]; V_DW1 = 254; V_DWQ = 255; V_DWW = 247
V_B4 = 240
V_ROWP, V_CC = 244, 245
A_PF = 255
A_BIAS = 224

a = Asm()

class Tracker:
    def __init__(self, name, maxc): self.ops = []; self.name = name; self.maxc = maxc
    def issue(self, tag): self.ops.append(tag)
    def count(self, tag):
        idx = max([i for i, t in enumerate(self.ops) if t == tag], default=None)
        return None if idx is None else len(self.ops) - 1 - idx
    def wait(self, tag):
        n = self.count(tag)
        if n is None: return
        a(f"s_waitcnt {self.name}({min(n, self.maxc)})")
        n = min(n, self.maxc)
        self.ops = self.ops[len(self.ops) - n:] if n > 0 else []
    def wait_all(self):
        a(f"s_waitcnt {self.name}(0)"); self.ops = []
vm = Tracker("vmcnt", 63)
lg = Tracker("lgkmcnt", 15)
def vmem(ins, tag): a(ins); vm.issue(tag)
def lds(ins, tag="x"): a(ins); lg.issue(tag)

class It:
    def __init__(self, cost, fn, kind="m"): self.cost = cost; self.fn = fn; self.kind = kind
def kind_of(x):
    if isinstance(x, It): return x.kind
    op = x.split()[0]
    if op.startswith("s_"): return "s"
    if op.startswith(("ds_", "buffer_", "global_")): return "m"
    return "v"
def cost(x):
    if isinstance(x, It): return x.cost
    op = x.split()[0]
    if op.startswith("s_"): return 0
    if op.startswith(("v_exp", "v_log", "v_rcp", "v_rsq", "v_sqrt")): return 8
    if op.startswith("buffer_"): return 8
    return 4
def do(x):
    if isinstance(x, It): x.fn()
    elif callable(x): x()
    else: a(x)
def I_vm(ins, tag): return It(8, lambda: vmem(ins, tag), "m")
def I_lds(ins, tag="x"): return It(8 if "write" in ins else 4, lambda: lds(ins, tag), "m")
def I_wvm(tag): return It(0, lambda: vm.wait(tag), "s")
def I_wlg(tag): return It(0, lambda: lg.wait(tag), "s")

class Gap:
    def __init__(self): self.s = []; self.m = []; self.v = []; self.cap = 8
    def add(self, x, force=False):
        k = kind_of(x); c = cost(x)
        if k == "s":
            if self.v: self.v.append(x)
            elif self.m and getattr(self, "strict", False): self.m.append(x)
            else: self.s.append(x)
        elif k == "m":
            if self.v: self.v.append(x)
            else: self.m.append(x)
        else: self.v.append(x)
        self.cap -= c
    def items(self): return self.s + self.m + self.v

def place_stream(gaps, stream, first, last):
    idxs = list(range(first, last + 1))
    free = sum(max(gaps[g].cap, 0) for g in idxs)
    need = sum(cost(x) for x in stream)
    ratio = min(1.0, need / max(free, 1))
    k = 0; used = 0.0; budget = 0.0
    for j, g in enumerate(idxs):
        G = gaps[g]; G.strict = True
        budget += max(G.cap, 0) * ratio + 1e-9
        lastg = j == len(idxs) - 1
        while k < len(stream):
            x = stream[k]; c = cost(x)
            if lastg or c == 0 or (c <= G.cap and used + c <= budget + 4):
                if kind_of(x) == "m" and G.v and not lastg: break
                G.add(x); used += c; k += 1
            else: break
    assert k == len(stream), (k, len(stream))

KMAIN = "fused_main_kernel"; KFIN = "fused_final_kernel"
nstamp = [0]
def fstamp():
    if OPT["fine"] == 1: stamp(True)
def gstamp():
    if OPT["fine"] == 2: stamp(True)
def stamp(force=False):
    if not OPT["stamps"]: return
    if OPT["fine"] == 1 and not force and nstamp[0] >= 3: return
    if OPT["fine"] == 1 and force and nstamp[0] >= 15: return
    if OPT["fine"] == 2 and not force: return
    i = nstamp[0]; nstamp[0] += 1
    assert i < 15
    a(f"s_memtime s[{S_ST+2*i}:{S_ST+2*i+1}]")
def srd(base, lo, hi, size):
    a(f"s_mov_b32 s{base}, s{lo}"); a(f"s_mov_b32 s{base+1}, s{hi}")
    a(f"s_mov_b32 s{base+2}, {size}"); a(f"s_mov_b32 s{base+3}, 0x20000")
def reg(spec, off, n):
    kind, base = spec
    return (vr if kind == "v" else ar)(base + off, n)

def dma_stage(kind, s, ps):
    out = []
    if kind in ("G1", "QP"):
        rs = 3584 if kind == "G1" else 8192
        sr_ = S_W1 if kind == "G1" else S_WQ
        base = S_BG1 if kind == "G1" else S_BQP
        vo = V_DW1 if kind == "G1" else V_DWQ
        for k in range(8):
            rho = 8 * (k >> 2) + (k & 3)
            rows = (64 * s if kind == "G1" else 32 * s) + rho
            out.append(([f"s_add_u32 s{S_SO}, s{base}, {rows * rs}", f"s_add_u32 m0, s{S_M0+ps}, {k*UNIT}"],
                        f"buffer_load_dwordx4 v{vo}, s[{sr_}:{sr_+3}], s{S_SO} offen lds"))
    else:
        sr_ = S_W2 if kind == "G2" else S_WO
        base = S_BG2 if kind == "G2" else S_BOP
        for k in range(8):
            sal = []
            if k % 4 == 0: sal.append(f"s_add_u32 s{S_SO}, s{base}, {(32 * s + k) * 896}")
            sal.append(f"s_add_u32 m0, s{S_M0+ps}, {k*UNIT - 896*(k%4)}")
            out.append((sal, f"buffer_load_dwordx4 v{V_DWW}, s[{sr_}:{sr_+3}], s{S_SO} offen offset:{896*(k%4)} lds"))
    return out
def dma_kv(which, ps):
    sr_ = S_K if which == "K" else S_V
    so = S_KOFF if which == "K" else S_VOFF
    out = []
    for k in range(8):
        sal = [f"s_add_u32 s{so}, s{so}, 0x8000", f"s_mov_b32 m0, s{S_M0+ps}"] if k == 0 else ["s_add_u32 m0, m0, 544"]
        out.append((sal, f"buffer_load_dwordx4 v{V_DO}, s[{sr_}:{sr_+3}], s{so} offen offset:{512*k} lds"))
    return out
def emit_units(units, tag):
    for sal, d in units:
        for x in sal: a(x)
        a("s_nop 0")
        vmem(d, tag)
def stage_dma(gs):
    if gs < 7: return dma_stage("G1", gs, gs % 4)
    if gs < 21: return dma_stage("QP", gs - 7, gs % 4)
    if gs < 28: return dma_stage("G2", gs - 21, gs % 4)
    if gs == 28: return dma_kv("K", 0)
    if gs == 29: return dma_kv("K", 1)
    if gs == 30: return dma_kv("V", 2)
    return None

LA = 3; R = 4
gctr = [0]
def read_sched(groups, post, delay, pre_issued):
    n = len(groups); post = post or []; delay = delay or {}
    sched = {}
    for i in range(pre_issued, n + LA):
        G = delay.get(i, i - LA)
        rs = groups[i]["reads"] if i < n else (post[i - n][0] if i - n < len(post) else [])
        for k in range(len(rs)): sched.setdefault(G, []).append((i, k))
    return sched
def rgap(g, j):
    if g.get("stage") is not None and OPT["tt"]: return min(j // 2, 3)
    return min(j, 3)
def prep_groups(groups, pre_issued=0, post=None, delay=None):
    sched = read_sched(groups, post, delay, pre_issued)
    for G, g in enumerate(groups):
        g["gaps"] = [Gap() for _ in range(4)]
        if g.get("stage") is not None:
            for gp in g["gaps"]: gp.cap = OPT["gcap"]
        for q, _ in enumerate(sched.get(G, [])): g["gaps"][rgap(g, q)].cap -= 4
    return [gp for g in groups for gp in g["gaps"]]
def emit_groups(groups, pre_issued=0, post=None, delay=None, W=None):
    n = len(groups)
    post = post or []
    W = W or OPT["W"]
    G0 = gctr[0]
    def info(i):
        if i < n: return groups[i]["reads"], groups[i]["ring"]
        return post[i - n] if i - n < len(post) else ([], None)
    def fmt(x, i, ring):
        o = 4 * ((G0 + i) % R)
        return x.format(r=reg(ring, o, 4), r0=reg(ring, o, 2), r1=reg(ring, o + 2, 2), A=reg(ring, o, 4))
    sched = read_sched(groups, post, delay, pre_issued)
    def issue(i, k):
        rs, ring = info(i)
        lds(fmt(rs[k], i, ring), ("f", G0 + i))
    for G in sorted(g for g in sched if g < 0):
        for (i, k) in sched[G]: issue(i, k)
    for i, g in enumerate(groups):
        for x in g.get("top", []): do(x)
        if W == 2 and (G0 + i) % 2 == 0 and i + 1 < n and lg.count(("f", G0 + i + 1)) is not None and not groups[i + 1].get("top"):
            lg.wait(("f", G0 + i + 1))
        lg.wait(("f", G0 + i))
        rl = sched.get(i, [])
        for q, m in enumerate(g["mf"]):
            a(fmt(m, i, g["ring"]))
            gp = g["gaps"][q]
            for x in gp.s: do(x)
            for j, (ii, k) in enumerate(rl):
                if rgap(g, j) == q: issue(ii, k)
            for x in gp.m + gp.v: do(x)
    gctr[0] += n

def place_units(gaps, pos, units, tag, step):
    for sal, d in units:
        while gaps[pos].cap < 8: pos += 1
        tgt = gaps[pos - 1]
        assert not tgt.v
        for x in sal: (tgt.m if tgt.m else tgt.s).append(x)
        gaps[pos].add(I_vm(d, tag) if tag is not None else d)
        pos += step
def trd(aa, off):
    return [f"ds_read_b64_tr_b16 {{r0}}, v{aa} offset:{off}", f"ds_read_b64_tr_b16 {{r1}}, v{aa} offset:{off+512}"]
def mf16(d, b, c): return f"v_mfma_f32_16x16x32_bf16 {d}, {{A}}, {b}, {c}"

def gemm_groups(kind, nstage, gs0, accf, bf, ring, aa, tagp, first_top=True):
    groups = []
    for s in range(nstage):
        gs = gs0 + s; ps = gs % 4
        av = aa[ps // 2]; pso = (ps % 2) * PS
        first = len(groups)
        if kind == "G1": items = [(pso + blk * BLK + fb * 32, fb, 2 * s + blk) for blk in range(2) for fb in range(4)]
        elif kind == "QP": items = [(pso + (db // 2) * 64 + (db % 2) * 8, db, s) for db in range(8)]
        else: items = [(pso + nb * 32, nb, s) for nb in range(7)]
        for off, blk, ks in items:
            groups.append(dict(reads=trd(av, off), ring=ring, stage=gs, first=(len(groups) == first),
                               mf=[mf16(accf(blk, qb), bf(ks, qb), accf(blk, qb) if ks > 0 else "0") for qb in range(4)], top=[]))
        if s > 0 or first_top:
            groups[first]["top"] = [lambda gs=gs: vm.wait((tagp, gs + 1)), "s_barrier"]
    return groups
def gemm_dma(groups, gaps, dmaf, tagp, skip=()):
    for G, g in enumerate(groups):
        if g.get("first"):
            gs = g["stage"]
            if (gs + 3) in skip: continue
            units = dmaf(gs + 3)
            if not units: continue
            ng = sum(1 for x in groups if x["stage"] == gs)
            dq = 1 if OPT["tt"] else 2
            pos = [4 * (G + i) + dq for i in range(ng)]
            if ng < len(units): pos = sorted(pos + [4 * (G + 3) + dq + 1])
            for u, p_ in zip(units, pos): place_units(gaps, p_, [u], (tagp, gs + 3), 1)

def xlane(op, v, t):
    for sw in ("v_permlane16_swap_b32", "v_permlane32_swap_b32"):
        a(f"v_mov_b32 v{t}, v{v}"); a("s_nop 1")
        a(f"{sw} v{v}, v{t}"); a("s_nop 1")
        a(f"{op} v{v}, v{v}, v{t}")
def xlane4(op, vs, ts):
    for sw in ("v_permlane16_swap_b32", "v_permlane32_swap_b32"):
        for v, t in zip(vs, ts): a(f"v_mov_b32 v{t}, v{v}")
        for v, t in zip(vs, ts): a(f"{sw} v{v}, v{t}")
        for v, t in zip(vs, ts): a(f"{op} v{v}, v{v}, v{t}")
def round_bf16(v, t):
    a(f"v_cvt_pk_bf16_f32 v{t}, v{v}, v{v}")
    a(f"v_lshlrev_b32 v{v}, 16, v{t}")

def dump_regs(name, kind, base, n):
    if OPT["dump"] != name: return
    a("s_nop 7"); a("s_nop 7"); a("s_waitcnt vmcnt(0) lgkmcnt(0)")
    a(f"s_lshl_b32 s{S_TMP}, s2, 2"); a(f"s_add_u32 s{S_TMP}, s{S_TMP}, s{S_W}")
    a(f"s_mul_i32 s{S_TMP}, s{S_TMP}, {n*256}")
    a(f"s_add_u32 s{S_TMP}, s{S_TMP}, {DUMP_OFF}")
    a(f"v_lshlrev_b32 v{V_T+7}, 2, v{V_LANE}")
    for i in range(n):
        if kind == "a":
            a(f"v_accvgpr_read_b32 v{V_T+6}, a{base+i}"); src = V_T + 6
        else: src = base + i
        a(f"buffer_store_dword v{src}, v{V_T+7}, s[{S_WS}:{S_WS+3}], s{S_TMP} offen")
        a(f"s_add_u32 s{S_TMP}, s{S_TMP}, 256")
        if kind == "a": a("s_waitcnt vmcnt(0)")
    a("s_waitcnt vmcnt(0)")
    a("s_endpgm")

a("s_cmp_ge_u32 s2, 256")
a("s_cbranch_scc1 L_end")
if OPT["stamps"]: a("s_memtime s[98:99]")
a("s_load_dwordx16 s[68:83], s[0:1], 0")
if OPT["cpf"]:
    a("s_getpc_b64 s[6:7]")
    a("s_lshr_b32 s3, s2, 3"); a("s_lshl_b32 s3, s3, 11")
    a("v_lshrrev_b32 v1, 6, v0"); a("v_lshlrev_b32 v1, 9, v1")
    a("v_and_b32 v2, 3, v0"); a("v_lshl_add_u32 v1, v2, 7, v1")
    a("v_add_u32 v1, s3, v1")
    a(f"global_load_dword a{A_PF}, v1, s[6:7]")
    vm.issue("cpf")
a("s_load_dwordx2 s[84:85], s[0:1], 64")
a("s_load_dwordx2 s[4:5], s[0:1], 96")
a(f"v_lshrrev_b32 v{V_T}, 6, v0")
a(f"v_and_b32 v{V_LANE}, 63, v0")
a(f"v_readfirstlane_b32 s{S_W}, v{V_T}")
a(f"s_and_b32 s{S_J}, s2, 7")
a(f"s_lshr_b32 s{S_T}, s2, 3")
VQ_, VG_ = V_T + 1, V_T + 2
a(f"v_and_b32 v{VQ_}, 15, v{V_LANE}")
a(f"v_lshrrev_b32 v{VG_}, 4, v{V_LANE}")
a(f"v_mul_u32_u24 v{V_T+3}, 896, v{VQ_}")
a(f"v_lshl_add_u32 v{V_T+3}, v{VG_}, 4, v{V_T+3}")
a(f"s_lshl_b32 s{S_TMP}, s{S_T}, 6"); a(f"s_lshl_b32 s{S_TMP+1}, s{S_W}, 4"); a(f"s_add_u32 s{S_TMP}, s{S_TMP}, s{S_TMP+1}")
a(f"s_mul_i32 s{S_TMP}, s{S_TMP}, 896")
a(f"s_mov_b32 s{S_X+2}, 1835008"); a(f"s_mov_b32 s{S_X+3}, 0x20000")
a("s_waitcnt lgkmcnt(0)")
PX, PK, PV_, PWQ, PWO, PW1, PB1, PW2 = 68, 70, 72, 74, 76, 80, 82, 84
a(f"s_mov_b32 s{S_X}, s{PX}"); a(f"s_mov_b32 s{S_X+1}, s{PX+1}")
if OPT["tlbw"]:
    a(f"s_lshl_b32 s{S_X1}, s{S_T}, 2"); a(f"s_add_u32 s{S_X1}, s{S_X1}, s{S_W}"); a(f"s_and_b32 s{S_X1}, s{S_X1}, 15")
    a("v_mov_b32 v1, 0")
    pages = [(PX, None, 0), (PW1, None, 0), (PB1, None, 0), (PWQ, None, 0), (PWQ, None, 224 * 8192), (PWQ, None, 447 * 8192),
             (PW2, 200704, 0), (PK, 1 << 20, 0), (PV_, 1 << 20, 0), (PWO, 458752, 0), (S_WSP, 32 * PART, MP_OFF), (S_WSP, 32 * PART, SP_OFF),
             (S_WSP, 32 * PART, MP_OFF + 31 * PART), (S_WSP, 32 * PART, SP_OFF + 31 * PART), (PW1, None, 447 * 3584), (PX, None, 1835008 - 64)]
    for k, (ptr, jmul, off) in enumerate(pages):
        a(f"s_cmp_eq_u32 s{S_X1}, {k}")
        a(f"s_cbranch_scc0 L_tw{k}")
        if jmul:
            a(f"s_mul_i32 s{S_X2}, s{S_J}, {jmul}"); a(f"s_add_u32 s{S_X2}, s{S_X2}, {off}")
        else:
            a(f"s_mov_b32 s{S_X2}, {off}")
        a(f"s_add_u32 s6, s{ptr}, s{S_X2}"); a(f"s_addc_u32 s7, s{ptr+1}, 0")
        a(f"global_load_dword a{A_PF}, v1, s[6:7]")
        a.label(f"L_tw{k}")
    vm.issue("tw")
XR = 0
if OPT["xdma"]:
    a(f"s_lshl_b32 s{S_TMP+1}, s{S_W}, 10"); a(f"s_add_u32 s{S_TMP+1}, s{S_TMP+1}, {2*PS}")
    for ks in range(14):
        a(f"s_add_u32 m0, s{S_TMP+1}, {ks*4096 - 64*ks}")
        a("s_nop 0")
        vmem(f"buffer_load_dwordx4 v{V_T+3}, s[{S_X}:{S_X+3}], s{S_TMP} offen offset:{64*ks} lds", "x")
else:
    for ks in range(14):
        vmem(f"buffer_load_dwordx4 {vr(XR+4*ks,4)}, v{V_T+3}, s[{S_X}:{S_X+3}], s{S_TMP} offen offset:{64*ks}", "x")
a(f"s_lshl_b32 s{S_TMP}, s{S_J}, 20")
a(f"s_add_u32 s{S_K}, s{PK}, s{S_TMP}"); a(f"s_addc_u32 s{S_K+1}, s{PK+1}, 0")
a(f"s_mov_b32 s{S_K+2}, 0x100000"); a(f"s_mov_b32 s{S_K+3}, 0x20000")
a(f"s_add_u32 s{S_V}, s{PV_}, s{S_TMP}"); a(f"s_addc_u32 s{S_V+1}, s{PV_+1}, 0")
a(f"s_mov_b32 s{S_V+2}, 0x100000"); a(f"s_mov_b32 s{S_V+3}, 0x20000")
srd(S_WQ, PWQ, PWQ+1, 3670016)
srd(S_WO, PWO, PWO+1, 3670016)
srd(S_W1, PW1, PW1+1, 1605632)
srd(S_W2, PW2, PW2+1, 1605632)
srd(S_WS, S_WSP, S_WSP+1, WS_SIZE)
srd(S_B1, PB1, PB1+1, 3584)
stamp()
a(f"s_lshr_b32 s{S_A}, s{S_W}, 1"); a(f"s_and_b32 s{S_C}, s{S_W}, 1")
a(f"s_mul_i32 s{S_TMP}, s{S_A}, {BLK}"); a(f"s_mul_i32 s{S_TMP+1}, s{S_C}, {8*UNIT}")
a(f"s_add_u32 s{S_LDSW}, s{S_TMP}, s{S_TMP+1}")
for i in range(4): a(f"s_add_u32 s{S_M0+i}, s{S_LDSW}, {i*PS}")
a(f"s_lshl_b32 s{S_TMP}, s{S_A}, 14"); a(f"s_lshl_b32 s{S_TMP+1}, s{S_C}, 12")
a(f"s_add_u32 s{S_GKV}, s{S_TMP}, s{S_TMP+1}")
a(f"s_sub_u32 s{S_KOFF}, s{S_GKV}, 0x8000"); a(f"s_sub_u32 s{S_VOFF}, s{S_GKV}, 0x8000")
a(f"s_lshl_b32 s{S_TMP}, s{S_A}, 5"); a(f"s_lshl_b32 s{S_TMP+1}, s{S_C}, 4"); a(f"s_add_u32 s{S_TMP}, s{S_TMP}, s{S_TMP+1}")
a(f"s_mul_i32 s{S_BG1}, s{S_TMP}, 3584"); a(f"s_mul_i32 s{S_TMP+1}, s{S_J}, 448"); a(f"s_add_u32 s{S_BG1}, s{S_BG1}, s{S_TMP+1}")
a(f"s_lshl_b32 s{S_TMP}, s{S_C}, 17")
a(f"s_lshl_b32 s{S_TMP+1}, s{S_J}, 10"); a(f"s_add_u32 s{S_TMP}, s{S_TMP}, s{S_TMP+1}")
a(f"s_lshl_b32 s{S_TMP+1}, s{S_A}, 9"); a(f"s_add_u32 s{S_BQP}, s{S_TMP}, s{S_TMP+1}")
a(f"s_mul_i32 s{S_TMP}, s{S_J}, 224"); a(f"s_lshl_b32 s{S_TMP+1}, s{S_C}, 3"); a(f"s_add_u32 s{S_TMP}, s{S_TMP}, s{S_TMP+1}")
a(f"s_mul_i32 s{S_BG2}, s{S_TMP}, 896"); a(f"s_mul_i32 s{S_TMP+2}, s{S_A}, 448"); a(f"s_add_u32 s{S_BG2}, s{S_BG2}, s{S_TMP+2}")
a(f"s_lshl_b32 s{S_TMP}, s{S_J}, 9"); a(f"s_add_u32 s{S_TMP}, s{S_TMP}, s{S_TMP+1}")
a(f"s_mul_i32 s{S_BOP}, s{S_TMP}, 896"); a(f"s_add_u32 s{S_BOP}, s{S_BOP}, s{S_TMP+2}")
a(f"s_mov_b32 s{S_THR}, {OPT['thr']}")
def dma_voffsets(which):
    a(f"v_lshrrev_b32 v{V_T+4}, 5, v{V_LANE}")
    a(f"v_and_b32 v{V_T+5}, 31, v{V_LANE}")
    a(f"v_lshlrev_b32 v{V_T+5}, 4, v{V_T+5}")
    if "1" in which:
        a(f"v_mul_u32_u24 v{V_DW1}, {4*3584}, v{V_T+4}"); a(f"v_add_u32 v{V_DW1}, v{V_DW1}, v{V_T+5}")
    if "q" in which: a(f"v_lshl_add_u32 v{V_DWQ}, v{V_T+4}, 15, v{V_T+5}")
    if "o" in which: a(f"v_lshl_add_u32 v{V_DO}, v{V_T+4}, 13, v{V_T+5}")
    if "w" in which:
        a(f"v_mul_u32_u24 v{V_DWW}, {16*896}, v{V_T+4}"); a(f"v_add_u32 v{V_DWW}, v{V_DWW}, v{V_T+5}")
        a(f"v_cmp_lt_u32 vcc, {27*16}, v{V_T+5}")
        a(f"v_mov_b32 v{V_T+6}, 0x40000000")
        a("s_nop 1")
        a(f"v_cndmask_b32 v{V_DWW}, v{V_DWW}, v{V_T+6}, vcc")
dma_voffsets("1qow")
if OPT["pfpos"] < 3:
    emit_units(stage_dma(0), ("st", 0))
    emit_units(stage_dma(1), ("st", 1))
def rowp_cc():
    a(f"v_bfe_u32 v{V_ROWP}, v{V_LANE}, 2, 2")
    a(f"v_lshrrev_b32 v{V_CC}, 4, v{V_LANE}")
    a(f"v_lshl_add_u32 v{V_ROWP}, v{V_CC}, 2, v{V_ROWP}")
    a(f"v_mul_u32_u24 v{V_ROWP}, {UNIT}, v{V_ROWP}")
    a(f"v_and_b32 v{V_CC}, 3, v{V_LANE}")
rowp_cc()

PFD = OPT["pfd"]
def prefetch(kind, gran):
    sh = 6 if gran == 64 else 7
    a(f"s_lshl_b32 s{S_TMP}, s{S_T}, 2"); a(f"s_add_u32 s{S_TMP}, s{S_TMP}, s{S_W}")
    T0, T1 = V_T + 4, V_T + 5
    def masked(n):
        if n < 64:
            a(f"v_cmp_lt_u32 vcc, {n-1}, v{V_LANE}")
            a(f"v_mov_b32 v{T1}, 0x40000000")
            a("s_nop 1")
            a(f"v_cndmask_b32 v{T0}, v{T0}, v{T1}, vcc")
    if kind in ("w1", "wq"):
        rowb = 512 if kind == "w1" else 1024
        rs = 3584 if kind == "w1" else 8192
        if kind == "w1": rowb, per_row = 640, 8
        per_row = 8 if kind == "w1" else rowb // gran
        step = 64 if kind == "w1" else gran
        n = 448 * per_row // 128
        a(f"s_mul_i32 s{S_TMP}, s{S_TMP}, {n}")
        a(f"v_add_u32 v{T0}, s{S_TMP}, v{V_LANE}")
        lgp = per_row.bit_length() - 1
        a(f"v_lshrrev_b32 v{T1}, {lgp}, v{T0}")
        a(f"v_and_b32 v{T0}, {per_row-1}, v{T0}")
        a(f"v_mul_u32_u24 v{T0}, {step}, v{T0}")
        a(f"s_mov_b32 s{S_TMP+1}, {rs}")
        a(f"v_mad_u32_u24 v{T0}, v{T1}, s{S_TMP+1}, v{T0}")
        masked(n)
        a(f"s_mul_i32 s{S_TMP+1}, s{S_J}, {448 if kind == 'w1' else 1024}")
        sr_ = S_W1 if kind == "w1" else S_WQ
        vmem(f"buffer_load_dword a{A_PF}, v{T0}, s[{sr_}:{sr_+3}], s{S_TMP+1} offen", "pf")
    else:
        size = {"w2": 200704, "wo": 458752, "k": 1 << 20, "v": 1 << 20, "k0": PFD * 32768, "v0": PFD * 32768}[kind]
        sr_ = {"w2": S_W2, "wo": S_WO, "k": S_K, "v": S_V, "k0": S_K, "v0": S_V}[kind]
        n = (size // gran + 127) // 128
        a(f"s_mul_i32 s{S_TMP}, s{S_TMP}, {n*gran}")
        if kind in ("w2", "wo"):
            a(f"s_mul_i32 s{S_TMP+1}, s{S_J}, {size}"); a(f"s_add_u32 s{S_TMP}, s{S_TMP}, s{S_TMP+1}")
        a(f"v_lshlrev_b32 v{T0}, {sh}, v{V_LANE}")
        masked(n)
        for i in range((n + 63) // 64):
            vmem(f"buffer_load_dword a{A_PF}, v{T0}, s[{sr_}:{sr_+3}], s{S_TMP} offen", "pf")
            if i + 1 < (n + 63) // 64: a(f"s_add_u32 s{S_TMP}, s{S_TMP}, {64*gran}")
GR = OPT["gran"]
def early_pf(which):
    if not OPT["prefetch"]: return
    for kind in which: prefetch(kind, GR)
if OPT["pfpos"] == 0:
    early_pf(("w1", "wq", "w2", "k0", "v0"))
if OPT["pfpos"] == 4: early_pf(("w1", "wq", "w2"))
if OPT["pfpos"] in (0, 1, 4):
    a(f"v_lshlrev_b32 v{V_T+6}, 3, v{VG_}")
    a(f"s_mul_i32 s{S_TMP}, s{S_J}, 448"); a(f"s_lshl_b32 s{S_TMP+1}, s{S_W}, 7"); a(f"s_add_u32 s{S_TMP}, s{S_TMP}, s{S_TMP+1}")
    for fb in range(4):
        vmem(f"buffer_load_dwordx2 {ar(A_BIAS+2*fb,2)}, v{V_T+6}, s[{S_B1}:{S_B1+3}], s{S_TMP} offen offset:{32*fb}", "b1")
if OPT["pfpos"] == 1: early_pf(("w1",))

stamp()
vm.wait("x")
if OPT["xdma"]:
    a(f"v_lshlrev_b32 v{V_T+6}, 4, v{V_LANE}")
    a(f"s_lshl_b32 s{S_TMP}, s{S_W}, 10"); a(f"s_add_u32 s{S_TMP}, s{S_TMP}, {2*PS}")
    a(f"v_add_u32 v{V_T+6}, s{S_TMP}, v{V_T+6}")
    for ks in range(14): lds(f"ds_read_b128 {vr(XR+4*ks,4)}, v{V_T+6} offset:{ks*4096}", "xr")
    lg.wait_all()
stamp()
XF = 112
for i in range(56):
    a(f"v_lshlrev_b32 v{XF+2*i}, 16, v{XR+i}")
    a(f"v_and_b32 v{XF+2*i+1}, 0xffff0000, v{XR+i}")
ACC = 56
fstamp()
if OPT["pfpos"] in (3, 4): emit_units(stage_dma(0), ("st", 0))
fstamp()
for c in range(4): a(f"v_pk_add_f32 {vr(ACC+2*c,2)}, {vr(XF+4*c,2)}, {vr(XF+4*c+2,2)}")
for n_, i in enumerate(range(8, 56)):
    c = n_ % 4
    a(f"v_pk_add_f32 {vr(ACC+2*c,2)}, {vr(ACC+2*c,2)}, {vr(XF+2*i,2)}")
a(f"v_pk_add_f32 {vr(ACC,2)}, {vr(ACC,2)}, {vr(ACC+2,2)}")
a(f"v_pk_add_f32 {vr(ACC+4,2)}, {vr(ACC+4,2)}, {vr(ACC+6,2)}")
a(f"v_pk_add_f32 {vr(ACC,2)}, {vr(ACC,2)}, {vr(ACC+4,2)}")
a(f"v_add_f32 v{ACC}, v{ACC}, v{ACC+1}")
xlane("v_add_f32", ACC, ACC+1)
VMEAN, VMB = ACC + 2, ACC + 4
a(f"v_mul_f32 v{VMEAN}, {f32(1.0/448)}, v{ACC}")
a(f"v_mov_b32 v{VMB}, v{VMEAN}")
round_bf16(VMB, ACC+1)
a(f"v_mov_b32 v{VMB+1}, v{VMB}")
VAR = 64
XCL = 2 * PS
if OPT["pfpos"] == 1: early_pf(("wq", "w2"))
fstamp()
if OPT["pfpos"] in (3, 4): emit_units(stage_dma(1), ("st", 1))
fstamp()
if OPT["pfpos"] == 2:
    a(f"v_lshlrev_b32 v{V_T+4}, 3, v{VG_}")
    a(f"s_mul_i32 s{S_TMP}, s{S_J}, 448"); a(f"s_lshl_b32 s{S_TMP+1}, s{S_W}, 7"); a(f"s_add_u32 s{S_TMP}, s{S_TMP}, s{S_TMP+1}")
    for fb in range(4):
        vmem(f"buffer_load_dwordx2 {ar(A_BIAS+2*fb,2)}, v{V_T+4}, s[{S_B1}:{S_B1+3}], s{S_TMP} offen offset:{32*fb}", "b1")
    early_pf(("w1", "wq", "w2"))

a(f"v_lshlrev_b32 v{V_T+6}, 4, v{V_LANE}")
a(f"s_lshl_b32 s{S_TMP}, s{S_W}, 10"); a(f"s_add_u32 s{S_TMP}, s{S_TMP}, {XCL}")
a(f"v_add_u32 v{V_T+6}, s{S_TMP}, v{V_T+6}")
for ks in range(14):
    for i in range(4*ks, 4*ks+4):
        a(f"v_pk_add_f32 {vr(XF+2*i,2)}, {vr(XF+2*i,2)}, {vr(VMB,2)} neg_lo:[0,1] neg_hi:[0,1]")
    for i in range(4*ks, 4*ks+4):
        c = i % 4
        if i < 4: a(f"v_pk_mul_f32 {vr(VAR+2*c,2)}, {vr(XF+2*i,2)}, {vr(XF+2*i,2)}")
        else: a(f"v_pk_fma_f32 {vr(VAR+2*c,2)}, {vr(XF+2*i,2)}, {vr(XF+2*i,2)}, {vr(VAR+2*c,2)}")
if OPT["pfpos"] == 3:
    a(f"v_lshlrev_b32 v{V_T+4}, 3, v{VG_}")
    a(f"s_mul_i32 s{S_TMP}, s{S_J}, 448"); a(f"s_lshl_b32 s{S_TMP+1}, s{S_W}, 7"); a(f"s_add_u32 s{S_TMP}, s{S_TMP}, s{S_TMP+1}")
    for fb in range(4):
        vmem(f"buffer_load_dwordx2 {ar(A_BIAS+2*fb,2)}, v{V_T+4}, s[{S_B1}:{S_B1+3}], s{S_TMP} offen offset:{32*fb}", "b1")
    early_pf(("w1", "wq", "w2"))

fstamp()
a(f"v_pk_add_f32 {vr(VAR,2)}, {vr(VAR,2)}, {vr(VAR+2,2)}")
a(f"v_pk_add_f32 {vr(VAR+4,2)}, {vr(VAR+4,2)}, {vr(VAR+6,2)}")
a(f"v_pk_add_f32 {vr(VAR,2)}, {vr(VAR,2)}, {vr(VAR+4,2)}")
a(f"v_add_f32 v{VAR}, v{VAR}, v{VAR+1}")
xlane("v_add_f32", VAR, VAR+1)
a(f"v_sub_f32 v{VAR+2}, v{VMEAN}, v{VMB}")
a(f"v_mul_f32 v{VAR+2}, v{VAR+2}, v{VAR+2}")
a(f"v_mov_b32 v{VAR+3}, {f32(1.0/448)}")
a(f"v_fma_f32 v{VAR}, v{VAR}, v{VAR+3}, -v{VAR+2}")
a(f"v_max_f32 v{VAR}, 0, v{VAR}")
a(f"v_mov_b32 v{VAR+4}, v{VAR}")
round_bf16(VAR+4, VAR+1)
a(f"v_add_f32 v{VAR+4}, {f32(1e-5)}, v{VAR+4}")
round_bf16(VAR+4, VAR+1)
a(f"v_sqrt_f32 v{VAR+4}, v{VAR+4}"); a("s_nop 0")
round_bf16(VAR+4, VAR+1)
a(f"v_rcp_f32 v{VAR+5}, v{VAR+4}"); a("s_nop 0")
fstamp()
CQ = math.log2(math.e) / 16
a(f"v_mul_f32 v{VAR+2}, {f32(CQ)}, v{VAR+5}")
a(f"v_mov_b32 v{VAR+3}, v{VAR+2}")
for ks in range(14):
    for i in range(4*ks, 4*ks+4):
        a(f"v_pk_mul_f32 {vr(XF+2*i,2)}, {vr(XF+2*i,2)}, {vr(VAR+2,2)}")
    for i in range(4*ks, 4*ks+4):
        a(f"v_cvt_pk_bf16_f32 v{XR+i}, v{XF+2*i}, v{XF+2*i+1}")
    lds(f"ds_write_b128 v{V_T+6}, {vr(XR+4*ks,4)} offset:{ks*4096}")
a(f"v_mul_f32 v{VAR+6}, v{VAR+5}, v{VAR+5}")
a(f"v_mul_f32 v{VAR+6}, v{VAR+6}, v{VAR}")
round_bf16(VAR+6, VAR+7)
a(f"v_add_f32 v{VAR+6}, {f32(1e-5)}, v{VAR+6}")
round_bf16(VAR+6, VAR+7)
a(f"v_sqrt_f32 v{VAR+6}, v{VAR+6}"); a("s_nop 0")
round_bf16(VAR+6, VAR+7)
a(f"v_rcp_f32 v{VAR+6}, v{VAR+6}"); a("s_nop 0")
a(f"v_mul_f32 v{VAR+6}, {f32(1.0/CQ)}, v{VAR+6}")
a(f"s_lshl_b32 s{S_TMP}, s{S_W}, 6"); a(f"s_add_u32 s{S_TMP}, s{S_TMP}, {STATS}")
a(f"v_lshlrev_b32 v{V_T+5}, 2, v{VQ_}"); a(f"v_add_u32 v{V_T+5}, s{S_TMP}, v{V_T+5}")
lds(f"ds_write_b32 v{V_T+5}, v{VAR+6}")
a(f"v_lshlrev_b32 v{V_T+6}, 4, v{V_LANE}"); a(f"v_add_u32 v{V_T+6}, {XCL}, v{V_T+6}")
a(f"v_lshlrev_b32 v{V_T+7}, 2, v{VQ_}"); a(f"v_add_u32 v{V_T+7}, {STATS}, v{V_T+7}")
a(f"s_lshl_b32 s{S_TMP}, s{S_W}, 7")
a(f"v_lshl_add_u32 v{V_AA[0]}, v{V_CC}, 3, v{V_ROWP}")
a(f"v_add_u32 v{V_AA[0]}, s{S_TMP}, v{V_AA[0]}")
a(f"v_add_u32 v{V_AA[1]}, {2*PS}, v{V_AA[0]}")
fstamp()
lg.wait_all()
a("s_barrier")
fstamp()
for f in range(56):
    lds(f"ds_read_b128 {ar(4*f,4)}, v{V_T+6} offset:{f*1024}", "xc")
    if f % 12 == 11: a("s_waitcnt lgkmcnt(4)"); lg.ops = lg.ops[-4:]
for qb in range(4): lds(f"ds_read_b32 v{V_SC+2*qb+1}, v{V_T+7} offset:{qb*64}", "sc")
lg.wait_all()
fstamp()
vm.wait(("st", 1))
fstamp()
a("s_barrier")
dump_regs("xc", "a", 0, 224)
stamp(OPT["fine"] != 2)
emit_units(stage_dma(2), ("st", 2))
emit_units(stage_dma(3), ("st", 3))
if OPT["pfpos"] in (1, 2, 3, 4): early_pf(("k0", "v0"))

RING_A = ("a", 236); RING_V = ("v", V_F)
xcf = lambda ks, qb: ar((ks * 4 + qb) * 4, 4)
H1 = 0; HP = 64; QA = 96; GA = 112
h1acc = lambda fb, qb: vr(H1 + (fb * 4 + qb) * 4, 4)
qacc = lambda db, qb: vr(QA + (db * 4 + qb) * 4, 4)
hfrag = lambda ks, qb: ar((ks * 4 + qb) * 4, 4)
g2acc = lambda nb, qb: ar(GA + (nb * 4 + qb) * 4, 4)
VQA = [V_DW1 - 0, 0]
VQA = [V_KA, V_VA]
a(f"s_mul_i32 s{S_TMP}, s{S_A}, {BLK}"); a(f"s_lshl_b32 s{S_TMP+1}, s{S_C}, 8"); a(f"s_add_u32 s{S_TMP}, s{S_TMP}, s{S_TMP+1}")
a(f"v_lshl_add_u32 v{VQA[0]}, v{V_CC}, 4, v{V_ROWP}")
a(f"v_add_u32 v{VQA[0]}, s{S_TMP}, v{VQA[0]}")
a(f"v_add_u32 v{VQA[1]}, {2*PS}, v{VQA[0]}")

def att_reads(p, f):
    if f < 16:
        kb, x = f // 8, f % 8
        return [f"ds_read_b128 {{r}}, v{V_KA if x < 4 else V_KA2} offset:{((p + 1) % 2) * PS + kb*512 + x*64}"]
    return trd(V_VA, (p % 2) * PS + (f - 16) * 32)
g1 = gemm_groups("G1", 7, 0, h1acc, xcf, RING_A, V_AA, "st", first_top=False)
qp = gemm_groups("QP", 14, 7, qacc, xcf, RING_A, VQA, "st")
g2 = gemm_groups("G2", 7, 21, g2acc, hfrag, RING_A, V_AA, "st")
allg = g1 + qp + g2
POSTA = [(att_reads(-1, i), RING_V) for i in range(LA)]
allgaps = prep_groups(allg, post=POSTA)
gemm_dma(allg, allgaps, stage_dma, "st", skip=(3,))
fq = allgaps[4*56:4*168]; fg = allgaps[4*168:]

C1 = 2 * math.sqrt(2 / math.pi) * math.log2(math.e); C2 = C1 * 0.044715
def gelu_stream():
    st = [f"s_mov_b32 s{S_X1}, {f32(-C2)}", f"v_mov_b32 v{V_T+7}, {f32(-C1)}", I_wvm("b1")]
    for fb in range(4):
        st += [f"v_accvgpr_read_b32 v{V_T}, a{A_BIAS+2*fb}", f"v_accvgpr_read_b32 v{V_T+1}, a{A_BIAS+2*fb+1}", "s_nop 0",
               f"v_lshlrev_b32 v{V_B4}, 16, v{V_T}", f"v_and_b32 v{V_B4+1}, 0xffff0000, v{V_T}",
               f"v_lshlrev_b32 v{V_B4+2}, 16, v{V_T+1}", f"v_and_b32 v{V_B4+3}, 0xffff0000, v{V_T+1}"]
        for qb in range(4):
            base = H1 + (fb * 4 + qb) * 4
            st += [f"v_fma_f32 v{base+r}, v{base+r}, v{V_SC+2*qb+1}, v{V_B4+r}" for r in range(4)]
            st += [f"v_mul_f32 v{V_T+r}, v{base+r}, v{base+r}" for r in range(4)]
            st += [f"v_fma_f32 v{V_T+r}, v{V_T+r}, s{S_X1}, v{V_T+7}" for r in range(4)]
            st += [f"v_mul_f32 v{V_T+r}, v{V_T+r}, v{base+r}" for r in range(4)]
            st += [f"v_exp_f32 v{V_T+r}, v{V_T+r}" for r in range(4)]
            st += [f"v_add_f32 v{V_T+r}, 1.0, v{V_T+r}" for r in range(4)]
            st += [f"v_rcp_f32 v{V_T+r}, v{V_T+r}" for r in range(4)]
            st += [f"v_mul_f32 v{base+r}, v{base+r}, v{V_T+r}" for r in range(4)]
            hp = HP + ((fb // 2) * 4 + qb) * 4 + (fb % 2) * 2
            st += [f"v_cvt_pk_bf16_f32 v{hp}, v{base}, v{base+1}", f"v_cvt_pk_bf16_f32 v{hp+1}, v{base+2}, v{base+3}"]
    st += [f"s_lshl_b32 s{S_X1}, s{S_W}, 1", f"s_add_u32 s{S_X2}, s{S_X1}, 1", f"s_min_u32 s{S_X2}, s{S_X2}, 6",
           f"s_lshl_b32 s{S_X1}, s{S_X1}, 12", f"s_lshl_b32 s{S_X2}, s{S_X2}, 12",
           f"v_lshlrev_b32 v{V_T+6}, 4, v{V_LANE}", f"v_add_u32 v{V_T+6}, {HL}, v{V_T+6}",
           f"v_add_u32 v{V_T+5}, s{S_X2}, v{V_T+6}", f"v_add_u32 v{V_T+4}, s{S_X1}, v{V_T+6}"]
    st += [I_lds(f"ds_write_b128 v{V_T+5}, {vr(HP+16+4*qb,4)} offset:{qb*1024}", "hw") for qb in range(4)]
    st += [I_lds(f"ds_write_b128 v{V_T+4}, {vr(HP+4*qb,4)} offset:{qb*1024}", "hw") for qb in range(4)]
    st += [I_wlg("hw")]
    return st
GE = OPT["gelu_end"]
place_stream(fq, gelu_stream(), 4*2, 4*(8*GE) - 1)
st = [f"s_mul_i32 s{S_X1}, s{S_A}, {BLK}", f"s_mul_i32 s{S_X2}, s{S_C}, 224", f"s_add_u32 s{S_X1}, s{S_X1}, s{S_X2}",
      f"v_lshl_add_u32 v{V_AA[0]}, v{V_CC}, 3, v{V_ROWP}", f"v_add_u32 v{V_AA[0]}, s{S_X1}, v{V_AA[0]}", f"v_add_u32 v{V_AA[1]}, {2*PS}, v{V_AA[0]}"]
st += [I_lds(f"ds_read_b128 {ar(4*f,4)}, v{V_T+6} offset:{f*1024}", "hr") for f in range(28)] + [I_wlg("hr")]
place_stream(fq, st, 4*(8*(GE+1)), 4*(8*14) - 5)

def q_frag(f):
    x, qb = f // 4, f % 4
    b0 = QA + ((2 * x) * 4 + qb) * 4; b1_ = QA + ((2 * x + 1) * 4 + qb) * 4
    st = []
    t = 4 * f
    st += [f"v_cvt_pk_bf16_f32 v{t}, v{b0}, v{b0+1}", f"v_cvt_pk_bf16_f32 v{t+1}, v{b0+2}, v{b0+3}",
           f"v_cvt_pk_bf16_f32 v{t+2}, v{b1_}, v{b1_+1}", f"v_cvt_pk_bf16_f32 v{t+3}, v{b1_+2}, v{b1_+3}"]
    return st
UQW, UQR = V_T + 5, V_T + 4
def q_write(fs, tag): return [I_lds(f"ds_write_b128 v{UQW}, {vr(4*f,4)} offset:{(f - fs[0])*1024}", tag) for f in fs] + [I_wlg(tag)]
def q_read(fs, tag): return [I_lds(f"ds_read_b128 {vr(64+4*f,4)}, v{UQR} offset:{(f - fs[0])*1024}", tag) for f in fs] + [I_wlg(tag)]
R1, R2, R3 = list(range(0, 7)), list(range(7, 14)), [14, 15]
SG = lambda s: 4 * 7 * (s - 21)
st = [f"s_mul_i32 s{S_X1}, s{S_W}, 7168", f"s_xor_b32 s{S_X2}, s{S_W}, 1", f"s_mul_i32 s{S_X2}, s{S_X2}, 7168",
      f"v_lshlrev_b32 v{V_T+6}, 4, v{V_LANE}", f"v_add_u32 v{V_T+6}, {XREG}, v{V_T+6}",
      f"v_add_u32 v{UQW}, s{S_X1}, v{V_T+6}", f"v_add_u32 v{UQR}, s{S_X2}, v{V_T+6}"]
for f in R1: st += q_frag(f)
st += q_write(R1, "qw1")
place_stream(fg, st, SG(21) + 6, SG(22) - 1)
st = q_read(R1, "qr1")
for f in R2[:4]: st += q_frag(f)
place_stream(fg, st, SG(22) + 1, SG(23) - 1)
st = []
for f in R2[4:]: st += q_frag(f)
st += q_write(R2, "qw2")
place_stream(fg, st, SG(23) + 1, SG(24) - 1)
st = q_read(R2, "qr2")
for f in R3: st += q_frag(f)
place_stream(fg, st, SG(24) + 1, SG(25) - 1)
place_stream(fg, q_write(R3, "qw3"), SG(25) + 1, SG(26) - 1)
place_stream(fg, q_read(R3, "qr3"), SG(26) + 1, SG(26) + 12)
st = [f"v_and_b32 v{V_T}, 15, v{V_LANE}", f"v_lshrrev_b32 v{V_T+1}, 4, v{V_LANE}",
      f"s_mul_i32 s{S_X1}, s{S_C}, {BLK}", f"s_lshl_b32 s{S_X2}, s{S_C}, 8",
      f"v_mul_u32_u24 v{V_KA}, {UNIT}, v{V_T}", f"v_lshl_add_u32 v{V_KA}, v{V_T+1}, 4, v{V_KA}",
      f"v_add_u32 v{V_KA}, s{S_X1}, v{V_KA}",
      f"v_subrev_u32 v{V_KA2}, s{S_X2}, v{V_KA}", f"v_add_u32 v{V_KA}, s{S_X2}, v{V_KA}",
      f"v_lshl_add_u32 v{V_VA}, v{V_CC}, 3, v{V_ROWP}", f"v_add_u32 v{V_VA}, s{S_X1}, v{V_VA}", f"v_add_u32 v{V_VA}, {2*PS}, v{V_VA}"]
st += [f"v_mov_b32 v{V_NEG+i}, 0" for i in range(16)]
def _pfs():
    a(f"s_cmp_eq_u32 s{S_C}, 0")
    a(f"s_cselect_b32 s{S_B1}, s{S_K}, s{S_V}"); a(f"s_cselect_b32 s{S_B1+1}, s{S_K+1}, s{S_V+1}")
    a(f"s_mov_b32 s{S_B1+2}, 0x100000")
    a(f"s_mov_b32 s{S_TMP+3}, {(PFD-1)*0x8000}")
    a(f"s_lshl_b32 s{S_X1}, s{S_T}, 10"); a(f"s_lshl_b32 s{S_X2}, s{S_A}, 9"); a(f"s_add_u32 s{S_X1}, s{S_X1}, s{S_X2}")
    a(f"v_lshlrev_b32 v226, 7, v{V_LANE}"); a(f"v_add_u32 v226, s{S_X1}, v226")
    a(f"v_cmp_lt_u32 vcc, 3, v{V_LANE}"); a(f"v_mov_b32 v227, 0x40000000"); a("s_nop 1")
    a(f"v_cndmask_b32 v226, v226, v227, vcc")
st += [It(8, _pfs, "v")]
place_stream(fg, st, SG(26) + 13, SG(28) - 1)

emit_groups(allg[:56], post=[(g["reads"], g["ring"]) for g in allg[56:59]])
stamp()
emit_groups(allg[56:168], pre_issued=LA, post=[(g["reads"], g["ring"]) for g in allg[168:171]])
dump_regs("hp", "v", HP, 32)
stamp()
if OPT["prefetch"] and OPT["kvpf"] == 2:
    for kind in ("k", "v"): prefetch(kind, GR)
emit_groups(allg[168:], pre_issued=LA, post=POSTA)
stamp()

def att_mf(p, f, czero=False):
    out = []
    for qb in range(4):
        if f < 16:
            kb, x = f // 8, f % 8
            S = V_S + (kb * 4 + qb) * 4
            out.append(mf16(vr(S, 4), vr(V_Q + (x * 4 + qb) * 4, 4), vr(V_NEG + 4 * qb, 4) if x == 0 else vr(S, 4)))
        else:
            o = ar(((f - 16) * 4 + qb) * 4, 4)
            out.append(mf16(o, vr(V_P + (p % 2) * 16 + 4 * qb, 4), "0" if czero else o))
    return out
def sm_stream(p, kb):
    st = []
    Pb = V_P + ((p + 1) % 2) * 16
    lo = V_L + (p % 2) * 4; ln = V_L + ((p + 1) % 2) * 4
    items = [(qb, r) for qb in range(4) for r in range(4)]
    n = len(items)
    T = lambda k: V_T + (k % 8)
    for k in range(n + 3):
        if k < n:
            qb, r = items[k]
            st.append(f"v_exp_f32 v{T(k)}, v{V_S + (kb*4+qb)*4 + r}")
        if 1 <= k <= n:
            qb, r = items[k - 1]
            src = lo + qb if (kb == 0 and r == 0) else ln + qb
            st.append(f"v_add_f32 v{ln + qb}, v{T(k-1)}, v{src}")
        if k >= 3 and (k - 3) % 2 == 0 and (k - 2) < n:
            j = k - 3
            qb, r = items[j]
            st.append(f"v_cvt_pk_bf16_f32 v{Pb + qb*4 + kb*2 + r//2}, v{T(j)}, v{T(j+1)}")
    return st
def rescale(p, first):
    lo = V_L + (p % 2) * 4
    a("s_nop 7"); a("s_nop 3")
    MX = V_T
    for qb in range(4):
        b0 = V_S + qb * 4; b1_ = V_S + (4 + qb) * 4
        a(f"v_max3_f32 v{MX+qb}, v{b0}, v{b0+1}, v{b0+2}")
    for qb in range(4):
        b0 = V_S + qb * 4; b1_ = V_S + (4 + qb) * 4
        a(f"v_max3_f32 v{MX+qb}, v{MX+qb}, v{b0+3}, v{b1_}")
    for qb in range(4):
        b0 = V_S + qb * 4; b1_ = V_S + (4 + qb) * 4
        a(f"v_max3_f32 v{MX+qb}, v{MX+qb}, v{b1_+1}, v{b1_+2}")
    for qb in range(4):
        b1_ = V_S + (4 + qb) * 4
        a(f"v_max_f32 v{MX+qb}, v{MX+qb}, v{b1_+3}")
    a("s_nop 0")
    xlane4("v_max_f32", [MX + q for q in range(4)], [V_T + 4 + q for q in range(4)])
    if not first:
        for qb in range(4): a(f"v_max_f32 v{MX+qb}, 0, v{MX+qb}")
    for qb in range(4):
        for kb in range(2):
            for r in range(4):
                a(f"v_sub_f32 v{V_S+(kb*4+qb)*4+r}, v{V_S+(kb*4+qb)*4+r}, v{MX+qb}")
        for r in range(4):
            a(f"v_sub_f32 v{V_NEG+qb*4+r}, v{V_NEG+qb*4+r}, v{MX+qb}")
    if not first:
        for qb in range(4): a(f"v_exp_f32 v{MX+qb}, -v{MX+qb}")
        a("s_nop 0")
        for qb in range(4): a(f"v_mul_f32 v{lo+qb}, v{lo+qb}, v{MX+qb}")
        for d in range(16):
            for qb in range(4):
                for r in range(4): a(f"v_accvgpr_read_b32 v{V_T+4+r}, a{(d*4+qb)*4+r}")
                a("s_nop 0")
                for r in range(4): a(f"v_mul_f32 v{V_T+4+r}, v{V_T+4+r}, v{MX+qb}")
                for r in range(4): a(f"v_accvgpr_write_b32 a{(d*4+qb)*4+r}, v{V_T+4+r}")
    for kb in range(2):
        st = sm_stream(p, kb)
        for i, x in enumerate(st):
            a(x)
            if x.startswith("v_exp") and i + 1 < len(st) and not st[i+1].startswith("v_exp"):
                dst = x.split()[1].rstrip(",")
                if dst in st[i+1]: a("s_nop 0")
    a("s_nop 1")
slow = []
V_PFO, V_PFD = 226, 227
S_PFS = S_B1; S_PFO = S_TMP + 3
def sm_place(gaps, p, g_s0, g_s1, g_end):
    Pb = V_P + ((p + 1) % 2) * 16
    lo = V_L + (p % 2) * 4; ln = V_L + ((p + 1) % 2) * 4
    items = [(kb, qb, r) for kb in range(2) for qb in range(4) for r in range(4)]
    NT = 8
    T = lambda k: V_T + (k % NT)
    E = [f"v_exp_f32 v{T(k)}, v{V_S + (kb*4+qb)*4 + r}" for k, (kb, qb, r) in enumerate(items)]
    A = []
    for k, (kb, qb, r) in enumerate(items):
        src = lo + qb if (kb == 0 and r == 0) else ln + qb
        A.append(f"v_add_f32 v{ln + qb}, v{T(k)}, v{src}")
    C = [f"v_cvt_pk_bf16_f32 v{Pb + items[2*j][1]*4 + items[2*j][0]*2 + items[2*j][2]//2}, v{T(2*j)}, v{T(2*j+1)}" for j in range(16)]
    e = a_ = c = 0
    egap = {}
    for g in range(g_s0, g_end + 1):
        G = gaps[g]
        while G.cap >= 4:
            ra = a_ < 32 and a_ < e and egap[a_] < g
            rc = c < 16 and 2*c + 1 < e and egap[2*c+1] < g
            can_e = e < 32 and G.cap >= 8 and not G.v and (e < 16 or g >= g_s1) and (e < NT or (a_ > e - NT and c > (e - NT) // 2))
            pending = (e - a_) + (e // 2 - c)
            remaining_gaps = g_end - g
            if can_e and (pending < 5 or not (ra or rc)):
                G.add(E[e]); egap[e] = g; e += 1; break
            elif rc and (c <= a_ // 2 or not ra):
                G.add(C[c]); c += 1
            elif ra:
                G.add(A[a_]); a_ += 1
            elif rc:
                G.add(C[c]); c += 1
            else: break
    assert e == 32 and a_ == 32 and c == 16, (e, a_, c)

def period(p, qk=True, pv=True, sm=True, dK=None, dV=None, wait30="s_waitcnt vmcnt(1)", post=None, lab="", pre_issued=LA,
           czero=False, extra=None, top0=None, dtag=None, pf=False, nobar=False, midbar=None):
    fl = [f for f in range(32) if (f < 16 and qk) or (f >= 16 and pv)]
    n = len(fl)
    groups = [dict(reads=att_reads(p, f), mf=att_mf(p, f, czero), top=[], ring=RING_V) for f in fl]
    if top0: groups[0]["top"] = top0
    delay = {}
    inloop = lab in ("A", "B")
    if not nobar:
        groups[n - 2]["top"] = [wait30, "s_waitcnt lgkmcnt(0)", lambda: lg.ops.clear(), "s_barrier"]
        if inloop and OPT["x_nobar"] == 1: groups[n - 2]["top"] = ["s_waitcnt lgkmcnt(0)", lambda: lg.ops.clear()]
        if inloop and OPT["x_nobar"] == 2: groups[n - 2]["top"] = ["s_waitcnt lgkmcnt(0)", lambda: lg.ops.clear(), "s_barrier"]
        delay = {n: n - 2}
    if inloop and OPT["x_nodma"]: dK = dV = None
    if inloop and OPT["x_nopf"]: pf = False
    if inloop and OPT["x_nosm"]: sm = False
    if midbar is not None: groups[midbar]["top"] = groups[midbar]["top"] + ["s_barrier"]
    gaps = prep_groups(groups, pre_issued, post, delay)
    units = (dK or []) + (dV or [])
    if units: place_units(gaps, OPT["d0"], units, dtag, min(OPT["dstep"], (4 * n - 12) // len(units)))
    if pf:
        ins = f"buffer_load_dword v{V_PFD}, v{V_PFO}, s[{S_PFS}:{S_PFS+3}], s{S_PFO} offen"
        pos = min(4 * (n - 4), OPT["d0"] + 16 * OPT["dstep"] + 2)
        place_units(gaps, pos, [([f"s_add_u32 s{S_PFO}, s{S_PFO}, 0x8000"], ins)], "pf" if dtag else None, 1)
    if sm:
        sm_place(gaps, p, OPT["sm0a"], OPT["sm1a"], OPT["smend"])
        ln = V_L + ((p + 1) % 2) * 4
        tail = [f"v_max3_f32 v{V_T}, v{ln}, v{ln+1}, v{ln+2}", f"v_max_f32 v{V_T}, v{V_T}, v{ln+3}", f"v_cmp_lt_f32 vcc, s{S_THR}, v{V_T}"]
        for k, x in enumerate(tail): gaps[OPT["smend"] + 1 + k].add(x)
    if extra:
        for st, f0, f1 in extra: place_stream(gaps, st, f0, f1)
    emit_groups(groups, pre_issued=pre_issued, post=post, delay=delay)
    if sm:
        a(f"s_cbranch_vccnz L_slow{lab}")
        a.label(f"L_ret{lab}")
        slow.append((p, lab))
PR = lambda p, base=0: [(att_reads(p, base + i), RING_V) for i in range(LA)]

def store_stream(accreg, is_agpr, wsoff, tag, sreg, flags=""):
    st = [f"v_lshlrev_b32 v{V_T+6}, 4, v{V_LANE}",
          f"s_lshl_b32 s{sreg}, s{S_J}, 5", f"s_add_u32 s{sreg}, s{sreg}, s{S_T}",
          f"s_lshl_b32 s{sreg}, s{sreg}, 2", f"s_add_u32 s{sreg}, s{sreg}, s{S_W}",
          f"s_mul_i32 s{sreg}, s{sreg}, 14336", f"s_add_u32 s{sreg}, s{sreg}, {wsoff}"]
    return st
def store_body(accreg, is_agpr, tag, sreg, stage_regs, tmp, flags=""):
    st = []
    for s in range(14):
        nb, qp_ = s // 2, s % 2
        t = stage_regs + 4 * (s % 2)
        for hh in range(2):
            base = accreg + (nb * 4 + 2 * qp_ + hh) * 4
            if is_agpr:
                st += [f"v_accvgpr_read_b32 v{tmp+r}, a{base+r}" for r in range(4)] + ["s_nop 0"]
                src = tmp
            else: src = base
            st += [f"v_cvt_pk_bf16_f32 v{t+2*hh}, v{src}, v{src+1}", f"v_cvt_pk_bf16_f32 v{t+2*hh+1}, v{src+2}, v{src+3}"]
        st += [I_vm(f"buffer_store_dwordx4 {vr(t,4)}, v{V_T+6}, s[{S_WS}:{S_WS+3}], s{sreg} offen{flags}", tag), f"s_add_u32 s{sreg}, s{sreg}, 1024"]
    return st

mp = store_stream(GA, True, MP_OFF, "mp", S_X1) + store_body(GA, True, "mp", S_X1, V_P + 16, V_T, ["", " sc1", " nt", " sc0 sc1"][OPT["mpf"]])
top0 = [lambda: vm.wait(("st", 29)), "s_barrier"]
period(-1, qk=True, pv=False, sm=False, wait30=(lambda: vm.wait(("st", 30))), post=PR(0), top0=top0, extra=[(mp, 6, 63)], dtag="kk")
for i in range(8): a(f"v_mov_b32 v{V_L+i}, 0")
if OPT["prefetch"]: prefetch("wo", GR)
rescale(-1, True)
dump_regs("q", "v", V_Q, 128)
stamp()
PFL = OPT["kvpf"] == 3
W30 = "s_waitcnt vmcnt(1)" if PFL else "s_waitcnt vmcnt(0)"
period(0, dK=dma_kv("K", 0), dV=dma_kv("V", 3), post=PR(1), lab="Z", czero=True, wait30=W30, pf=PFL)
vm.ops = []
stamp()
a(f"s_mov_b32 s{S_CNT}, 14")
a(".p2align 6")
a.label("L_loop")
sv = list(lg.ops)
period(1, dK=dma_kv("K", 1), dV=dma_kv("V", 2), post=PR(2), lab="A", pf=PFL, wait30=W30)
period(2, dK=dma_kv("K", 0), dV=dma_kv("V", 3), post=PR(3), lab="B", pf=PFL, wait30=W30)
assert len(lg.ops) == len(sv), (lg.ops, sv)
a(f"s_sub_u32 s{S_CNT}, s{S_CNT}, 1")
a(f"s_cmp_lg_u32 s{S_CNT}, 0")
a("s_cbranch_scc1 L_loop")
stamp()
V_DWW = V_SC + 1
dma_voffsets("w")
op_dma = lambda s: dma_stage("OP", s, s % 4) if s < 16 else None
period(1, dK=dma_kv("K", 1), dV=dma_kv("V", 2), post=PR(2), lab="C", wait30="s_waitcnt vmcnt(0)")
period(2, dK=op_dma(0), dV=dma_kv("V", 3), post=PR(3, 16), lab="D", wait30="s_waitcnt vmcnt(0)")
vm.ops = []
LF = V_L + 4 * ((30 + 1) % 2)
SCL = 16; SCP = 24
VA1, VA2, VMGW, VMGR, VL16 = 28, 29, 30, 31, 228
def stats_a():
    st = []
    vs = [LF + q for q in range(4)]; ts = [q for q in range(4)]
    for sw in ("v_permlane16_swap_b32", "v_permlane32_swap_b32"):
        st += [f"v_mov_b32 v{t}, v{v}" for v, t in zip(vs, ts)]
        st += [f"{sw} v{v}, v{t}" for v, t in zip(vs, ts)]
        st += [f"v_add_f32 v{v}, v{v}, v{t}" for v, t in zip(vs, ts)]
    for qb in range(4):
        st += [f"v_sub_f32 v{2*qb}, 0, v{V_NEG+4*qb}", f"v_mov_b32 v{2*qb+1}, v{LF+qb}"]
    st += [f"v_and_b32 v{VA2}, 15, v{V_LANE}", f"v_lshlrev_b32 v{VA2}, 3, v{VA2}",
           f"s_lshl_b32 s{S_X1}, s{S_W}, 9", f"s_add_u32 s{S_X1}, s{S_X1}, {ML}", f"v_add_u32 v{VA1}, s{S_X1}, v{VA2}",
           f"s_xor_b32 s{S_X1}, s{S_X1}, 512", f"v_add_u32 v{VA2}, s{S_X1}, v{VA2}"]
    st += [I_lds(f"ds_write_b64 v{VA1}, {vr(2*qb,2)} offset:{qb*128}", "mlw") for qb in range(4)]
    st += [I_wlg("mlw")]
    return st
def stats_b():
    st = [I_lds(f"ds_read_b64 {vr(8+2*qb,2)}, v{VA2} offset:{qb*128}", "mlr") for qb in range(4)]
    st += [f"v_lshlrev_b32 v{VL16}, 4, v{V_LANE}",
           f"s_lshl_b32 s{S_X1}, s{S_W}, 14", f"s_add_u32 s{S_X1}, s{S_X1}, {2*PS}", f"v_add_u32 v{VMGW}, s{S_X1}, v{VL16}",
           f"s_xor_b32 s{S_X2}, s{S_W}, 1", f"s_lshl_b32 s{S_X2}, s{S_X2}, 14", f"s_add_u32 s{S_X2}, s{S_X2}, {2*PS}", f"v_add_u32 v{VMGR}, s{S_X2}, v{VL16}"]
    st += [I_wlg("mlr")]
    st += [f"v_max_f32 v{20+qb}, v{2*qb}, v{8+2*qb}" for qb in range(4)]
    for qb in range(4): st += [f"v_sub_f32 v{2*qb}, v{2*qb}, v{20+qb}", f"v_sub_f32 v{8+2*qb}, v{8+2*qb}, v{20+qb}"]
    for qb in range(4): st += [f"v_exp_f32 v{2*qb}, v{2*qb}", f"v_exp_f32 v{8+2*qb}, v{8+2*qb}"]
    st += [f"v_mul_f32 v{2*qb+1}, v{2*qb+1}, v{2*qb}" for qb in range(4)]
    st += [f"v_fma_f32 v{2*qb+1}, v{9+2*qb}, v{8+2*qb}, v{2*qb+1}" for qb in range(4)]
    st += [f"v_rcp_f32 v{2*qb+1}, v{2*qb+1}" for qb in range(4)]
    st += [f"v_mul_f32 v{SCL+qb}, v{2*qb}, v{2*qb+1}" for qb in range(4)]
    st += [f"v_mul_f32 v{SCP+qb}, v{8+2*qb}, v{2*qb+1}" for qb in range(4)]
    return st
assert ML % 1024 == 0
period(1, qk=False, pv=True, sm=False, dK=op_dma(1), dtag=("s3", 1), nobar=True,
       extra=[(stats_a(), 1, 27), (stats_b(), 29, 63)], midbar=7)
stamp()

gstamp()
a("s_nop 7"); a("s_nop 3")
a("s_barrier")
gstamp()
OFR = 32
TS = 96
TK = 160
def bsel(reg):
    if reg % 2 == 0: return vr(reg, 2), "op_sel_hi:[1,0]", "op_sel_hi:[1,0,1]"
    return vr(reg - 1, 2), "op_sel:[0,1]", "op_sel:[0,1,0]"
def merge_variant(c):
    send0 = 8 * (1 - c); keep0 = 8 * c
    for rho in range(2):
        blocks = [(dl, qb) for dl in range(4) for qb in range(4)]
        for k, (dl, qb) in enumerate(blocks):
            sb = ((send0 + 4*rho + dl) * 4 + qb) * 4
            lds(f"ds_write_b128 v{VMGW}, {ar(sb,4)} offset:{k*1024}")
            kb_ = ((keep0 + 4*rho + dl) * 4 + qb) * 4
            t = TS + 4 * k
            for r in range(4): a(f"v_accvgpr_read_b32 v{t+r}, a{kb_+r}")
            pr, s2, s3 = bsel(SCL + qb)
            for r in (0, 2): a(f"v_pk_mul_f32 {vr(t+r,2)}, {vr(t+r,2)}, {pr} {s2}")
        if c == 0: gstamp()
        lg.wait_all()
        a("s_barrier")
        if c == 0: gstamp()
        for k in range(16): lds(f"ds_read_b128 {vr(TK+4*k,4)}, v{VMGR} offset:{k*1024}", ("mr", k // 2))
        for k2 in range(8):
            lg.wait(("mr", k2))
            for k in (2*k2, 2*k2+1):
                dl, qb = blocks[k]
                t = TS + 4 * k; u = TK + 4 * k
                pr, s2, s3 = bsel(SCP + qb)
                for r in (0, 2): a(f"v_pk_fma_f32 {vr(t+r,2)}, {vr(u+r,2)}, {pr}, {vr(t+r,2)} {s3}")
            for k in (2*k2, 2*k2+1):
                dl, qb = blocks[k]
                t = TS + 4 * k
                d = 4 * rho + dl
                o = OFR + ((d // 2) * 4 + qb) * 4 + (d % 2) * 2
                a(f"v_cvt_pk_bf16_f32 v{o}, v{t}, v{t+1}"); a(f"v_cvt_pk_bf16_f32 v{o+1}, v{t+2}, v{t+3}")
        if c == 0: gstamp()
        a("s_barrier")
sv = list(lg.ops)
a(f"s_cmp_eq_u32 s{S_C}, 0")
a("s_cbranch_scc0 L_mv1")
merge_variant(0)
a("s_branch L_mvd")
a.label("L_mv1")
lg.ops = list(sv)
merge_variant(1)
a.label("L_mvd")
for f in range(16): lds(f"ds_write_b128 v{VMGW}, {vr(OFR+4*f,4)} offset:{f*1024}")
a(f"v_add_u32 v{VL16}, {2*PS}, v{VL16}")
rowp_cc()
a(f"v_lshl_add_u32 v{V_AA[0]}, v{V_CC}, 3, v{V_ROWP}")
a(f"s_mul_i32 s{S_TMP}, s{S_A}, {BLK}"); a(f"s_mul_i32 s{S_TMP+1}, s{S_C}, 224"); a(f"s_add_u32 s{S_TMP}, s{S_TMP}, s{S_TMP+1}")
a(f"v_add_u32 v{V_AA[0]}, s{S_TMP}, v{V_AA[0]}")
a(f"v_add_u32 v{V_AA[1]}, {2*PS}, v{V_AA[0]}")
lg.wait_all()
gstamp()
a("s_barrier")
gstamp()
for f in range(64):
    lds(f"ds_read_b128 {ar(4*f,4)}, v{VL16} offset:{f*1024}")
    if f % 12 == 11: a("s_waitcnt lgkmcnt(4)"); lg.ops = lg.ops[-4:]
lg.wait_all()
vm.wait(("s3", 1))
a("s_barrier")
dump_regs("o", "a", 0, 256)
stamp(OPT["fine"] == 2)
emit_units(op_dma(2), ("s3", 2))
emit_units(op_dma(3), ("s3", 3))

ofrag = lambda ks, qb: ar((ks * 4 + qb) * 4, 4)
OA = 0
opacc = lambda nb, qb: vr(OA + (nb * 4 + qb) * 4, 4)
op = gemm_groups("OP", 16, 0, opacc, ofrag, RING_V, V_AA, "s3", first_top=False)
opgaps = prep_groups(op)
gemm_dma(op, opgaps, op_dma, "s3", skip=(3,))
emit_groups(op)
stamp()
a("s_nop 7"); a("s_nop 1")
for x in store_stream(OA, False, SP_OFF, "sp", S_X1) + store_body(OA, False, "sp", S_X1, V_F, V_T, ["", " sc1", " nt", " sc0 sc1"][OPT["spf"]]): do(x)
stamp()
if OPT["stamps"]:
    a("s_waitcnt vmcnt(0) lgkmcnt(0)")
    stamp()
    a("s_waitcnt lgkmcnt(0)")
    a(f"s_cmp_lg_u32 s{S_W}, {OPT['swave']}"); a("s_cbranch_scc1 L_end")
    a(f"s_lshl_b32 s{S_TMP}, s2, 7"); a(f"s_add_u32 s{S_TMP}, s{S_TMP}, {STAMP_OFF}")
    a("v_mov_b32 v20, 0")
    a("v_mov_b32 v0, s98")
    for i in range(15): a(f"v_mov_b32 v{i+1}, s{S_ST+2*min(i, nstamp[0]-1)}")
    for q in range(4): a(f"buffer_store_dwordx4 {vr(4*q,4)}, v20, s[{S_WS}:{S_WS+3}], s{S_TMP} offen offset:{16*q}")
a.label("L_end")
a("s_endpgm")
for p, lab in slow:
    a.label(f"L_slow{lab}")
    rescale(p, False)
    a(f"s_branch L_ret{lab}")
main_text = a.text()

a = Asm()
a("s_cmp_ge_u32 s2, 448")
a("s_cbranch_scc1 LF_end")
a("s_load_dwordx2 s[4:5], s[0:1], 96")
a("s_load_dwordx2 s[6:7], s[0:1], 0")
a("s_load_dwordx4 s[24:27], s[0:1], 72")
a("s_lshl_b32 s3, s2, 8")
a("v_add_u32 v1, s3, v0")
a("v_lshlrev_b32 v2, 4, v1")
a("s_waitcnt lgkmcnt(0)")
srd(8, 4, 5, 0x4000000)
srd(12, 6, 7, 1835008)
srd(16, 24, 25, 896)
srd(20, 26, 27, 1835008)
JS = 32 * PART
for j in range(8):
    a(f"s_mov_b32 s28, {SP_OFF + j*JS}")
    a(f"buffer_load_dwordx4 {vr(16+4*j,4)}, v2, s[8:11], s28 offen")
for j in range(8):
    a(f"s_mov_b32 s28, {MP_OFF + j*JS}")
    a(f"buffer_load_dwordx4 {vr(48+4*j,4)}, v2, s[8:11], s28 offen")
a("v_lshrrev_b32 v3, 6, v1")
a("s_nop 0")
a("v_readfirstlane_b32 s29, v3")
a("s_mul_hi_u32 s30, s29, 0x12492493")
a("s_mul_i32 s31, s30, 14"); a("s_sub_u32 s31, s29, s31")
a("s_lshr_b32 s32, s30, 2")
a("s_and_b32 s33, s30, 3")
a("s_lshr_b32 s34, s31, 1")
a("s_and_b32 s35, s31, 1")
a("s_lshl_b32 s36, s32, 6"); a("s_lshl_b32 s37, s35, 5"); a("s_add_u32 s36, s36, s37")
a("s_mul_i32 s36, s36, 896")
a("s_mul_i32 s37, s33, 112"); a("s_lshl_b32 s38, s34, 4"); a("s_add_u32 s37, s37, s38"); a("s_lshl_b32 s37, s37, 1")
a("v_and_b32 v4, 15, v0"); a("v_bfe_u32 v5, v0, 4, 2")
a("v_mul_u32_u24 v6, 896, v4"); a("v_lshl_add_u32 v6, v5, 3, v6")
a("s_add_u32 s39, s36, s37")
a("v_add_u32 v6, s39, v6")
a("v_lshlrev_b32 v7, 3, v5"); a("v_add_u32 v7, s37, v7")
a("buffer_load_dwordx2 v[8:9], v6, s[12:15], 0 offen")
a("s_mov_b32 s28, 14336")
a("buffer_load_dwordx2 v[10:11], v6, s[12:15], s28 offen")
a("buffer_load_dwordx2 v[12:13], v7, s[16:19], 0 offen")
def unpack_add(dst, src, first):
    for i in range(4):
        if first:
            a(f"v_lshlrev_b32 v{dst+2*i}, 16, v{src+i}"); a(f"v_and_b32 v{dst+2*i+1}, 0xffff0000, v{src+i}")
        else:
            a(f"v_lshlrev_b32 v96, 16, v{src+i}"); a(f"v_and_b32 v97, 0xffff0000, v{src+i}")
            a(f"v_add_f32 v{dst+2*i}, v{dst+2*i}, v96"); a(f"v_add_f32 v{dst+2*i+1}, v{dst+2*i+1}, v97")
for j in range(8):
    a(f"s_waitcnt vmcnt({7 - j + 8 + 3})")
    unpack_add(80, 16 + 4*j, j == 0)
for j in range(8):
    a(f"s_waitcnt vmcnt({7 - j + 3})")
    unpack_add(88, 48 + 4*j, j == 0)
a("s_waitcnt vmcnt(0)")
a("v_lshlrev_b32 v100, 16, v12"); a("v_and_b32 v101, 0xffff0000, v12"); a("v_lshlrev_b32 v102, 16, v13"); a("v_and_b32 v103, 0xffff0000, v13")
for hh in range(2):
    for i in range(2):
        a(f"v_lshlrev_b32 v{104+4*hh+2*i}, 16, v{8+2*hh+i}"); a(f"v_and_b32 v{105+4*hh+2*i}, 0xffff0000, v{8+2*hh+i}")
a(f"s_mov_b32 s28, {f32(-math.log2(math.e))}")
for e in range(8): a(f"v_add_f32 v{88+e}, v{88+e}, v{100+e%4}")
for e in range(8): a(f"v_mul_f32 v{112+e}, s28, v{88+e}")
for e in range(8): a(f"v_exp_f32 v{112+e}, v{112+e}")
for e in range(8): a(f"v_add_f32 v{112+e}, 1.0, v{112+e}")
for e in range(8): a(f"v_rcp_f32 v{112+e}, v{112+e}")
for e in range(8): a(f"v_mul_f32 v{112+e}, v{112+e}, v{88+e}")
for e in range(8): a(f"v_fma_f32 v{112+e}, v{112+e}, v{80+e}, v{104+e}")
for hh in range(2):
    a(f"v_cvt_pk_bf16_f32 v{120+2*hh}, v{112+4*hh}, v{113+4*hh}"); a(f"v_cvt_pk_bf16_f32 v{121+2*hh}, v{114+4*hh}, v{115+4*hh}")
a("buffer_store_dwordx2 v[120:121], v6, s[20:23], 0 offen")
a("s_mov_b32 s28, 14336")
a("buffer_store_dwordx2 v[122:123], v6, s[20:23], s28 offen")
a.label("LF_end")
a("s_endpgm")
fin_text = a.text()

src = HEADER_COMMENT
src += f"; @launch kernel={KMAIN} grid=(256,1,1) block=(256,1,1) lds={LDS_TOTAL}\n"
src += f"; @launch kernel={KFIN} grid=(448,1,1) block=(256,1,1) lds=0\n"
src += '.amdgcn_target "amdgcn-amd-amdhsa--gfx950"\n.text\n'
src += kernel_begin(KMAIN) + main_text + kernel_begin(KFIN) + fin_text
src += kernel_desc(KMAIN, 512, 102, 256).replace(".text\n", "") + kernel_desc(KFIN, 128, 48, 128)
open(sys.argv[1], "w").write(src)
```

```python
import sys, math, struct
from asmlib import Asm, NAME, HEADER_COMMENT, kernel_begin, kernel_desc, vr, ar

OPT = dict(dpos=0, x_g=0, mpin=1, slp=4, polls=64, noearly=0, xdma=0, swave=0, fine=0, cpf=1, tlbw=0, pfpos=3, gcap=12, tt=1, xs=1, mpf=1, spf=1, x_nodma=0, x_nobar=0, x_nosm=0, x_nopf=0, x_nolg0=0, d0=2, sm1a=68, smend=123, W=2, dstep=4, pfd=6, qlsc=0, kvpf=3, gelu_end=11, gran=128, stamps=0, prefetch=1, thr=0x4f800000, dump="", sm0a=36, sm0b=76, sm1b=120, kstep=6, vstep=3)
for x in sys.argv[2:]:
    k, v = x.split("=")
    OPT[k] = int(v, 0) if k != "dump" else v

def f32(x):
    return "0x%08x" % struct.unpack("<I", struct.pack("<f", x))[0]

UNIT = 1056; BLK = 16 * UNIT; PS = 2 * BLK
XREG = 4 * PS
LDS_TOTAL = 163840
STATS = XREG
HL = XREG
ML = XREG
SP_OFF = 0
MP_OFF = 0x1000000
QX_OFF = 0x1E00000
QX_OFF = 0x2000000
FLG_OFF = 0x2000000
PART = 57344
DUMP_OFF = 0x3000000
STAMP_OFF = 0x7000000
WS_SIZE = 0x8000000

S_W = 3; S_WSP = 4
S_K, S_V, S_X, S_WQ, S_WO, S_W1, S_W2, S_WS, S_B1 = 8, 12, 16, 20, 24, 28, 32, 36, 40
S_J, S_T = 44, 45
S_LDSW = 46; S_GKV = 47
S_KOFF, S_VOFF = 48, 49
S_SO = 50; S_CNT = 51; S_THR = 52
S_A, S_C = 53, 54
S_TMP = 55
S_BG1, S_BQP, S_BG2, S_BOP = 60, 61, 62, 63
S_M0 = 64
S_ST = 68
S_X1 = 100; S_X2 = 101
S_NONCE = 59

V_Q = 0; V_S = 128; V_P = 160; V_NEG = 192; V_F = 208; V_SC = 224; V_T = 232; V_L = 240
V_KA2 = 246 + 0
V_KA2 = 224
V_KA = 248; V_VA = 249; V_DO = 250; V_LANE = 251
V_AA = [252, 253]; V_DW1 = 254; V_DWQ = 255; V_DWW = 247
V_B4 = 240
V_ROWP, V_CC = 244, 245
A_PF = 255
A_BIAS = 224

a = Asm()

class Tracker:
    def __init__(self, name, maxc): self.ops = []; self.name = name; self.maxc = maxc
    def issue(self, tag): self.ops.append(tag)
    def count(self, tag):
        idx = max([i for i, t in enumerate(self.ops) if t == tag], default=None)
        return None if idx is None else len(self.ops) - 1 - idx
    def wait(self, tag):
        n = self.count(tag)
        if n is None: return
        a(f"s_waitcnt {self.name}({min(n, self.maxc)})")
        n = min(n, self.maxc)
        self.ops = self.ops[len(self.ops) - n:] if n > 0 else []
    def wait_all(self):
        a(f"s_waitcnt {self.name}(0)"); self.ops = []
vm = Tracker("vmcnt", 63)
lg = Tracker("lgkmcnt", 15)
def vmem(ins, tag): a(ins); vm.issue(tag)
def lds(ins, tag="x"): a(ins); lg.issue(tag)

class It:
    def __init__(self, cost, fn, kind="m"): self.cost = cost; self.fn = fn; self.kind = kind
def kind_of(x):
    if isinstance(x, It): return x.kind
    op = x.split()[0]
    if op.startswith("s_"): return "s"
    if op.startswith(("ds_", "buffer_", "global_")): return "m"
    return "v"
def cost(x):
    if isinstance(x, It): return x.cost
    op = x.split()[0]
    if op.startswith("s_"): return 0
    if op.startswith(("v_exp", "v_log", "v_rcp", "v_rsq", "v_sqrt")): return 8
    if op.startswith("buffer_"): return 8
    return 4
def do(x):
    if isinstance(x, It): x.fn()
    elif callable(x): x()
    else: a(x)
def I_vm(ins, tag): return It(8, lambda: vmem(ins, tag), "m")
def I_lds(ins, tag="x"): return It(8 if "write" in ins else 4, lambda: lds(ins, tag), "m")
def I_wvm(tag): return It(0, lambda: vm.wait(tag), "s")
def I_wlg(tag): return It(0, lambda: lg.wait(tag), "s")

class Gap:
    def __init__(self): self.s = []; self.m = []; self.v = []; self.cap = 8
    def add(self, x, force=False):
        k = kind_of(x); c = cost(x)
        if k == "s":
            if self.v: self.v.append(x)
            elif self.m and getattr(self, "strict", False): self.m.append(x)
            else: self.s.append(x)
        elif k == "m":
            if self.v: self.v.append(x)
            else: self.m.append(x)
        else: self.v.append(x)
        self.cap -= c
    def items(self): return self.s + self.m + self.v

def place_stream(gaps, stream, first, last):
    idxs = list(range(first, last + 1))
    free = sum(max(gaps[g].cap, 0) for g in idxs)
    need = sum(cost(x) for x in stream)
    ratio = min(1.0, need / max(free, 1))
    k = 0; used = 0.0; budget = 0.0
    for j, g in enumerate(idxs):
        G = gaps[g]; G.strict = True
        budget += max(G.cap, 0) * ratio + 1e-9
        lastg = j == len(idxs) - 1
        while k < len(stream):
            x = stream[k]; c = cost(x)
            if lastg or c == 0 or (c <= G.cap and used + c <= budget + 4):
                if kind_of(x) == "m" and G.v and not lastg: break
                G.add(x); used += c; k += 1
            else: break
    assert k == len(stream), (k, len(stream))

KMAIN = "fused_main_kernel"; KFIN = "fused_final_kernel"
nstamp = [0]
def fstamp():
    if OPT["fine"] == 1: stamp(True)
def gstamp():
    if OPT["fine"] == 2: stamp(True)
def hstamp():
    if OPT["fine"] == 3: stamp(True)
def stamp(force=False):
    if not OPT["stamps"]: return
    if OPT["fine"] == 1 and not force and nstamp[0] >= 3: return
    if OPT["fine"] == 1 and force and nstamp[0] >= 15: return
    if OPT["fine"] in (2, 3) and not force: return
    i = nstamp[0]; nstamp[0] += 1
    assert i < 12, i
    a(f"s_memtime s[{S_ST+2*i}:{S_ST+2*i+1}]")
def srd(base, lo, hi, size):
    a(f"s_mov_b32 s{base}, s{lo}"); a(f"s_mov_b32 s{base+1}, s{hi}")
    a(f"s_mov_b32 s{base+2}, {size}"); a(f"s_mov_b32 s{base+3}, 0x20000")
def reg(spec, off, n):
    kind, base = spec
    return (vr if kind == "v" else ar)(base + off, n)

def dma_stage(kind, s, ps):
    out = []
    if kind in ("G1", "QP"):
        rs = 3584 if kind == "G1" else 8192
        sr_ = S_W1 if kind == "G1" else S_WQ
        base = S_BG1 if kind == "G1" else S_BQP
        vo = V_DW1 if kind == "G1" else V_DWQ
        for k in range(8):
            rho = 8 * (k >> 2) + (k & 3)
            rows = (64 * s if kind == "G1" else 32 * s) + rho
            out.append(([f"s_add_u32 s{S_SO}, s{base}, {rows * rs}", f"s_add_u32 m0, s{S_M0+ps}, {k*UNIT}"],
                        f"buffer_load_dwordx4 v{vo}, s[{sr_}:{sr_+3}], s{S_SO} offen lds"))
    else:
        sr_ = S_W2 if kind == "G2" else S_WO
        base = S_BG2 if kind == "G2" else S_BOP
        for k in range(8):
            sal = []
            if k % 4 == 0: sal.append(f"s_add_u32 s{S_SO}, s{base}, {(32 * s + k) * 896}")
            sal.append(f"s_add_u32 m0, s{S_M0+ps}, {k*UNIT - 896*(k%4)}")
            out.append((sal, f"buffer_load_dwordx4 v{V_DWW}, s[{sr_}:{sr_+3}], s{S_SO} offen offset:{896*(k%4)} lds"))
    return out
def dma_kv(which, ps):
    sr_ = S_K if which == "K" else S_V
    so = S_KOFF if which == "K" else S_VOFF
    out = []
    for k in range(8):
        sal = [f"s_add_u32 s{so}, s{so}, 0x8000", f"s_mov_b32 m0, s{S_M0+ps}"] if k == 0 else ["s_add_u32 m0, m0, 544"]
        out.append((sal, f"buffer_load_dwordx4 v{V_DO}, s[{sr_}:{sr_+3}], s{so} offen offset:{512*k} lds"))
    return out
def emit_units(units, tag):
    for sal, d in units:
        for x in sal: a(x)
        a("s_nop 0")
        vmem(d, tag)
def stage_dma(gs):
    if gs < 7: return dma_stage("G1", gs, gs % 4)
    if gs < 21: return dma_stage("QP", gs - 7, gs % 4)
    if gs < 28: return dma_stage("G2", gs - 21, gs % 4)
    if gs == 28: return dma_kv("K", 0)
    if gs == 29: return dma_kv("K", 1)
    if gs == 30: return dma_kv("V", 2)
    return None

LA = 3; R = 4
gctr = [0]
def read_sched(groups, post, delay, pre_issued):
    n = len(groups); post = post or []; delay = delay or {}
    sched = {}
    for i in range(pre_issued, n + LA):
        G = delay.get(i, i - LA)
        rs = groups[i]["reads"] if i < n else (post[i - n][0] if i - n < len(post) else [])
        for k in range(len(rs)): sched.setdefault(G, []).append((i, k))
    return sched
def rgap(g, j):
    if g.get("stage") is not None and OPT["tt"]: return min(j // 2, 3)
    return min(j, 3)
def prep_groups(groups, pre_issued=0, post=None, delay=None):
    sched = read_sched(groups, post, delay, pre_issued)
    for G, g in enumerate(groups):
        g["gaps"] = [Gap() for _ in range(4)]
        if g.get("stage") is not None:
            for gp in g["gaps"]: gp.cap = OPT["gcap"]
        for q, _ in enumerate(sched.get(G, [])): g["gaps"][rgap(g, q)].cap -= 4
    return [gp for g in groups for gp in g["gaps"]]
def emit_groups(groups, pre_issued=0, post=None, delay=None, W=None):
    n = len(groups)
    post = post or []
    W = W or OPT["W"]
    G0 = gctr[0]
    def info(i):
        if i < n: return groups[i]["reads"], groups[i]["ring"]
        return post[i - n] if i - n < len(post) else ([], None)
    def fmt(x, i, ring):
        o = 4 * ((G0 + i) % R)
        return x.format(r=reg(ring, o, 4), r0=reg(ring, o, 2), r1=reg(ring, o + 2, 2), A=reg(ring, o, 4))
    sched = read_sched(groups, post, delay, pre_issued)
    def issue(i, k):
        rs, ring = info(i)
        lds(fmt(rs[k], i, ring), ("f", G0 + i))
    for G in sorted(g for g in sched if g < 0):
        for (i, k) in sched[G]: issue(i, k)
    for i, g in enumerate(groups):
        for x in g.get("top", []): do(x)
        if W == 2 and (G0 + i) % 2 == 0 and i + 1 < n and lg.count(("f", G0 + i + 1)) is not None and not groups[i + 1].get("top"):
            lg.wait(("f", G0 + i + 1))
        lg.wait(("f", G0 + i))
        rl = sched.get(i, [])
        for q, m in enumerate(g["mf"]):
            a(fmt(m, i, g["ring"]))
            gp = g["gaps"][q]
            for x in gp.s: do(x)
            for j, (ii, k) in enumerate(rl):
                if rgap(g, j) == q: issue(ii, k)
            for x in gp.m + gp.v: do(x)
    gctr[0] += n

def place_units(gaps, pos, units, tag, step):
    for sal, d in units:
        while gaps[pos].cap < 8: pos += 1
        tgt = gaps[pos - 1]
        assert not tgt.v
        for x in sal: (tgt.m if tgt.m else tgt.s).append(x)
        gaps[pos].add(I_vm(d, tag) if tag is not None else d)
        pos += step
def trd(aa, off):
    return [f"ds_read_b64_tr_b16 {{r0}}, v{aa} offset:{off}", f"ds_read_b64_tr_b16 {{r1}}, v{aa} offset:{off+512}"]
def mf16(d, b, c): return f"v_mfma_f32_16x16x32_bf16 {d}, {{A}}, {b}, {c}"

def gemm_groups(kind, nstage, gs0, accf, bf, ring, aa, tagp, first_top=True):
    groups = []
    for s in range(nstage):
        gs = gs0 + s; ps = gs % 4
        av = aa[ps // 2]; pso = (ps % 2) * PS
        first = len(groups)
        if kind == "G1": items = [(pso + blk * BLK + fb * 32, fb, 2 * s + blk) for blk in range(2) for fb in range(4)]
        elif kind == "QP": items = [(pso + (db // 2) * 64 + (db % 2) * 8, db, s) for db in range(8)]
        else: items = [(pso + nb * 32, nb, s) for nb in range(7)]
        for off, blk, ks in items:
            groups.append(dict(reads=trd(av, off), ring=ring, stage=gs, first=(len(groups) == first),
                               mf=[mf16(accf(blk, qb), bf(ks, qb), accf(blk, qb) if ks > 0 else "0") for qb in range(4)], top=[]))
        if s > 0 or first_top:
            groups[first]["top"] = [lambda gs=gs: vm.wait((tagp, gs + 1)), "s_barrier"]
    return groups
def gemm_dma(groups, gaps, dmaf, tagp, skip=()):
    for G, g in enumerate(groups):
        if g.get("first"):
            gs = g["stage"]
            if (gs + 3) in skip: continue
            units = dmaf(gs + 3)
            if not units: continue
            ng = sum(1 for x in groups if x["stage"] == gs)
            dq = 1 if OPT["tt"] else 2
            if OPT["dpos"] == 0:
                pos = [4 * (G + i) + dq for i in range(ng)]
                if ng < len(units): pos = sorted(pos + [4 * (G + 3) + dq + 1])
            elif OPT["dpos"] == 1:
                pos = [4 * (G + i) + q for i in range(4) for q in (1, 3)]
            elif OPT["dpos"] == 2:
                pos = [4 * G + x for x in (1, 3, 5, 9, 11, 13, 17, 21)]
            else:
                pos = [4 * G + x for x in (1, 3, 6+1, 9, 11, 15, 17, 19)]
            for u, p_ in zip(units, pos): place_units(gaps, p_, [u], (tagp, gs + 3), 1)

def xlane(op, v, t):
    for sw in ("v_permlane16_swap_b32", "v_permlane32_swap_b32"):
        a(f"v_mov_b32 v{t}, v{v}"); a("s_nop 1")
        a(f"{sw} v{v}, v{t}"); a("s_nop 1")
        a(f"{op} v{v}, v{v}, v{t}")
def xlane4(op, vs, ts):
    for sw in ("v_permlane16_swap_b32", "v_permlane32_swap_b32"):
        for v, t in zip(vs, ts): a(f"v_mov_b32 v{t}, v{v}")
        for v, t in zip(vs, ts): a(f"{sw} v{v}, v{t}")
        for v, t in zip(vs, ts): a(f"{op} v{v}, v{v}, v{t}")
def round_bf16(v, t):
    a(f"v_cvt_pk_bf16_f32 v{t}, v{v}, v{v}")
    a(f"v_lshlrev_b32 v{v}, 16, v{t}")

def dump_regs(name, kind, base, n):
    if OPT["dump"] != name: return
    a("s_nop 7"); a("s_nop 7"); a("s_waitcnt vmcnt(0) lgkmcnt(0)")
    a(f"s_lshl_b32 s{S_TMP}, s2, 2"); a(f"s_add_u32 s{S_TMP}, s{S_TMP}, s{S_W}")
    a(f"s_mul_i32 s{S_TMP}, s{S_TMP}, {n*256}")
    a(f"s_add_u32 s{S_TMP}, s{S_TMP}, {DUMP_OFF}")
    a(f"v_lshlrev_b32 v{V_T+7}, 2, v{V_LANE}")
    for i in range(n):
        if kind == "a":
            a(f"v_accvgpr_read_b32 v{V_T+6}, a{base+i}"); src = V_T + 6
        else: src = base + i
        a(f"buffer_store_dword v{src}, v{V_T+7}, s[{S_WS}:{S_WS+3}], s{S_TMP} offen")
        a(f"s_add_u32 s{S_TMP}, s{S_TMP}, 256")
        if kind == "a": a("s_waitcnt vmcnt(0)")
    a("s_waitcnt vmcnt(0)")
    a("s_endpgm")

a("s_cmp_ge_u32 s2, 256")
a("s_cbranch_scc1 L_end")
a("s_load_dwordx2 s[16:17], s[0:1], 0")
if OPT["stamps"]: a("s_memtime s[98:99]")
a(f"v_lshrrev_b32 v{V_T}, 6, v0")
a(f"v_and_b32 v{V_LANE}, 63, v0")
a(f"v_readfirstlane_b32 s{S_W}, v{V_T}")
VQ_, VG_ = V_T + 1, V_T + 2
a(f"v_and_b32 v{VQ_}, 15, v{V_LANE}")
a(f"v_lshrrev_b32 v{VG_}, 4, v{V_LANE}")
a(f"s_lshr_b32 s{S_T}, s2, 3")
a(f"v_mul_u32_u24 v{V_T+3}, 896, v{VQ_}")
a(f"s_lshl_b32 s{S_TMP}, s{S_T}, 2"); a(f"s_add_u32 s{S_TMP}, s{S_TMP}, s{S_W}")
a(f"v_lshl_add_u32 v{V_T+3}, v{VG_}, 4, v{V_T+3}")
a(f"s_mul_i32 s{S_TMP}, s{S_TMP}, {16*896}")
a(f"s_mov_b32 s{S_X+2}, 1835008"); a(f"s_mov_b32 s{S_X+3}, 0x20000")
a("s_waitcnt lgkmcnt(0)")
XR = 0
if OPT["xdma"]:
    a(f"s_lshl_b32 s{S_TMP+1}, s{S_W}, 10"); a(f"s_add_u32 s{S_TMP+1}, s{S_TMP+1}, {2*PS}")
    for ks in range(14):
        a(f"s_add_u32 m0, s{S_TMP+1}, {ks*4096 - 64*ks}")
        a("s_nop 0")
        vmem(f"buffer_load_dwordx4 v{V_T+3}, s[{S_X}:{S_X+3}], s{S_TMP} offen offset:{64*ks} lds", "x")
else:
    for ks in range(14):
        vmem(f"buffer_load_dwordx4 {vr(XR+4*ks,4)}, v{V_T+3}, s[{S_X}:{S_X+3}], s{S_TMP} offen offset:{64*ks}", "x")
a("s_load_dwordx16 s[68:83], s[0:1], 0")
a("s_load_dwordx2 s[84:85], s[0:1], 64")
a("s_load_dwordx2 s[4:5], s[0:1], 96")
a("s_load_dwordx4 s[92:95], s[0:1], 72")
a("s_load_dwordx2 s[96:97], s[0:1], 88")
if OPT["cpf"]:
    a("s_getpc_b64 s[6:7]")
    a.label("L_pc0")
    a(f"s_sub_u32 s6, s6, L_pc0-{NAME}_kernel"); a("s_subb_u32 s7, s7, 0")
    a(f"s_lshl_b32 s{S_TMP+1}, s{S_T}, 11")
    a(f"v_lshlrev_b32 v{V_T+4}, 9, v{V_T}")
    a(f"v_and_b32 v{V_T+5}, 3, v{V_LANE}"); a(f"v_lshl_add_u32 v{V_T+4}, v{V_T+5}, 7, v{V_T+4}")
    a(f"v_add_u32 v{V_T+4}, s{S_TMP+1}, v{V_T+4}")
    a(f"global_load_dword a{A_PF}, v{V_T+4}, s[6:7]")
    vm.issue("cpf")
    a(f"global_load_dword a{A_PF}, v{V_T+4}, s[6:7] offset:64")
    vm.issue("cpf")
a(f"s_and_b32 s{S_J}, s2, 7")
PX, PK, PV_, PWQ, PWO, PW1, PB1, PW2 = 68, 70, 72, 74, 76, 80, 82, 84
a("s_waitcnt lgkmcnt(0)")
a(f"s_cmp_lg_u32 s{S_W}, 0"); a("s_cbranch_scc1 L_nonce")
a("s_memrealtime s[6:7]")
a(f"s_mov_b32 s{S_B1}, s96"); a(f"s_mov_b32 s{S_B1+1}, s97"); a(f"s_mov_b32 s{S_B1+2}, 256"); a(f"s_mov_b32 s{S_B1+3}, 0x20000")
a(f"s_lshl_b32 s{S_X1}, s{S_T}, 2"); a(f"s_add_u32 s{S_X1}, s{S_X1}, 128")
a("s_waitcnt lgkmcnt(0)")
a(f"s_or_b32 s{S_NONCE}, s6, 1")
a("s_mov_b64 exec, 1")
a(f"v_mov_b32 v96, s{S_NONCE}"); a("v_mov_b32 v97, 0"); a("v_mov_b32 v98, 0")
a(f"buffer_atomic_cmpswap v[96:97], v98, s[{S_B1}:{S_B1+3}], s{S_X1} offen sc0")
a("s_mov_b64 exec, -1")
a.label("L_nonce")
a(f"s_lshl_b32 s{S_TMP}, s{S_J}, 20")
a(f"s_add_u32 s{S_K}, s{PK}, s{S_TMP}"); a(f"s_addc_u32 s{S_K+1}, s{PK+1}, 0")
a(f"s_mov_b32 s{S_K+2}, 0x100000"); a(f"s_mov_b32 s{S_K+3}, 0x20000")
a(f"s_add_u32 s{S_V}, s{PV_}, s{S_TMP}"); a(f"s_addc_u32 s{S_V+1}, s{PV_+1}, 0")
a(f"s_mov_b32 s{S_V+2}, 0x100000"); a(f"s_mov_b32 s{S_V+3}, 0x20000")
srd(S_WQ, PWQ, PWQ+1, 3670016)
srd(S_WO, PWO, PWO+1, 3670016)
srd(S_W1, PW1, PW1+1, 1605632)
srd(S_W2, PW2, PW2+1, 1605632)
srd(S_WS, S_WSP, S_WSP+1, WS_SIZE)
srd(S_B1, PB1, PB1+1, 3584)
stamp()
a(f"s_lshr_b32 s{S_A}, s{S_W}, 1"); a(f"s_and_b32 s{S_C}, s{S_W}, 1")
a(f"s_mul_i32 s{S_TMP}, s{S_A}, {BLK}"); a(f"s_mul_i32 s{S_TMP+1}, s{S_C}, {8*UNIT}")
a(f"s_add_u32 s{S_LDSW}, s{S_TMP}, s{S_TMP+1}")
for i in range(4): a(f"s_add_u32 s{S_M0+i}, s{S_LDSW}, {i*PS}")
a(f"s_lshl_b32 s{S_TMP}, s{S_A}, 14"); a(f"s_lshl_b32 s{S_TMP+1}, s{S_C}, 12")
a(f"s_add_u32 s{S_GKV}, s{S_TMP}, s{S_TMP+1}")
a(f"s_sub_u32 s{S_KOFF}, s{S_GKV}, 0x8000"); a(f"s_sub_u32 s{S_VOFF}, s{S_GKV}, 0x8000")
a(f"s_lshl_b32 s{S_TMP}, s{S_A}, 5"); a(f"s_lshl_b32 s{S_TMP+1}, s{S_C}, 4"); a(f"s_add_u32 s{S_TMP}, s{S_TMP}, s{S_TMP+1}")
a(f"s_mul_i32 s{S_BG1}, s{S_TMP}, 3584"); a(f"s_mul_i32 s{S_TMP+1}, s{S_J}, 448"); a(f"s_add_u32 s{S_BG1}, s{S_BG1}, s{S_TMP+1}")
a(f"s_lshl_b32 s{S_TMP}, s{S_C}, 17")
a(f"s_lshl_b32 s{S_TMP+1}, s{S_J}, 10"); a(f"s_add_u32 s{S_TMP}, s{S_TMP}, s{S_TMP+1}")
a(f"s_lshl_b32 s{S_TMP+1}, s{S_A}, 9"); a(f"s_add_u32 s{S_BQP}, s{S_TMP}, s{S_TMP+1}")
a(f"s_mul_i32 s{S_TMP}, s{S_J}, 224"); a(f"s_lshl_b32 s{S_TMP+1}, s{S_C}, 3"); a(f"s_add_u32 s{S_TMP}, s{S_TMP}, s{S_TMP+1}")
a(f"s_mul_i32 s{S_BG2}, s{S_TMP}, 896"); a(f"s_mul_i32 s{S_TMP+2}, s{S_A}, 448"); a(f"s_add_u32 s{S_BG2}, s{S_BG2}, s{S_TMP+2}")
a(f"s_lshl_b32 s{S_TMP}, s{S_J}, 9"); a(f"s_add_u32 s{S_TMP}, s{S_TMP}, s{S_TMP+1}")
a(f"s_mul_i32 s{S_BOP}, s{S_TMP}, 896"); a(f"s_add_u32 s{S_BOP}, s{S_BOP}, s{S_TMP+2}")
a(f"s_mov_b32 s{S_THR}, {OPT['thr']}")
def dma_voffsets(which):
    a(f"v_lshrrev_b32 v{V_T+4}, 5, v{V_LANE}")
    a(f"v_and_b32 v{V_T+5}, 31, v{V_LANE}")
    a(f"v_lshlrev_b32 v{V_T+5}, 4, v{V_T+5}")
    if "1" in which:
        a(f"v_mul_u32_u24 v{V_DW1}, {4*3584}, v{V_T+4}"); a(f"v_add_u32 v{V_DW1}, v{V_DW1}, v{V_T+5}")
    if "q" in which: a(f"v_lshl_add_u32 v{V_DWQ}, v{V_T+4}, 15, v{V_T+5}")
    if "o" in which: a(f"v_lshl_add_u32 v{V_DO}, v{V_T+4}, 13, v{V_T+5}")
    if "w" in which:
        a(f"v_mul_u32_u24 v{V_DWW}, {16*896}, v{V_T+4}"); a(f"v_add_u32 v{V_DWW}, v{V_DWW}, v{V_T+5}")
        a(f"v_cmp_lt_u32 vcc, {27*16}, v{V_T+5}")
        a(f"v_mov_b32 v{V_T+6}, 0x40000000")
        a("s_nop 1")
        a(f"v_cndmask_b32 v{V_DWW}, v{V_DWW}, v{V_T+6}, vcc")
dma_voffsets("1qow")
if OPT["pfpos"] < 3:
    emit_units(stage_dma(0), ("st", 0))
    emit_units(stage_dma(1), ("st", 1))
def rowp_cc():
    a(f"v_bfe_u32 v{V_ROWP}, v{V_LANE}, 2, 2")
    a(f"v_lshrrev_b32 v{V_CC}, 4, v{V_LANE}")
    a(f"v_lshl_add_u32 v{V_ROWP}, v{V_CC}, 2, v{V_ROWP}")
    a(f"v_mul_u32_u24 v{V_ROWP}, {UNIT}, v{V_ROWP}")
    a(f"v_and_b32 v{V_CC}, 3, v{V_LANE}")
rowp_cc()

PFD = OPT["pfd"]
def prefetch(kind, gran):
    sh = 6 if gran == 64 else 7
    a(f"s_lshl_b32 s{S_TMP}, s{S_T}, 2"); a(f"s_add_u32 s{S_TMP}, s{S_TMP}, s{S_W}")
    T0, T1 = V_T + 4, V_T + 5
    def masked(n):
        if n < 64:
            a(f"v_cmp_lt_u32 vcc, {n-1}, v{V_LANE}")
            a(f"v_mov_b32 v{T1}, 0x40000000")
            a("s_nop 1")
            a(f"v_cndmask_b32 v{T0}, v{T0}, v{T1}, vcc")
    if kind in ("w1", "wq"):
        rowb = 512 if kind == "w1" else 1024
        rs = 3584 if kind == "w1" else 8192
        if kind == "w1": rowb, per_row = 640, 8
        per_row = 8 if kind == "w1" else rowb // gran
        step = 64 if kind == "w1" else gran
        n = 448 * per_row // 128
        a(f"s_mul_i32 s{S_TMP}, s{S_TMP}, {n}")
        a(f"v_add_u32 v{T0}, s{S_TMP}, v{V_LANE}")
        lgp = per_row.bit_length() - 1
        a(f"v_lshrrev_b32 v{T1}, {lgp}, v{T0}")
        a(f"v_and_b32 v{T0}, {per_row-1}, v{T0}")
        a(f"v_mul_u32_u24 v{T0}, {step}, v{T0}")
        a(f"s_mov_b32 s{S_TMP+1}, {rs}")
        a(f"v_mad_u32_u24 v{T0}, v{T1}, s{S_TMP+1}, v{T0}")
        masked(n)
        a(f"s_mul_i32 s{S_TMP+1}, s{S_J}, {448 if kind == 'w1' else 1024}")
        sr_ = S_W1 if kind == "w1" else S_WQ
        vmem(f"buffer_load_dword a{A_PF}, v{T0}, s[{sr_}:{sr_+3}], s{S_TMP+1} offen", "pf")
    else:
        size = {"w2": 200704, "wo": 458752, "k": 1 << 20, "v": 1 << 20, "k0": PFD * 32768, "v0": PFD * 32768}[kind]
        sr_ = {"w2": S_W2, "wo": S_WO, "k": S_K, "v": S_V, "k0": S_K, "v0": S_V}[kind]
        n = (size // gran + 127) // 128
        a(f"s_mul_i32 s{S_TMP}, s{S_TMP}, {n*gran}")
        if kind in ("w2", "wo"):
            a(f"s_mul_i32 s{S_TMP+1}, s{S_J}, {size}"); a(f"s_add_u32 s{S_TMP}, s{S_TMP}, s{S_TMP+1}")
        a(f"v_lshlrev_b32 v{T0}, {sh}, v{V_LANE}")
        masked(n)
        for i in range((n + 63) // 64):
            vmem(f"buffer_load_dword a{A_PF}, v{T0}, s[{sr_}:{sr_+3}], s{S_TMP} offen", "pf")
            if i + 1 < (n + 63) // 64: a(f"s_add_u32 s{S_TMP}, s{S_TMP}, {64*gran}")
GR = OPT["gran"]
def early_pf(which):
    if not OPT["prefetch"]: return
    for kind in which: prefetch(kind, GR)
if OPT["pfpos"] == 0:
    early_pf(("w1", "wq", "w2", "k0", "v0"))
if OPT["pfpos"] == 4: early_pf(("w1", "wq", "w2"))
if OPT["pfpos"] in (0, 1, 4):
    a(f"v_lshlrev_b32 v{V_T+6}, 3, v{VG_}")
    a(f"s_mul_i32 s{S_TMP}, s{S_J}, 448"); a(f"s_lshl_b32 s{S_TMP+1}, s{S_W}, 7"); a(f"s_add_u32 s{S_TMP}, s{S_TMP}, s{S_TMP+1}")
    for fb in range(4):
        vmem(f"buffer_load_dwordx2 {ar(A_BIAS+2*fb,2)}, v{V_T+6}, s[{S_B1}:{S_B1+3}], s{S_TMP} offen offset:{32*fb}", "b1")
if OPT["pfpos"] == 1: early_pf(("w1",))

vm.wait("x")
if OPT["xdma"]:
    a(f"v_lshlrev_b32 v{V_T+6}, 4, v{V_LANE}")
    a(f"s_lshl_b32 s{S_TMP}, s{S_W}, 10"); a(f"s_add_u32 s{S_TMP}, s{S_TMP}, {2*PS}")
    a(f"v_add_u32 v{V_T+6}, s{S_TMP}, v{V_T+6}")
    for ks in range(14): lds(f"ds_read_b128 {vr(XR+4*ks,4)}, v{V_T+6} offset:{ks*4096}", "xr")
    lg.wait_all()
stamp()
XF = 112
for i in range(56):
    a(f"v_lshlrev_b32 v{XF+2*i}, 16, v{XR+i}")
    a(f"v_and_b32 v{XF+2*i+1}, 0xffff0000, v{XR+i}")
ACC = 56
fstamp()
if OPT["pfpos"] in (3, 4): emit_units(stage_dma(0), ("st", 0))
fstamp()
for c in range(4): a(f"v_pk_add_f32 {vr(ACC+2*c,2)}, {vr(XF+4*c,2)}, {vr(XF+4*c+2,2)}")
for n_, i in enumerate(range(8, 56)):
    c = n_ % 4
    a(f"v_pk_add_f32 {vr(ACC+2*c,2)}, {vr(ACC+2*c,2)}, {vr(XF+2*i,2)}")
a(f"v_pk_add_f32 {vr(ACC,2)}, {vr(ACC,2)}, {vr(ACC+2,2)}")
a(f"v_pk_add_f32 {vr(ACC+4,2)}, {vr(ACC+4,2)}, {vr(ACC+6,2)}")
a(f"v_pk_add_f32 {vr(ACC,2)}, {vr(ACC,2)}, {vr(ACC+4,2)}")
a(f"v_add_f32 v{ACC}, v{ACC}, v{ACC+1}")
xlane("v_add_f32", ACC, ACC+1)
VMEAN, VMB = ACC + 2, ACC + 4
a(f"v_mul_f32 v{VMEAN}, {f32(1.0/448)}, v{ACC}")
a(f"v_mov_b32 v{VMB}, v{VMEAN}")
round_bf16(VMB, ACC+1)
a(f"v_mov_b32 v{VMB+1}, v{VMB}")
VAR = 64
XCL = 2 * PS
if OPT["pfpos"] == 1: early_pf(("wq", "w2"))
fstamp()
if OPT["pfpos"] in (3, 4): emit_units(stage_dma(1), ("st", 1))
fstamp()
if OPT["pfpos"] == 2:
    a(f"v_lshlrev_b32 v{V_T+4}, 3, v{VG_}")
    a(f"s_mul_i32 s{S_TMP}, s{S_J}, 448"); a(f"s_lshl_b32 s{S_TMP+1}, s{S_W}, 7"); a(f"s_add_u32 s{S_TMP}, s{S_TMP}, s{S_TMP+1}")
    for fb in range(4):
        vmem(f"buffer_load_dwordx2 {ar(A_BIAS+2*fb,2)}, v{V_T+4}, s[{S_B1}:{S_B1+3}], s{S_TMP} offen offset:{32*fb}", "b1")
    early_pf(("w1", "wq", "w2"))

a(f"v_lshlrev_b32 v{V_T+6}, 4, v{V_LANE}")
a(f"s_lshl_b32 s{S_TMP}, s{S_W}, 10"); a(f"s_add_u32 s{S_TMP}, s{S_TMP}, {XCL}")
a(f"v_add_u32 v{V_T+6}, s{S_TMP}, v{V_T+6}")
for ks in range(14):
    for i in range(4*ks, 4*ks+4):
        a(f"v_pk_add_f32 {vr(XF+2*i,2)}, {vr(XF+2*i,2)}, {vr(VMB,2)} neg_lo:[0,1] neg_hi:[0,1]")
    for i in range(4*ks, 4*ks+4):
        c = i % 4
        if i < 4: a(f"v_pk_mul_f32 {vr(VAR+2*c,2)}, {vr(XF+2*i,2)}, {vr(XF+2*i,2)}")
        else: a(f"v_pk_fma_f32 {vr(VAR+2*c,2)}, {vr(XF+2*i,2)}, {vr(XF+2*i,2)}, {vr(VAR+2*c,2)}")
if OPT["pfpos"] == 3:
    a(f"v_lshlrev_b32 v{V_T+4}, 3, v{VG_}")
    a(f"s_mul_i32 s{S_TMP}, s{S_J}, 448"); a(f"s_lshl_b32 s{S_TMP+1}, s{S_W}, 7"); a(f"s_add_u32 s{S_TMP}, s{S_TMP}, s{S_TMP+1}")
    for fb in range(4):
        vmem(f"buffer_load_dwordx2 {ar(A_BIAS+2*fb,2)}, v{V_T+4}, s[{S_B1}:{S_B1+3}], s{S_TMP} offen offset:{32*fb}", "b1")
    early_pf(("w1", "wq", "w2"))

fstamp()
a(f"v_pk_add_f32 {vr(VAR,2)}, {vr(VAR,2)}, {vr(VAR+2,2)}")
a(f"v_pk_add_f32 {vr(VAR+4,2)}, {vr(VAR+4,2)}, {vr(VAR+6,2)}")
a(f"v_pk_add_f32 {vr(VAR,2)}, {vr(VAR,2)}, {vr(VAR+4,2)}")
a(f"v_add_f32 v{VAR}, v{VAR}, v{VAR+1}")
xlane("v_add_f32", VAR, VAR+1)
a(f"v_sub_f32 v{VAR+2}, v{VMEAN}, v{VMB}")
a(f"v_mul_f32 v{VAR+2}, v{VAR+2}, v{VAR+2}")
a(f"v_mov_b32 v{VAR+3}, {f32(1.0/448)}")
a(f"v_fma_f32 v{VAR}, v{VAR}, v{VAR+3}, -v{VAR+2}")
a(f"v_max_f32 v{VAR}, 0, v{VAR}")
a(f"v_mov_b32 v{VAR+4}, v{VAR}")
round_bf16(VAR+4, VAR+1)
a(f"v_add_f32 v{VAR+4}, {f32(1e-5)}, v{VAR+4}")
round_bf16(VAR+4, VAR+1)
a(f"v_sqrt_f32 v{VAR+4}, v{VAR+4}"); a("s_nop 0")
round_bf16(VAR+4, VAR+1)
a(f"v_rcp_f32 v{VAR+5}, v{VAR+4}"); a("s_nop 0")
fstamp()
CQ = math.log2(math.e) / 16
a(f"v_mul_f32 v{VAR+2}, {f32(CQ)}, v{VAR+5}")
a(f"v_mov_b32 v{VAR+3}, v{VAR+2}")
for ks in range(14):
    for i in range(4*ks, 4*ks+4):
        a(f"v_pk_mul_f32 {vr(XF+2*i,2)}, {vr(XF+2*i,2)}, {vr(VAR+2,2)}")
    for i in range(4*ks, 4*ks+4):
        a(f"v_cvt_pk_bf16_f32 v{XR+i}, v{XF+2*i}, v{XF+2*i+1}")
    lds(f"ds_write_b128 v{V_T+6}, {vr(XR+4*ks,4)} offset:{ks*4096}")
a(f"v_mul_f32 v{VAR+6}, v{VAR+5}, v{VAR+5}")
a(f"v_mul_f32 v{VAR+6}, v{VAR+6}, v{VAR}")
round_bf16(VAR+6, VAR+7)
a(f"v_add_f32 v{VAR+6}, {f32(1e-5)}, v{VAR+6}")
round_bf16(VAR+6, VAR+7)
a(f"v_sqrt_f32 v{VAR+6}, v{VAR+6}"); a("s_nop 0")
round_bf16(VAR+6, VAR+7)
a(f"v_rcp_f32 v{VAR+6}, v{VAR+6}"); a("s_nop 0")
a(f"v_mul_f32 v{VAR+6}, {f32(1.0/CQ)}, v{VAR+6}")
a(f"s_lshl_b32 s{S_TMP}, s{S_W}, 6"); a(f"s_add_u32 s{S_TMP}, s{S_TMP}, {STATS}")
a(f"v_lshlrev_b32 v{V_T+5}, 2, v{VQ_}"); a(f"v_add_u32 v{V_T+5}, s{S_TMP}, v{V_T+5}")
lds(f"ds_write_b32 v{V_T+5}, v{VAR+6}")
a(f"v_lshlrev_b32 v{V_T+6}, 4, v{V_LANE}"); a(f"v_add_u32 v{V_T+6}, {XCL}, v{V_T+6}")
a(f"v_lshlrev_b32 v{V_T+7}, 2, v{VQ_}"); a(f"v_add_u32 v{V_T+7}, {STATS}, v{V_T+7}")
a(f"s_lshl_b32 s{S_TMP}, s{S_W}, 7")
a(f"v_lshl_add_u32 v{V_AA[0]}, v{V_CC}, 3, v{V_ROWP}")
a(f"v_add_u32 v{V_AA[0]}, s{S_TMP}, v{V_AA[0]}")
a(f"v_add_u32 v{V_AA[1]}, {2*PS}, v{V_AA[0]}")
a(f"s_cmp_lg_u32 s{S_W}, 0"); a("s_cbranch_scc1 L_nonce2")
a("s_waitcnt vmcnt(0)") if False else None
vm_n = vm.count(("st", 0))
a(f"s_waitcnt vmcnt({min(63, len(vm.ops) - [i for i, t in enumerate(vm.ops) if t == ('st', 0)][0])})")
a(f"v_readfirstlane_b32 s{S_TMP}, v96")
a(f"s_cmp_eq_u32 s{S_TMP}, 0"); a(f"s_cselect_b32 s{S_NONCE}, s{S_NONCE}, s{S_TMP}")
a(f"v_mov_b32 v97, s{S_NONCE}"); a(f"v_mov_b32 v98, {STATS + 512}")
a("ds_write_b32 v98, v97")
a.label("L_nonce2")
fstamp()
lg.wait_all()
a("s_barrier")
fstamp()
a(f"v_mov_b32 v98, {STATS + 512}")
lds("ds_read_b32 v97, v98", "nn")
for f in range(56):
    lds(f"ds_read_b128 {ar(4*f,4)}, v{V_T+6} offset:{f*1024}", "xc")
    if f % 12 == 11: a("s_waitcnt lgkmcnt(4)"); lg.ops = lg.ops[-4:]
for qb in range(4): lds(f"ds_read_b32 v{V_SC+2*qb+1}, v{V_T+7} offset:{qb*64}", "sc")
lg.wait_all()
a(f"v_readfirstlane_b32 s{S_NONCE}, v97")
fstamp()
vm.wait(("st", 1))
fstamp()
a("s_barrier")
dump_regs("xc", "a", 0, 224)
stamp(OPT["fine"] not in (2, 3))
emit_units(stage_dma(2), ("st", 2))
emit_units(stage_dma(3), ("st", 3))
if OPT["pfpos"] in (1, 2, 3, 4): early_pf(("k0", "v0"))

RING_A = ("a", 236); RING_V = ("v", V_F)
xcf = lambda ks, qb: ar((ks * 4 + qb) * 4, 4)
H1 = 0; HP = 64; QA = 96; GA = 112
h1acc = lambda fb, qb: vr(H1 + (fb * 4 + qb) * 4, 4)
qacc = lambda db, qb: vr(QA + (db * 4 + qb) * 4, 4)
hfrag = lambda ks, qb: ar((ks * 4 + qb) * 4, 4)
g2acc = lambda nb, qb: ar(GA + (nb * 4 + qb) * 4, 4)
VQA = [V_DW1 - 0, 0]
VQA = [V_KA, V_VA]
a(f"s_mul_i32 s{S_TMP}, s{S_A}, {BLK}"); a(f"s_lshl_b32 s{S_TMP+1}, s{S_C}, 8"); a(f"s_add_u32 s{S_TMP}, s{S_TMP}, s{S_TMP+1}")
a(f"v_lshl_add_u32 v{VQA[0]}, v{V_CC}, 4, v{V_ROWP}")
a(f"v_add_u32 v{VQA[0]}, s{S_TMP}, v{VQA[0]}")
a(f"v_add_u32 v{VQA[1]}, {2*PS}, v{VQA[0]}")

def att_reads(p, f):
    if f < 16:
        kb, x = f // 8, f % 8
        return [f"ds_read_b128 {{r}}, v{V_KA if x < 4 else V_KA2} offset:{((p + 1) % 2) * PS + kb*512 + x*64}"]
    return trd(V_VA, (p % 2) * PS + (f - 16) * 32)
g1 = gemm_groups("G1", 7, 0, h1acc, xcf, RING_A, V_AA, "st", first_top=False)
qp = gemm_groups("QP", 14, 7, qacc, xcf, RING_A, VQA, "st")
g2 = gemm_groups("G2", 7, 21, g2acc, hfrag, RING_A, V_AA, "st")
allg = g1 + qp + g2
POSTA = [(att_reads(-1, i), RING_V) for i in range(LA)]
allgaps = prep_groups(allg, post=POSTA)
gemm_dma(allg, allgaps, stage_dma, "st", skip=(3,))
fq = allgaps[4*56:4*168]; fg = allgaps[4*168:]

C1 = 2 * math.sqrt(2 / math.pi) * math.log2(math.e); C2 = C1 * 0.044715
def gelu_stream():
    st = [f"s_mov_b32 s{S_X1}, {f32(-C2)}", f"v_mov_b32 v{V_T+7}, {f32(-C1)}", I_wvm("b1")]
    for fb in range(4):
        st += [f"v_accvgpr_read_b32 v{V_T}, a{A_BIAS+2*fb}", f"v_accvgpr_read_b32 v{V_T+1}, a{A_BIAS+2*fb+1}", "s_nop 0",
               f"v_lshlrev_b32 v{V_B4}, 16, v{V_T}", f"v_and_b32 v{V_B4+1}, 0xffff0000, v{V_T}",
               f"v_lshlrev_b32 v{V_B4+2}, 16, v{V_T+1}", f"v_and_b32 v{V_B4+3}, 0xffff0000, v{V_T+1}"]
        for qb in range(4):
            base = H1 + (fb * 4 + qb) * 4
            st += [f"v_fma_f32 v{base+r}, v{base+r}, v{V_SC+2*qb+1}, v{V_B4+r}" for r in range(4)]
            st += [f"v_mul_f32 v{V_T+r}, v{base+r}, v{base+r}" for r in range(4)]
            st += [f"v_fma_f32 v{V_T+r}, v{V_T+r}, s{S_X1}, v{V_T+7}" for r in range(4)]
            st += [f"v_mul_f32 v{V_T+r}, v{V_T+r}, v{base+r}" for r in range(4)]
            st += [f"v_exp_f32 v{V_T+r}, v{V_T+r}" for r in range(4)]
            st += [f"v_add_f32 v{V_T+r}, 1.0, v{V_T+r}" for r in range(4)]
            st += [f"v_rcp_f32 v{V_T+r}, v{V_T+r}" for r in range(4)]
            st += [f"v_mul_f32 v{base+r}, v{base+r}, v{V_T+r}" for r in range(4)]
            hp = HP + ((fb // 2) * 4 + qb) * 4 + (fb % 2) * 2
            st += [f"v_cvt_pk_bf16_f32 v{hp}, v{base}, v{base+1}", f"v_cvt_pk_bf16_f32 v{hp+1}, v{base+2}, v{base+3}"]
    st += [f"s_lshl_b32 s{S_X1}, s{S_W}, 1", f"s_add_u32 s{S_X2}, s{S_X1}, 1", f"s_min_u32 s{S_X2}, s{S_X2}, 6",
           f"s_lshl_b32 s{S_X1}, s{S_X1}, 12", f"s_lshl_b32 s{S_X2}, s{S_X2}, 12",
           f"v_lshlrev_b32 v{V_T+6}, 4, v{V_LANE}", f"v_add_u32 v{V_T+6}, {HL}, v{V_T+6}",
           f"v_add_u32 v{V_T+5}, s{S_X2}, v{V_T+6}", f"v_add_u32 v{V_T+4}, s{S_X1}, v{V_T+6}"]
    st += [I_lds(f"ds_write_b128 v{V_T+5}, {vr(HP+16+4*qb,4)} offset:{qb*1024}", "hw") for qb in range(4)]
    st += [I_lds(f"ds_write_b128 v{V_T+4}, {vr(HP+4*qb,4)} offset:{qb*1024}", "hw") for qb in range(4)]
    st += [I_wlg("hw")]
    return st
GE = OPT["gelu_end"]
_gs = gelu_stream()
if OPT["x_g"] == 1: _gs = [x for x in _gs if not (isinstance(x, str) and x.startswith(("v_fma", "v_mul", "v_exp", "v_add_f32", "v_rcp", "v_cvt")))]
if OPT["x_g"] == 2: _gs = [x.replace("v_exp_f32", "v_mov_b32").replace("v_rcp_f32", "v_mov_b32") if isinstance(x, str) else x for x in _gs]
if OPT["x_g"] == 3: _gs = [x for x in _gs if not (isinstance(x, str) and x.startswith(("v_exp", "v_rcp")))]
place_stream(fq, _gs, 4*2, 4*(8*GE) - 1)
st = [f"s_mul_i32 s{S_X1}, s{S_A}, {BLK}", f"s_mul_i32 s{S_X2}, s{S_C}, 224", f"s_add_u32 s{S_X1}, s{S_X1}, s{S_X2}",
      f"v_lshl_add_u32 v{V_AA[0]}, v{V_CC}, 3, v{V_ROWP}", f"v_add_u32 v{V_AA[0]}, s{S_X1}, v{V_AA[0]}", f"v_add_u32 v{V_AA[1]}, {2*PS}, v{V_AA[0]}"]
st += [I_lds(f"ds_read_b128 {ar(4*f,4)}, v{V_T+6} offset:{f*1024}", "hr") for f in range(28)] + [I_wlg("hr")]
place_stream(fq, st, 4*(8*(GE+1)), 4*(8*14) - 5)

def q_frag(f):
    x, qb = f // 4, f % 4
    b0 = QA + ((2 * x) * 4 + qb) * 4; b1_ = QA + ((2 * x + 1) * 4 + qb) * 4
    st = []
    t = 4 * f
    st += [f"v_cvt_pk_bf16_f32 v{t}, v{b0}, v{b0+1}", f"v_cvt_pk_bf16_f32 v{t+1}, v{b0+2}, v{b0+3}",
           f"v_cvt_pk_bf16_f32 v{t+2}, v{b1_}, v{b1_+1}", f"v_cvt_pk_bf16_f32 v{t+3}, v{b1_+2}, v{b1_+3}"]
    return st
UQW, UQR = V_T + 5, V_T + 4
def q_write(fs, tag): return [I_lds(f"ds_write_b128 v{UQW}, {vr(4*f,4)} offset:{(f - fs[0])*1024}", tag) for f in fs] + [I_wlg(tag)]
def q_read(fs, tag): return [I_lds(f"ds_read_b128 {vr(64+4*f,4)}, v{UQR} offset:{(f - fs[0])*1024}", tag) for f in fs] + [I_wlg(tag)]
R1, R2, R3 = list(range(0, 7)), list(range(7, 14)), [14, 15]
SG = lambda s: 4 * 7 * (s - 21)
st = [f"s_mul_i32 s{S_X1}, s{S_W}, 7168", f"s_xor_b32 s{S_X2}, s{S_W}, 1", f"s_mul_i32 s{S_X2}, s{S_X2}, 7168",
      f"v_lshlrev_b32 v{V_T+6}, 4, v{V_LANE}", f"v_add_u32 v{V_T+6}, {XREG}, v{V_T+6}",
      f"v_add_u32 v{UQW}, s{S_X1}, v{V_T+6}", f"v_add_u32 v{UQR}, s{S_X2}, v{V_T+6}"]
for f in R1: st += q_frag(f)
st += q_write(R1, "qw1")
place_stream(fg, st, SG(21) + 6, SG(22) - 1)
st = q_read(R1, "qr1")
for f in R2[:4]: st += q_frag(f)
place_stream(fg, st, SG(22) + 1, SG(23) - 1)
st = []
for f in R2[4:]: st += q_frag(f)
st += q_write(R2, "qw2")
place_stream(fg, st, SG(23) + 1, SG(24) - 1)
st = q_read(R2, "qr2")
for f in R3: st += q_frag(f)
place_stream(fg, st, SG(24) + 1, SG(25) - 1)
place_stream(fg, q_write(R3, "qw3"), SG(25) + 1, SG(26) - 1)
place_stream(fg, q_read(R3, "qr3"), SG(26) + 1, SG(26) + 12)
st = [f"v_and_b32 v{V_T}, 15, v{V_LANE}", f"v_lshrrev_b32 v{V_T+1}, 4, v{V_LANE}",
      f"s_mul_i32 s{S_X1}, s{S_C}, {BLK}", f"s_lshl_b32 s{S_X2}, s{S_C}, 8",
      f"v_mul_u32_u24 v{V_KA}, {UNIT}, v{V_T}", f"v_lshl_add_u32 v{V_KA}, v{V_T+1}, 4, v{V_KA}",
      f"v_add_u32 v{V_KA}, s{S_X1}, v{V_KA}",
      f"v_subrev_u32 v{V_KA2}, s{S_X2}, v{V_KA}", f"v_add_u32 v{V_KA}, s{S_X2}, v{V_KA}",
      f"v_lshl_add_u32 v{V_VA}, v{V_CC}, 3, v{V_ROWP}", f"v_add_u32 v{V_VA}, s{S_X1}, v{V_VA}", f"v_add_u32 v{V_VA}, {2*PS}, v{V_VA}"]
st += [f"v_mov_b32 v{V_NEG+i}, 0" for i in range(16)]
def _pfs():
    a(f"s_cmp_eq_u32 s{S_C}, 0")
    a(f"s_cselect_b32 s{S_B1}, s{S_K}, s{S_V}"); a(f"s_cselect_b32 s{S_B1+1}, s{S_K+1}, s{S_V+1}")
    a(f"s_mov_b32 s{S_B1+2}, 0x100000")
    a(f"s_mov_b32 s{S_TMP+3}, {(PFD-1)*0x8000}")
    a(f"s_mov_b32 s{S_W2}, s96"); a(f"s_mov_b32 s{S_W2+1}, s97"); a(f"s_mov_b32 s{S_W2+2}, 256")
    a(f"s_lshl_b32 s{S_X1}, s{S_T}, 10"); a(f"s_lshl_b32 s{S_X2}, s{S_A}, 9"); a(f"s_add_u32 s{S_X1}, s{S_X1}, s{S_X2}")
    a(f"v_lshlrev_b32 v226, 7, v{V_LANE}"); a(f"v_add_u32 v226, s{S_X1}, v226")
    a(f"v_cmp_lt_u32 vcc, 3, v{V_LANE}"); a(f"v_mov_b32 v227, 0x40000000"); a("s_nop 1")
    a(f"v_cndmask_b32 v226, v226, v227, vcc")
st += [It(8, _pfs, "v")]
place_stream(fg, st, SG(26) + 13, SG(28) - 1)

emit_groups(allg[:56], post=[(g["reads"], g["ring"]) for g in allg[56:59]])
stamp()
emit_groups(allg[56:168], pre_issued=LA, post=[(g["reads"], g["ring"]) for g in allg[168:171]])
dump_regs("hp", "v", HP, 32)
stamp()
if OPT["prefetch"] and OPT["kvpf"] == 2:
    for kind in ("k", "v"): prefetch(kind, GR)
emit_groups(allg[168:], pre_issued=LA, post=POSTA)
stamp()

def att_mf(p, f, czero=False):
    out = []
    for qb in range(4):
        if f < 16:
            kb, x = f // 8, f % 8
            S = V_S + (kb * 4 + qb) * 4
            out.append(mf16(vr(S, 4), vr(V_Q + (x * 4 + qb) * 4, 4), vr(V_NEG + 4 * qb, 4) if x == 0 else vr(S, 4)))
        else:
            o = ar(((f - 16) * 4 + qb) * 4, 4)
            out.append(mf16(o, vr(V_P + (p % 2) * 16 + 4 * qb, 4), "0" if czero else o))
    return out
def sm_stream(p, kb):
    st = []
    Pb = V_P + ((p + 1) % 2) * 16
    lo = V_L + (p % 2) * 4; ln = V_L + ((p + 1) % 2) * 4
    items = [(qb, r) for qb in range(4) for r in range(4)]
    n = len(items)
    T = lambda k: V_T + (k % 8)
    for k in range(n + 3):
        if k < n:
            qb, r = items[k]
            st.append(f"v_exp_f32 v{T(k)}, v{V_S + (kb*4+qb)*4 + r}")
        if 1 <= k <= n:
            qb, r = items[k - 1]
            src = lo + qb if (kb == 0 and r == 0) else ln + qb
            st.append(f"v_add_f32 v{ln + qb}, v{T(k-1)}, v{src}")
        if k >= 3 and (k - 3) % 2 == 0 and (k - 2) < n:
            j = k - 3
            qb, r = items[j]
            st.append(f"v_cvt_pk_bf16_f32 v{Pb + qb*4 + kb*2 + r//2}, v{T(j)}, v{T(j+1)}")
    return st
def rescale(p, first):
    lo = V_L + (p % 2) * 4
    a("s_nop 7"); a("s_nop 3")
    MX = V_T
    for qb in range(4):
        b0 = V_S + qb * 4; b1_ = V_S + (4 + qb) * 4
        a(f"v_max3_f32 v{MX+qb}, v{b0}, v{b0+1}, v{b0+2}")
    for qb in range(4):
        b0 = V_S + qb * 4; b1_ = V_S + (4 + qb) * 4
        a(f"v_max3_f32 v{MX+qb}, v{MX+qb}, v{b0+3}, v{b1_}")
    for qb in range(4):
        b0 = V_S + qb * 4; b1_ = V_S + (4 + qb) * 4
        a(f"v_max3_f32 v{MX+qb}, v{MX+qb}, v{b1_+1}, v{b1_+2}")
    for qb in range(4):
        b1_ = V_S + (4 + qb) * 4
        a(f"v_max_f32 v{MX+qb}, v{MX+qb}, v{b1_+3}")
    a("s_nop 0")
    xlane4("v_max_f32", [MX + q for q in range(4)], [V_T + 4 + q for q in range(4)])
    if not first:
        for qb in range(4): a(f"v_max_f32 v{MX+qb}, 0, v{MX+qb}")
    for qb in range(4):
        for kb in range(2):
            for r in range(4):
                a(f"v_sub_f32 v{V_S+(kb*4+qb)*4+r}, v{V_S+(kb*4+qb)*4+r}, v{MX+qb}")
        for r in range(4):
            a(f"v_sub_f32 v{V_NEG+qb*4+r}, v{V_NEG+qb*4+r}, v{MX+qb}")
    if not first:
        for qb in range(4): a(f"v_exp_f32 v{MX+qb}, -v{MX+qb}")
        a("s_nop 0")
        for qb in range(4): a(f"v_mul_f32 v{lo+qb}, v{lo+qb}, v{MX+qb}")
        for d in range(16):
            for qb in range(4):
                for r in range(4): a(f"v_accvgpr_read_b32 v{V_T+4+r}, a{(d*4+qb)*4+r}")
                a("s_nop 0")
                for r in range(4): a(f"v_mul_f32 v{V_T+4+r}, v{V_T+4+r}, v{MX+qb}")
                for r in range(4): a(f"v_accvgpr_write_b32 a{(d*4+qb)*4+r}, v{V_T+4+r}")
    for kb in range(2):
        st = sm_stream(p, kb)
        for i, x in enumerate(st):
            a(x)
            if x.startswith("v_exp") and i + 1 < len(st) and not st[i+1].startswith("v_exp"):
                dst = x.split()[1].rstrip(",")
                if dst in st[i+1]: a("s_nop 0")
    a("s_nop 1")
slow = []
V_PFO, V_PFD = 226, 227
S_PFS = S_B1; S_PFO = S_TMP + 3
def sm_place(gaps, p, g_s0, g_s1, g_end):
    Pb = V_P + ((p + 1) % 2) * 16
    lo = V_L + (p % 2) * 4; ln = V_L + ((p + 1) % 2) * 4
    items = [(kb, qb, r) for kb in range(2) for qb in range(4) for r in range(4)]
    NT = 8
    T = lambda k: V_T + (k % NT)
    E = [f"v_exp_f32 v{T(k)}, v{V_S + (kb*4+qb)*4 + r}" for k, (kb, qb, r) in enumerate(items)]
    A = []
    for k, (kb, qb, r) in enumerate(items):
        src = lo + qb if (kb == 0 and r == 0) else ln + qb
        A.append(f"v_add_f32 v{ln + qb}, v{T(k)}, v{src}")
    C = [f"v_cvt_pk_bf16_f32 v{Pb + items[2*j][1]*4 + items[2*j][0]*2 + items[2*j][2]//2}, v{T(2*j)}, v{T(2*j+1)}" for j in range(16)]
    e = a_ = c = 0
    egap = {}
    for g in range(g_s0, g_end + 1):
        G = gaps[g]
        while G.cap >= 4:
            ra = a_ < 32 and a_ < e and egap[a_] < g
            rc = c < 16 and 2*c + 1 < e and egap[2*c+1] < g
            can_e = e < 32 and G.cap >= 8 and not G.v and (e < 16 or g >= g_s1) and (e < NT or (a_ > e - NT and c > (e - NT) // 2))
            pending = (e - a_) + (e // 2 - c)
            remaining_gaps = g_end - g
            if can_e and (pending < 5 or not (ra or rc)):
                G.add(E[e]); egap[e] = g; e += 1; break
            elif rc and (c <= a_ // 2 or not ra):
                G.add(C[c]); c += 1
            elif ra:
                G.add(A[a_]); a_ += 1
            elif rc:
                G.add(C[c]); c += 1
            else: break
    assert e == 32 and a_ == 32 and c == 16, (e, a_, c)

def period(p, qk=True, pv=True, sm=True, dK=None, dV=None, wait30="s_waitcnt vmcnt(1)", post=None, lab="", pre_issued=LA,
           czero=False, extra=None, top0=None, dtag=None, pf=False, nobar=False, midbar=None, postbar=None):
    fl = [f for f in range(32) if (f < 16 and qk) or (f >= 16 and pv)]
    n = len(fl)
    groups = [dict(reads=att_reads(p, f), mf=att_mf(p, f, czero), top=[], ring=RING_V) for f in fl]
    if top0: groups[0]["top"] = top0
    delay = {}
    inloop = lab in ("A", "B")
    if not nobar:
        groups[n - 2]["top"] = [wait30, "s_waitcnt lgkmcnt(0)", lambda: lg.ops.clear(), "s_barrier"]
        if inloop and OPT["x_nobar"] == 1: groups[n - 2]["top"] = ["s_waitcnt lgkmcnt(0)", lambda: lg.ops.clear()]
        if inloop and OPT["x_nobar"] == 2: groups[n - 2]["top"] = ["s_waitcnt lgkmcnt(0)", lambda: lg.ops.clear(), "s_barrier"]
        if postbar: groups[n - 2]["top"] = groups[n - 2]["top"] + [postbar]
        delay = {n: n - 2}
    if inloop and OPT["x_nodma"]: dK = dV = None
    if inloop and OPT["x_nopf"]: pf = False
    if inloop and OPT["x_nosm"]: sm = False
    if midbar is not None: groups[midbar]["top"] = groups[midbar]["top"] + ["s_barrier"]
    gaps = prep_groups(groups, pre_issued, post, delay)
    units = (dK or []) + (dV or [])
    if units: place_units(gaps, OPT["d0"], units, dtag, min(OPT["dstep"], (4 * n - 12) // len(units)))
    if pf:
        ins = f"buffer_load_dword v{V_PFD}, v{V_PFO}, s[{S_PFS}:{S_PFS+3}], s{S_PFO} offen"
        pos = min(4 * (n - 4), OPT["d0"] + 16 * OPT["dstep"] + 2)
        place_units(gaps, pos, [([f"s_add_u32 s{S_PFO}, s{S_PFO}, 0x8000"], ins)], "pf" if dtag else None, 1)
    if sm:
        sm_place(gaps, p, OPT["sm0a"], OPT["sm1a"], OPT["smend"])
        ln = V_L + ((p + 1) % 2) * 4
        tail = [f"v_max3_f32 v{V_T}, v{ln}, v{ln+1}, v{ln+2}", f"v_max_f32 v{V_T}, v{V_T}, v{ln+3}", f"v_cmp_lt_f32 vcc, s{S_THR}, v{V_T}"]
        for k, x in enumerate(tail): gaps[OPT["smend"] + 1 + k].add(x)
    if extra:
        for st, f0, f1 in extra: place_stream(gaps, st, f0, f1)
    emit_groups(groups, pre_issued=pre_issued, post=post, delay=delay)
    if sm:
        a(f"s_cbranch_vccnz L_slow{lab}")
        a.label(f"L_ret{lab}")
        slow.append((p, lab))
PR = lambda p, base=0: [(att_reads(p, base + i), RING_V) for i in range(LA)]

def store_stream(accreg, is_agpr, wsoff, tag, sreg, flags=""):
    st = [f"v_lshlrev_b32 v{V_T+6}, 4, v{V_LANE}",
          f"s_lshl_b32 s{sreg}, s{S_J}, 5", f"s_add_u32 s{sreg}, s{sreg}, s{S_T}",
          f"s_lshl_b32 s{sreg}, s{sreg}, 2", f"s_add_u32 s{sreg}, s{sreg}, s{S_W}",
          f"s_mul_i32 s{sreg}, s{sreg}, 14336", f"s_add_u32 s{sreg}, s{sreg}, {wsoff}"]
    return st
def store_body(accreg, is_agpr, tag, sreg, stage_regs, tmp, flags=""):
    st = []
    for s in range(14):
        nb, qp_ = s // 2, s % 2
        t = stage_regs + 4 * (s % 2)
        for hh in range(2):
            base = accreg + (nb * 4 + 2 * qp_ + hh) * 4
            if is_agpr:
                st += [f"v_accvgpr_read_b32 v{tmp+r}, a{base+r}" for r in range(4)] + ["s_nop 0"]
                src = tmp
            else: src = base
            st += [f"v_cvt_pk_bf16_f32 v{t+2*hh}, v{src}, v{src+1}", f"v_cvt_pk_bf16_f32 v{t+2*hh+1}, v{src+2}, v{src+3}"]
        st += [I_vm(f"buffer_store_dwordx4 {vr(t,4)}, v{V_T+6}, s[{S_WS}:{S_WS+3}], s{sreg} offen{flags}", tag), f"s_add_u32 s{sreg}, s{sreg}, 1024"]
    return st

mp = store_stream(GA, True, MP_OFF, "mp", S_X1) + store_body(GA, True, "mp", S_X1, V_P + 16, V_T, ["", " sc1", " nt", " sc0 sc1"][OPT["mpf"]])
top0 = [lambda: vm.wait(("st", 29)), "s_barrier"]
period(-1, qk=True, pv=False, sm=False, wait30=(lambda: vm.wait(("st", 30))), post=PR(0), top0=top0, extra=[(mp, 6, 63)], dtag="kk")
for i in range(8): a(f"v_mov_b32 v{V_L+i}, 0")
if OPT["prefetch"]: prefetch("wo", GR)
rescale(-1, True)
dump_regs("q", "v", V_Q, 128)
stamp()
PFL = OPT["kvpf"] == 3
W30 = "s_waitcnt vmcnt(1)" if PFL else "s_waitcnt vmcnt(0)"
S_DBG = S_W2
def mp_signal():
    a(f"s_cmp_lg_u32 s{S_W}, 0"); a("s_cbranch_scc1 L_mpsig")
    a(f"s_lshl_b32 s{S_X1}, s{S_T}, 8"); a(f"s_lshl_b32 s{S_X2}, s{S_J}, 2"); a(f"s_add_u32 s{S_X1}, s{S_X1}, s{S_X2}"); a(f"s_add_u32 s{S_X1}, s{S_X1}, {FLG_OFF}")
    a("s_mov_b64 exec, 1")
    a(f"v_mov_b32 v228, s{S_NONCE}"); a("v_mov_b32 v229, 0")
    a(f"buffer_store_dword v228, v229, s[{S_WS}:{S_WS+3}], s{S_X1} offen sc1")
    a("s_mov_b64 exec, -1")
    a.label("L_mpsig")
period(0, dK=dma_kv("K", 0), dV=dma_kv("V", 3), post=PR(1), lab="Z", czero=True, wait30=W30, pf=PFL, postbar=mp_signal)
vm.ops = []
a(f"s_mov_b32 s{S_CNT}, 14")
a(".p2align 6")
a.label("L_loop")
sv = list(lg.ops)
period(1, dK=dma_kv("K", 1), dV=dma_kv("V", 2), post=PR(2), lab="A", pf=PFL, wait30=W30)
period(2, dK=dma_kv("K", 0), dV=dma_kv("V", 3), post=PR(3), lab="B", pf=PFL, wait30=W30)
assert len(lg.ops) == len(sv), (lg.ops, sv)
a(f"s_sub_u32 s{S_CNT}, s{S_CNT}, 1")
a(f"s_cmp_lg_u32 s{S_CNT}, 0")
a("s_cbranch_scc1 L_loop")
stamp()
V_DWW = V_SC + 1
dma_voffsets("w")
op_dma = lambda s: dma_stage("OP", s, s % 4) if s < 16 else None
period(1, dK=dma_kv("K", 1), dV=dma_kv("V", 2), post=PR(2), lab="C", wait30="s_waitcnt vmcnt(0)")
period(2, dK=op_dma(0), dV=dma_kv("V", 3), post=PR(3, 16), lab="D", wait30="s_waitcnt vmcnt(0)")
vm.ops = []
LF = V_L + 4 * ((30 + 1) % 2)
SCL = 16; SCP = 24
VA1, VA2, VMGW, VMGR, VL16 = 28, 29, 30, 31, 228
def stats_a():
    st = []
    vs = [LF + q for q in range(4)]; ts = [q for q in range(4)]
    for sw in ("v_permlane16_swap_b32", "v_permlane32_swap_b32"):
        st += [f"v_mov_b32 v{t}, v{v}" for v, t in zip(vs, ts)]
        st += [f"{sw} v{v}, v{t}" for v, t in zip(vs, ts)]
        st += [f"v_add_f32 v{v}, v{v}, v{t}" for v, t in zip(vs, ts)]
    for qb in range(4):
        st += [f"v_sub_f32 v{2*qb}, 0, v{V_NEG+4*qb}", f"v_mov_b32 v{2*qb+1}, v{LF+qb}"]
    st += [f"v_and_b32 v{VA2}, 15, v{V_LANE}", f"v_lshlrev_b32 v{VA2}, 3, v{VA2}",
           f"s_lshl_b32 s{S_X1}, s{S_W}, 9", f"s_add_u32 s{S_X1}, s{S_X1}, {ML}", f"v_add_u32 v{VA1}, s{S_X1}, v{VA2}",
           f"s_xor_b32 s{S_X1}, s{S_X1}, 512", f"v_add_u32 v{VA2}, s{S_X1}, v{VA2}"]
    st += [I_lds(f"ds_write_b64 v{VA1}, {vr(2*qb,2)} offset:{qb*128}", "mlw") for qb in range(4)]
    st += [I_wlg("mlw")]
    return st
def stats_b():
    st = [I_lds(f"ds_read_b64 {vr(8+2*qb,2)}, v{VA2} offset:{qb*128}", "mlr") for qb in range(4)]
    st += [f"v_lshlrev_b32 v{VL16}, 4, v{V_LANE}",
           f"s_lshl_b32 s{S_X1}, s{S_W}, 14", f"s_add_u32 s{S_X1}, s{S_X1}, {2*PS}", f"v_add_u32 v{VMGW}, s{S_X1}, v{VL16}",
           f"s_xor_b32 s{S_X2}, s{S_W}, 1", f"s_lshl_b32 s{S_X2}, s{S_X2}, 14", f"s_add_u32 s{S_X2}, s{S_X2}, {2*PS}", f"v_add_u32 v{VMGR}, s{S_X2}, v{VL16}"]
    st += [I_wlg("mlr")]
    st += [f"v_max_f32 v{20+qb}, v{2*qb}, v{8+2*qb}" for qb in range(4)]
    for qb in range(4): st += [f"v_sub_f32 v{2*qb}, v{2*qb}, v{20+qb}", f"v_sub_f32 v{8+2*qb}, v{8+2*qb}, v{20+qb}"]
    for qb in range(4): st += [f"v_exp_f32 v{2*qb}, v{2*qb}", f"v_exp_f32 v{8+2*qb}, v{8+2*qb}"]
    st += [f"v_mul_f32 v{2*qb+1}, v{2*qb+1}, v{2*qb}" for qb in range(4)]
    st += [f"v_fma_f32 v{2*qb+1}, v{9+2*qb}, v{8+2*qb}, v{2*qb+1}" for qb in range(4)]
    st += [f"v_rcp_f32 v{2*qb+1}, v{2*qb+1}" for qb in range(4)]
    st += [f"v_mul_f32 v{SCL+qb}, v{2*qb}, v{2*qb+1}" for qb in range(4)]
    st += [f"v_mul_f32 v{SCP+qb}, v{8+2*qb}, v{2*qb+1}" for qb in range(4)]
    return st
assert ML % 1024 == 0
period(1, qk=False, pv=True, sm=False, dK=op_dma(1), dtag=("s3", 1), nobar=True,
       extra=[(stats_a(), 1, 27), (stats_b(), 29, 63)], midbar=7)
stamp()

gstamp()
a("s_nop 7"); a("s_nop 3")
a("s_barrier")
gstamp()
OFR = 32
TS = 96
TK = 160
def bsel(reg):
    if reg % 2 == 0: return vr(reg, 2), "op_sel_hi:[1,0]", "op_sel_hi:[1,0,1]"
    return vr(reg - 1, 2), "op_sel:[0,1]", "op_sel:[0,1,0]"
def merge_variant(c):
    send0 = 8 * (1 - c); keep0 = 8 * c
    for rho in range(2):
        blocks = [(dl, qb) for dl in range(4) for qb in range(4)]
        for k, (dl, qb) in enumerate(blocks):
            sb = ((send0 + 4*rho + dl) * 4 + qb) * 4
            lds(f"ds_write_b128 v{VMGW}, {ar(sb,4)} offset:{k*1024}")
            kb_ = ((keep0 + 4*rho + dl) * 4 + qb) * 4
            t = TS + 4 * k
            for r in range(4): a(f"v_accvgpr_read_b32 v{t+r}, a{kb_+r}")
            pr, s2, s3 = bsel(SCL + qb)
            for r in (0, 2): a(f"v_pk_mul_f32 {vr(t+r,2)}, {vr(t+r,2)}, {pr} {s2}")
        if c == 0: gstamp()
        lg.wait_all()
        a("s_barrier")
        if c == 0: gstamp()
        for k in range(16): lds(f"ds_read_b128 {vr(TK+4*k,4)}, v{VMGR} offset:{k*1024}", ("mr", k // 2))
        for k2 in range(8):
            lg.wait(("mr", k2))
            for k in (2*k2, 2*k2+1):
                dl, qb = blocks[k]
                t = TS + 4 * k; u = TK + 4 * k
                pr, s2, s3 = bsel(SCP + qb)
                for r in (0, 2): a(f"v_pk_fma_f32 {vr(t+r,2)}, {vr(u+r,2)}, {pr}, {vr(t+r,2)} {s3}")
            for k in (2*k2, 2*k2+1):
                dl, qb = blocks[k]
                t = TS + 4 * k
                d = 4 * rho + dl
                o = OFR + ((d // 2) * 4 + qb) * 4 + (d % 2) * 2
                a(f"v_cvt_pk_bf16_f32 v{o}, v{t}, v{t+1}"); a(f"v_cvt_pk_bf16_f32 v{o+1}, v{t+2}, v{t+3}")
        if c == 0: gstamp()
        a("s_barrier")
sv = list(lg.ops)
a(f"s_cmp_eq_u32 s{S_C}, 0")
a("s_cbranch_scc0 L_mv1")
merge_variant(0)
a("s_branch L_mvd")
a.label("L_mv1")
lg.ops = list(sv)
merge_variant(1)
a.label("L_mvd")
for f in range(16): lds(f"ds_write_b128 v{VMGW}, {vr(OFR+4*f,4)} offset:{f*1024}")
a(f"v_add_u32 v{VL16}, {2*PS}, v{VL16}")
rowp_cc()
a(f"v_lshl_add_u32 v{V_AA[0]}, v{V_CC}, 3, v{V_ROWP}")
a(f"s_mul_i32 s{S_TMP}, s{S_A}, {BLK}"); a(f"s_mul_i32 s{S_TMP+1}, s{S_C}, 224"); a(f"s_add_u32 s{S_TMP}, s{S_TMP}, s{S_TMP+1}")
a(f"v_add_u32 v{V_AA[0]}, s{S_TMP}, v{V_AA[0]}")
a(f"v_add_u32 v{V_AA[1]}, {2*PS}, v{V_AA[0]}")
lg.wait_all()
gstamp()
a("s_barrier")
gstamp()
for f in range(64):
    lds(f"ds_read_b128 {ar(4*f,4)}, v{VL16} offset:{f*1024}")
    if f % 12 == 11: a("s_waitcnt lgkmcnt(4)"); lg.ops = lg.ops[-4:]
lg.wait_all()
vm.wait(("s3", 1))
a("s_barrier")
dump_regs("o", "a", 0, 256)
stamp(OPT["fine"] in (0, 2, 3))
emit_units(op_dma(2), ("s3", 2))
emit_units(op_dma(3), ("s3", 3))

ofrag = lambda ks, qb: ar((ks * 4 + qb) * 4, 4)
OA = 0
opacc = lambda nb, qb: vr(OA + (nb * 4 + qb) * 4, 4)
S_OUT = S_W1; S_B2 = S_WQ; S_FL = 8
S_MPOK = S_CNT; S_SH = S_KOFF; S_MASK = S_VOFF
S_PO = [S_BG1, S_BQP]; S_RO = [S_BG2, S_GKV]; S_BO = [S_LDSW, S_PFO]
VMP = 112; VG_G = 176; VXR = 192; VB2 = 200; VLN = 204; VXO = 205; VBO = 206
JS = 32 * PART
uid = [0]
def share_scalars(sh):
    for b in range(2):
        t0, t1, t2 = S_TMP, S_TMP + 1, S_TMP + 2
        a(f"s_mul_i32 s{t0}, s{sh}, 7"); a(f"s_add_u32 s{t0}, s{t0}, s{S_W}")
        if b: a(f"s_add_u32 s{t0}, s{t0}, 4")
        a(f"s_mul_i32 s{S_PO[b]}, s{S_T}, {PART}"); a(f"s_lshl_b32 s{t1}, s{t0}, 10"); a(f"s_add_u32 s{S_PO[b]}, s{S_PO[b]}, s{t1}")
        a(f"s_mul_hi_u32 s{t1}, s{t0}, 0x12492493")
        a(f"s_mul_i32 s{t2}, s{t1}, 14"); a(f"s_sub_u32 s{t2}, s{t0}, s{t2}")
        a(f"s_mul_i32 s{t1}, s{t1}, 112"); a(f"s_lshr_b32 s{t0}, s{t2}, 1"); a(f"s_lshl_b32 s{t0}, s{t0}, 4"); a(f"s_add_u32 s{t1}, s{t1}, s{t0}")
        a(f"s_lshl_b32 s{S_BO[b]}, s{t1}, 1")
        a(f"s_and_b32 s{t2}, s{t2}, 1"); a(f"s_lshl_b32 s{t2}, s{t2}, 5"); a(f"s_lshl_b32 s{t0}, s{S_T}, 6"); a(f"s_add_u32 s{t2}, s{t2}, s{t0}")
        a(f"s_mul_i32 s{t2}, s{t2}, 896"); a(f"s_add_u32 s{S_RO[b]}, s{t2}, s{S_BO[b]}")
        if b:
            a(f"s_cmp_lt_u32 s{S_W}, 3")
            for r_ in (S_PO[b], S_RO[b], S_BO[b]): a(f"s_cselect_b32 s{r_}, s{r_}, 0x40000000")
def load_mp(tag):
    for b in range(2):
        for jj in range(8):
            a(f"s_add_u32 s{S_SO}, s{S_PO[b]}, {MP_OFF + jj*JS}")
            vmem(f"buffer_load_dwordx4 {vr(VMP + (b*8+jj)*4,4)}, v{VLN}, s[{S_WS}:{S_WS+3}], s{S_SO} offen sc1", tag)
    for b in range(2):
        vmem(f"buffer_load_dwordx2 {vr(VXR+4*b,2)}, v{VXO}, s[{S_X}:{S_X+3}], s{S_RO[b]} offen", tag)
        a(f"s_add_u32 s{S_SO}, s{S_RO[b]}, 14336")
        vmem(f"buffer_load_dwordx2 {vr(VXR+4*b+2,2)}, v{VXO}, s[{S_X}:{S_X+3}], s{S_SO} offen", tag)
        vmem(f"buffer_load_dwordx2 {vr(VB2+2*b,2)}, v{VBO}, s[{S_B2}:{S_B2+3}], s{S_BO[b]} offen", tag)
def sum8(dst, src0, T0):
    for jj in range(8):
        for i in range(4):
            r = src0 + 4*jj + i
            if jj == 0:
                a(f"v_lshlrev_b32 v{dst+2*i}, 16, v{r}"); a(f"v_and_b32 v{dst+2*i+1}, 0xffff0000, v{r}")
            else:
                a(f"v_lshlrev_b32 v{T0}, 16, v{r}"); a(f"v_and_b32 v{T0+1}, 0xffff0000, v{r}")
                a(f"v_pk_add_f32 {vr(dst+2*i,2)}, {vr(dst+2*i,2)}, {vr(T0,2)}")
def calc_g():
    a(f"s_mov_b32 s{S_SO}, {f32(-math.log2(math.e))}")
    for b in range(2):
        g = VG_G + 8*b
        sum8(g, VMP + b*32, V_T)
        for i in range(2):
            a(f"v_lshlrev_b32 v{V_T+2+2*i}, 16, v{VB2+2*b+i}"); a(f"v_and_b32 v{V_T+3+2*i}, 0xffff0000, v{VB2+2*b+i}")
        for e in range(8): a(f"v_add_f32 v{g+e}, v{g+e}, v{V_T+2+e%4}")
        E = V_F + 8*b
        for e in range(8): a(f"v_mul_f32 v{E+e}, s{S_SO}, v{g+e}")
        for e in range(8): a(f"v_exp_f32 v{E+e}, v{E+e}")
        for e in range(8): a(f"v_add_f32 v{E+e}, 1.0, v{E+e}")
        for e in range(8): a(f"v_rcp_f32 v{E+e}, v{E+e}")
        a("s_nop 0")
        for e in range(8): a(f"v_mul_f32 v{g+e}, v{g+e}, v{E+e}")
def fin():
    VSP = 0
    for b in range(2):
        for jj in range(8):
            a(f"s_add_u32 s{S_SO}, s{S_PO[b]}, {SP_OFF + jj*JS}")
            a(f"buffer_load_dwordx4 {vr(VSP + (b*8+jj)*4,4)}, v{VLN}, s[{S_WS}:{S_WS+3}], s{S_SO} offen sc1")
    for b in range(2):
        a(f"s_waitcnt vmcnt({8 if b == 0 else 0})")
        sm_ = 64 + 8*b
        sum8(sm_, VSP + b*32, V_T)
        for hh in range(2):
            for i in range(2):
                a(f"v_lshlrev_b32 v{V_T+2}, 16, v{VXR+4*b+2*hh+i}"); a(f"v_and_b32 v{V_T+3}, 0xffff0000, v{VXR+4*b+2*hh+i}")
                e = 4*hh + 2*i
                a(f"v_fma_f32 v{sm_+e}, v{sm_+e}, v{VG_G+8*b+e}, v{V_T+2}"); a(f"v_fma_f32 v{sm_+e+1}, v{sm_+e+1}, v{VG_G+8*b+e+1}, v{V_T+3}")
        o = 80 + 4*b
        for hh in range(2):
            a(f"v_cvt_pk_bf16_f32 v{o+2*hh}, v{sm_+4*hh}, v{sm_+4*hh+1}"); a(f"v_cvt_pk_bf16_f32 v{o+2*hh+1}, v{sm_+4*hh+2}, v{sm_+4*hh+3}")
        a(f"buffer_store_dwordx2 {vr(o,2)}, v{VXO}, s[{S_OUT}:{S_OUT+3}], s{S_RO[b]} offen")
        a(f"s_add_u32 s{S_SO}, s{S_RO[b]}, 14336")
        a(f"buffer_store_dwordx2 {vr(o+2,2)}, v{VXO}, s[{S_OUT}:{S_OUT+3}], s{S_SO} offen")

op = gemm_groups("OP", 16, 0, opacc, ofrag, RING_V, V_AA, "s3", first_top=False)
def op_pre():
    srd(S_OUT, 94, 95, 1835008); srd(S_B2, 92, 93, 896)
    a(f"v_lshlrev_b32 v{VLN}, 4, v{V_LANE}")
    a(f"v_and_b32 v{V_T}, 15, v{V_LANE}"); a(f"v_lshrrev_b32 v{V_T+1}, 4, v{V_LANE}")
    a(f"v_mul_u32_u24 v{VXO}, 896, v{V_T}"); a(f"v_lshl_add_u32 v{VXO}, v{V_T+1}, 3, v{VXO}")
    a(f"v_lshlrev_b32 v{VBO}, 3, v{V_T+1}")
    a(f"s_lshl_b32 s{S_X1}, s{S_T}, 8"); a(f"s_add_u32 s{S_X1}, s{S_X1}, {FLG_OFF}")
    a(f"s_load_dwordx8 s[{S_FL}:{S_FL+7}], s[{S_WSP}:{S_WSP+1}], s{S_X1}")
def op_flag():
    a("s_waitcnt lgkmcnt(0)"); lg.ops.clear()
    a(f"s_mov_b32 s{S_X2}, 0")
    for k in range(8):
        a(f"s_xor_b32 s{S_FL+k}, s{S_FL+k}, s{S_NONCE}"); a(f"s_or_b32 s{S_X2}, s{S_X2}, s{S_FL+k}")
    a(f"s_cmp_eq_u32 s{S_X2}, {0 if not OPT['noearly'] else 99}")
    a(f"s_cselect_b32 s{S_MPOK}, 1, 0")
    share_scalars_x(S_J)
def share_scalars_x(sh):
    share_scalars(sh)
op[7 * 9]["top"].append(op_pre)
op[7 * 12]["top"].append(op_flag)
opgaps = prep_groups(op)
gemm_dma(op, opgaps, op_dma, "s3", skip=(3,))
st = []
for b in range(2):
    for jj in range(8):
        st += [f"s_add_u32 s{S_X2}, s{S_PO[b]}, {MP_OFF + jj*JS}",
               I_vm(f"buffer_load_dwordx4 {vr(VMP + (b*8+jj)*4,4)}, v{VLN}, s[{S_WS}:{S_WS+3}], s{S_X2} offen sc1", "mpl")]
for b in range(2):
    st += [I_vm(f"buffer_load_dwordx2 {vr(VXR+4*b,2)}, v{VXO}, s[{S_X}:{S_X+3}], s{S_RO[b]} offen", "mpl"),
           f"s_add_u32 s{S_X2}, s{S_RO[b]}, 14336",
           I_vm(f"buffer_load_dwordx2 {vr(VXR+4*b+2,2)}, v{VXO}, s[{S_X}:{S_X+3}], s{S_X2} offen", "mpl"),
           I_vm(f"buffer_load_dwordx2 {vr(VB2+2*b,2)}, v{VBO}, s[{S_B2}:{S_B2+3}], s{S_BO[b]} offen", "mpl")]
if OPT["mpin"]: place_stream(opgaps, st, 4 * 7 * 13 + 1, 4 * 7 * 16 - 1)
emit_groups(op)
stamp(); hstamp()
a("s_nop 7"); a("s_nop 1")
for x in store_stream(OA, False, SP_OFF, "sp", S_X1) + store_body(OA, False, "sp", S_X1, V_F, V_T + 4, " sc1"): do(x)
hstamp()
vm.wait("sp")
hstamp()
a("s_barrier")
hstamp()
a(f"s_cmp_lg_u32 s{S_W}, 0"); a("s_cbranch_scc1 L_posted")
a(f"s_lshl_b32 s{S_X1}, s{S_T}, 2")
a(f"s_lshl_b32 s{S_X2}, s{S_T}, 8"); a(f"s_add_u32 s{S_X2}, s{S_X2}, {FLG_OFF + 128}")
a("s_mov_b64 exec, 1")
a(f"s_lshl_b32 s{S_TMP}, s{S_J}, 2"); a(f"v_mov_b32 v2, s{S_TMP}"); a(f"v_mov_b32 v4, s{S_NONCE}")
a(f"buffer_store_dword v4, v2, s[{S_WS}:{S_WS+3}], s{S_X2} offen sc1")
a("v_mov_b32 v0, 1"); a("v_mov_b32 v1, 0")
a(f"buffer_atomic_add v0, v1, s[{S_DBG}:{S_DBG+3}], s{S_X1} offen sc0")
a("s_mov_b64 exec, -1")
a.label("L_posted")
if not OPT["mpin"]:
    load_mp("mpl")
    a("s_waitcnt vmcnt(0)")
calc_g()
hstamp()
a(f"s_cmp_lg_u32 s{S_W}, 0"); a("s_cbranch_scc1 L_sync_done")
a(f"v_lshlrev_b32 v3, 2, v{V_LANE}")
a(f"s_lshl_b32 s{S_MASK}, 1, s{S_J}")
a(f"s_mov_b32 s{S_TMP+2}, {OPT['polls']}")
a("s_mov_b64 exec, 0xff")
a.label("L_poll")
a(f"s_cmp_eq_u32 s{S_TMP+2}, 0"); a("s_cbranch_scc1 L_abandon")
a(f"buffer_load_dword v5, v3, s[{S_WS}:{S_WS+3}], s{S_X2} offen sc1")
a("s_waitcnt vmcnt(0)")
a(f"v_cmp_eq_u32 vcc, s{S_NONCE}, v5")
a("s_nop 4")
a("s_cmp_eq_u64 vcc, 0xff"); a("s_cbranch_scc1 L_polled")
a(f"s_sub_u32 s{S_TMP+2}, s{S_TMP+2}, 1")
a(f"s_sleep {OPT['slp']}")
a("s_branch L_poll")
a.label("L_abandon")
a("s_mov_b64 exec, 1")
a("s_waitcnt vmcnt(0)")
a(f"v_readfirstlane_b32 s{S_TMP}, v0")
a(f"s_and_b32 s{S_TMP}, s{S_TMP}, 0xff")
a(f"s_cmp_eq_u32 s{S_TMP}, 7"); a("s_cbranch_scc1 L_polled")
a(f"s_add_u32 s{S_TMP+1}, s{S_J}, 8"); a(f"s_lshl_b32 s{S_TMP+1}, 1, s{S_TMP+1}")
a(f"v_mov_b32 v6, s{S_TMP+1}")
a(f"buffer_atomic_or v6, v1, s[{S_DBG}:{S_DBG+3}], s{S_X1} offen sc0")
a("s_waitcnt vmcnt(0)")
a(f"v_readfirstlane_b32 s{S_TMP}, v6")
a(f"s_and_b32 s{S_TMP}, s{S_TMP}, 0xff")
a(f"s_cmp_eq_u32 s{S_TMP}, 8")
a(f"s_cselect_b32 s{S_MASK}, s{S_MASK}, 0")
a("s_branch L_decided")
a.label("L_polled")
a("s_mov_b64 exec, 1")
a(f"v_readfirstlane_b32 s{S_TMP}, v0")
a(f"s_and_b32 s{S_TMP+1}, s{S_TMP}, 0xff")
a(f"s_cmp_eq_u32 s{S_TMP+1}, 7"); a("s_cbranch_scc0 L_decided")
a(f"s_bfe_u32 s{S_TMP+1}, s{S_TMP}, 0x80008"); a(f"s_or_b32 s{S_MASK}, s{S_MASK}, s{S_TMP+1}")
a.label("L_decided")
a(f"v_mov_b32 v0, s{S_MASK}"); a(f"v_mov_b32 v1, {XREG}")
a("ds_write_b32 v1, v0")
a("s_waitcnt lgkmcnt(0)")
a("s_mov_b64 exec, -1")
a.label("L_sync_done")
a("s_barrier")
a(f"v_mov_b32 v1, {XREG}")
a("ds_read_b32 v0, v1")
a("s_waitcnt lgkmcnt(0)")
a(f"v_readfirstlane_b32 s{S_MASK}, v0")
hstamp()
a.label("L_shares")
a(f"s_cmp_eq_u32 s{S_MASK}, 0"); a("s_cbranch_scc1 L_fin_done")
a(f"s_ff1_i32_b32 s{S_SH}, s{S_MASK}")
a(f"s_bitset0_b32 s{S_MASK}, s{S_SH}")
a(f"s_cmp_eq_u32 s{S_SH}, s{S_J}"); a(f"s_cselect_b32 s{S_X1}, s{S_MPOK}, 0")
a(f"s_cmp_eq_u32 s{S_X1}, 1"); a("s_cbranch_scc1 L_haveg")
share_scalars(S_SH)
load_mp("mpl2")
a("s_waitcnt vmcnt(0)")
calc_g()
a(f"s_mov_b32 s{S_MPOK}, 0")
a.label("L_haveg")
fin()
a("s_branch L_shares")
a.label("L_fin_done")
hstamp()
vm.ops = []
if OPT["stamps"]:
    a("s_waitcnt vmcnt(0) lgkmcnt(0)")
    stamp(True)
    a("s_waitcnt lgkmcnt(0)")
    a(f"s_cmp_lg_u32 s{S_W}, {OPT['swave']}"); a("s_cbranch_scc1 L_end")
    a(f"s_lshl_b32 s{S_TMP}, s2, 7"); a(f"s_add_u32 s{S_TMP}, s{S_TMP}, {STAMP_OFF}")
    a("v_mov_b32 v20, 0")
    a("v_mov_b32 v0, s98")
    for i in range(15): a(f"v_mov_b32 v{i+1}, s{S_ST+2*min(i, nstamp[0]-1)}")
    for q in range(4): a(f"buffer_store_dwordx4 {vr(4*q,4)}, v20, s[{S_WS}:{S_WS+3}], s{S_TMP} offen offset:{16*q}")
a.label("L_end")
a("s_endpgm")
for p, lab in slow:
    a.label(f"L_slow{lab}")
    rescale(p, False)
    a(f"s_branch L_ret{lab}")
main_text = a.text()

KMAIN = NAME + "_kernel"
src = HEADER_COMMENT
src += f"; @launch grid=(256,1,1) block=(256,1,1) lds={LDS_TOTAL}\n"
src += '.amdgcn_target "amdgcn-amd-amdhsa--gfx950"\n.text\n'
src += kernel_begin(KMAIN) + main_text
src += kernel_desc(KMAIN, 512, 102, 256)
open(sys.argv[1], "w").write(src)
```

```python
import sys, math, struct
from asmlib import Asm, NAME, HEADER_COMMENT, kernel_begin, kernel_desc, vr, ar

OPT = dict(x_b=0, x_nat=0, ew=1, dpos=0, x_g=0, mpin=1, slp=4, polls=64, noearly=0, xdma=0, swave=0, fine=0, cpf=1, tlbw=0, pfpos=3, gcap=12, tt=1, xs=1, mpf=1, spf=1, x_nodma=0, x_nobar=0, x_nosm=0, x_nopf=0, x_nolg0=0, d0=2, sm1a=68, smend=123, W=2, dstep=4, pfd=6, qlsc=0, kvpf=3, gelu_end=11, gran=128, stamps=0, prefetch=1, thr=0x4f800000, dump="", sm0a=36, sm0b=76, sm1b=120, kstep=6, vstep=3)
for x in sys.argv[2:]:
    k, v = x.split("=")
    OPT[k] = int(v, 0) if k != "dump" else v

def f32(x):
    return "0x%08x" % struct.unpack("<I", struct.pack("<f", x))[0]

UNIT = 1056; BLK = 16 * UNIT; PS = 2 * BLK
XREG = 4 * PS
LDS_TOTAL = 163840
STATS = XREG
HL = XREG
ML = XREG
SP_OFF = 0
MP_OFF = 0x1000000
QX_OFF = 0x1E00000
QX_OFF = 0x2000000
FLG_OFF = 0x2000000
PART = 57344
DUMP_OFF = 0x3000000
STAMP_OFF = 0x7000000
WS_SIZE = 0x8000000

S_W = 3; S_WSP = 4
S_K, S_V, S_X, S_WQ, S_WO, S_W1, S_W2, S_WS, S_B1 = 8, 12, 16, 20, 24, 28, 32, 36, 40
S_J, S_T = 44, 45
S_LDSW = 46; S_GKV = 47
S_KOFF, S_VOFF = 48, 49
S_SO = 50; S_CNT = 51; S_THR = 52
S_A, S_C = 53, 54
S_TMP = 55
S_BG1, S_BQP, S_BG2, S_BOP = 60, 61, 62, 63
S_M0 = 64
S_ST = 68
S_X1 = 100; S_X2 = 101
S_NONCE = 59

V_Q = 0; V_S = 128; V_P = 160; V_NEG = 192; V_F = 208; V_SC = 224; V_T = 232; V_L = 240
V_KA2 = 246 + 0
V_KA2 = 224
V_KA = 248; V_VA = 249; V_DO = 250; V_LANE = 251
V_AA = [252, 253]; V_DW1 = 254; V_DWQ = 255; V_DWW = 247
V_B4 = 240
V_ROWP, V_CC = 244, 245
A_PF = 255
A_BIAS = 224

a = Asm()

class Tracker:
    def __init__(self, name, maxc): self.ops = []; self.name = name; self.maxc = maxc
    def issue(self, tag): self.ops.append(tag)
    def count(self, tag):
        idx = max([i for i, t in enumerate(self.ops) if t == tag], default=None)
        return None if idx is None else len(self.ops) - 1 - idx
    def wait(self, tag):
        n = self.count(tag)
        if n is None: return
        a(f"s_waitcnt {self.name}({min(n, self.maxc)})")
        n = min(n, self.maxc)
        self.ops = self.ops[len(self.ops) - n:] if n > 0 else []
    def wait_all(self):
        a(f"s_waitcnt {self.name}(0)"); self.ops = []
vm = Tracker("vmcnt", 63)
lg = Tracker("lgkmcnt", 15)
def vmem(ins, tag): a(ins); vm.issue(tag)
def lds(ins, tag="x"): a(ins); lg.issue(tag)

class It:
    def __init__(self, cost, fn, kind="m"): self.cost = cost; self.fn = fn; self.kind = kind
def kind_of(x):
    if isinstance(x, It): return x.kind
    op = x.split()[0]
    if op.startswith("s_"): return "s"
    if op.startswith(("ds_", "buffer_", "global_")): return "m"
    return "v"
def cost(x):
    if isinstance(x, It): return x.cost
    op = x.split()[0]
    if op.startswith("s_"): return 0
    if op.startswith(("v_exp", "v_log", "v_rcp", "v_rsq", "v_sqrt")): return 8
    if op.startswith("buffer_"): return 8
    return 4
def do(x):
    if isinstance(x, It): x.fn()
    elif callable(x): x()
    else: a(x)
def I_vm(ins, tag): return It(8, lambda: vmem(ins, tag), "m")
def I_lds(ins, tag="x"): return It(8 if "write" in ins else 4, lambda: lds(ins, tag), "m")
def I_wvm(tag): return It(0, lambda: vm.wait(tag), "s")
def I_wlg(tag): return It(0, lambda: lg.wait(tag), "s")

class Gap:
    def __init__(self): self.s = []; self.m = []; self.v = []; self.cap = 8
    def add(self, x, force=False):
        k = kind_of(x); c = cost(x)
        if k == "s":
            if self.v: self.v.append(x)
            elif self.m and getattr(self, "strict", False): self.m.append(x)
            else: self.s.append(x)
        elif k == "m":
            if self.v: self.v.append(x)
            else: self.m.append(x)
        else: self.v.append(x)
        self.cap -= c
    def items(self): return self.s + self.m + self.v

def place_stream(gaps, stream, first, last):
    idxs = list(range(first, last + 1))
    free = sum(max(gaps[g].cap, 0) for g in idxs)
    need = sum(cost(x) for x in stream)
    ratio = min(1.0, need / max(free, 1))
    k = 0; used = 0.0; budget = 0.0
    for j, g in enumerate(idxs):
        G = gaps[g]; G.strict = True
        budget += max(G.cap, 0) * ratio + 1e-9
        lastg = j == len(idxs) - 1
        while k < len(stream):
            x = stream[k]; c = cost(x)
            if lastg or c == 0 or (c <= G.cap and used + c <= budget + 4):
                if kind_of(x) == "m" and G.v and not lastg: break
                G.add(x); used += c; k += 1
            else: break
    assert k == len(stream), (k, len(stream))

KMAIN = "fused_main_kernel"; KFIN = "fused_final_kernel"
nstamp = [0]
def fstamp():
    if OPT["fine"] == 1: stamp(True)
def gstamp():
    if OPT["fine"] == 2: stamp(True)
def hstamp():
    if OPT["fine"] == 3: stamp(True)
def stamp(force=False):
    if not OPT["stamps"]: return
    if OPT["fine"] == 1 and not force and nstamp[0] >= 3: return
    if OPT["fine"] == 1 and force and nstamp[0] >= 15: return
    if OPT["fine"] in (2, 3) and not force: return
    i = nstamp[0]; nstamp[0] += 1
    assert i < 12, i
    a(f"s_memtime s[{S_ST+2*i}:{S_ST+2*i+1}]")
def srd(base, lo, hi, size):
    a(f"s_mov_b32 s{base}, s{lo}"); a(f"s_mov_b32 s{base+1}, s{hi}")
    a(f"s_mov_b32 s{base+2}, {size}"); a(f"s_mov_b32 s{base+3}, 0x20000")
def reg(spec, off, n):
    kind, base = spec
    return (vr if kind == "v" else ar)(base + off, n)

def dma_stage(kind, s, ps):
    out = []
    if kind in ("G1", "QP"):
        rs = 3584 if kind == "G1" else 8192
        sr_ = S_W1 if kind == "G1" else S_WQ
        base = S_BG1 if kind == "G1" else S_BQP
        vo = V_DW1 if kind == "G1" else V_DWQ
        for k in range(8):
            rho = 8 * (k >> 2) + (k & 3)
            rows = (64 * s if kind == "G1" else 32 * s) + rho
            out.append(([f"s_add_u32 s{S_SO}, s{base}, {rows * rs}", f"s_add_u32 m0, s{S_M0+ps}, {k*UNIT}"],
                        f"buffer_load_dwordx4 v{vo}, s[{sr_}:{sr_+3}], s{S_SO} offen lds"))
    else:
        sr_ = S_W2 if kind == "G2" else S_WO
        base = S_BG2 if kind == "G2" else S_BOP
        for k in range(8):
            sal = []
            if k % 4 == 0: sal.append(f"s_add_u32 s{S_SO}, s{base}, {(32 * s + k) * 896}")
            sal.append(f"s_add_u32 m0, s{S_M0+ps}, {k*UNIT - 896*(k%4)}")
            out.append((sal, f"buffer_load_dwordx4 v{V_DWW}, s[{sr_}:{sr_+3}], s{S_SO} offen offset:{896*(k%4)} lds"))
    return out
def dma_kv(which, ps):
    sr_ = S_K if which == "K" else S_V
    so = S_KOFF if which == "K" else S_VOFF
    out = []
    for k in range(8):
        sal = [f"s_add_u32 s{so}, s{so}, 0x8000", f"s_mov_b32 m0, s{S_M0+ps}"] if k == 0 else ["s_add_u32 m0, m0, 544"]
        out.append((sal, f"buffer_load_dwordx4 v{V_DO}, s[{sr_}:{sr_+3}], s{so} offen offset:{512*k} lds"))
    return out
def emit_units(units, tag):
    for sal, d in units:
        for x in sal: a(x)
        a("s_nop 0")
        vmem(d, tag)
def stage_dma(gs):
    if gs < 7: return dma_stage("G1", gs, gs % 4)
    if gs < 21: return dma_stage("QP", gs - 7, gs % 4)
    if gs < 28: return dma_stage("G2", gs - 21, gs % 4)
    if gs == 28: return dma_kv("K", 0)
    if gs == 29: return dma_kv("K", 1)
    if gs == 30: return dma_kv("V", 2)
    return None

LA = 3; R = 4
gctr = [0]
def read_sched(groups, post, delay, pre_issued):
    n = len(groups); post = post or []; delay = delay or {}
    sched = {}
    for i in range(pre_issued, n + LA):
        G = delay.get(i, i - LA)
        rs = groups[i]["reads"] if i < n else (post[i - n][0] if i - n < len(post) else [])
        for k in range(len(rs)): sched.setdefault(G, []).append((i, k))
    return sched
def rgap(g, j):
    if g.get("stage") is not None and OPT["tt"]: return min(j // 2, 3)
    return min(j, 3)
def prep_groups(groups, pre_issued=0, post=None, delay=None):
    sched = read_sched(groups, post, delay, pre_issued)
    for G, g in enumerate(groups):
        g["gaps"] = [Gap() for _ in range(4)]
        if g.get("stage") is not None:
            for gp in g["gaps"]: gp.cap = OPT["gcap"]
        for q, _ in enumerate(sched.get(G, [])): g["gaps"][rgap(g, q)].cap -= 4
    return [gp for g in groups for gp in g["gaps"]]
def emit_groups(groups, pre_issued=0, post=None, delay=None, W=None):
    n = len(groups)
    post = post or []
    W = W or OPT["W"]
    G0 = gctr[0]
    def info(i):
        if i < n: return groups[i]["reads"], groups[i]["ring"]
        return post[i - n] if i - n < len(post) else ([], None)
    def fmt(x, i, ring):
        o = 4 * ((G0 + i) % R)
        return x.format(r=reg(ring, o, 4), r0=reg(ring, o, 2), r1=reg(ring, o + 2, 2), A=reg(ring, o, 4))
    sched = read_sched(groups, post, delay, pre_issued)
    def issue(i, k):
        rs, ring = info(i)
        lds(fmt(rs[k], i, ring), ("f", G0 + i))
    for G in sorted(g for g in sched if g < 0):
        for (i, k) in sched[G]: issue(i, k)
    for i, g in enumerate(groups):
        for x in g.get("top", []): do(x)
        if W == 2 and (G0 + i) % 2 == 0 and i + 1 < n and lg.count(("f", G0 + i + 1)) is not None and not groups[i + 1].get("top"):
            lg.wait(("f", G0 + i + 1))
        lg.wait(("f", G0 + i))
        rl = sched.get(i, [])
        for q, m in enumerate(g["mf"]):
            a(fmt(m, i, g["ring"]))
            gp = g["gaps"][q]
            if q == 3 and OPT["ew"] and i + 1 < n and not groups[i + 1].get("top"):
                j = i + 1
                if W == 2 and (G0 + j) % 2 == 0 and j + 1 < n and lg.count(("f", G0 + j + 1)) is not None and not groups[j + 1].get("top"):
                    lg.wait(("f", G0 + j + 1))
                lg.wait(("f", G0 + j))
            for x in gp.s: do(x)
            for j, (ii, k) in enumerate(rl):
                if rgap(g, j) == q: issue(ii, k)
            for x in gp.m + gp.v: do(x)
    gctr[0] += n

def place_units(gaps, pos, units, tag, step):
    for sal, d in units:
        while gaps[pos].cap < 8: pos += 1
        tgt = gaps[pos - 1]
        assert not tgt.v
        for x in sal: (tgt.m if tgt.m else tgt.s).append(x)
        gaps[pos].add(I_vm(d, tag) if tag is not None else d)
        pos += step
def trd(aa, off):
    return [f"ds_read_b64_tr_b16 {{r0}}, v{aa} offset:{off}", f"ds_read_b64_tr_b16 {{r1}}, v{aa} offset:{off+512}"]
def mf16(d, b, c): return f"v_mfma_f32_16x16x32_bf16 {d}, {{A}}, {b}, {c}"

def gemm_groups(kind, nstage, gs0, accf, bf, ring, aa, tagp, first_top=True):
    groups = []
    for s in range(nstage):
        gs = gs0 + s; ps = gs % 4
        av = aa[ps // 2]; pso = (ps % 2) * PS
        first = len(groups)
        if kind == "G1": items = [(pso + blk * BLK + fb * 32, fb, 2 * s + blk) for blk in range(2) for fb in range(4)]
        elif kind == "QP": items = [(pso + ((db // 2) * 64 + (db % 2) * 8 if not OPT["x_nat"] else db * 32), db, s) for db in range(8)]
        else: items = [(pso + nb * 32, nb, s) for nb in range(7)]
        for off, blk, ks in items:
            groups.append(dict(reads=trd(av, off), ring=ring, stage=gs, first=(len(groups) == first),
                               mf=[mf16(accf(blk, qb), bf(ks, qb), accf(blk, qb) if ks > 0 else "0") for qb in range(4)], top=[]))
        if s > 0 or first_top:
            groups[first]["top"] = [lambda gs=gs: vm.wait((tagp, gs + 1)), "s_barrier"]
    return groups
def gemm_dma(groups, gaps, dmaf, tagp, skip=()):
    for G, g in enumerate(groups):
        if g.get("first"):
            gs = g["stage"]
            if (gs + 3) in skip: continue
            units = dmaf(gs + 3)
            if not units: continue
            ng = sum(1 for x in groups if x["stage"] == gs)
            dq = 1 if OPT["tt"] else 2
            if OPT["dpos"] == 0:
                pos = [4 * (G + i) + dq for i in range(ng)]
                if ng < len(units): pos = sorted(pos + [4 * (G + 3) + dq + 1])
            elif OPT["dpos"] == 1:
                pos = [4 * (G + i) + q for i in range(4) for q in (1, 3)]
            elif OPT["dpos"] == 2:
                pos = [4 * G + x for x in (1, 3, 5, 9, 11, 13, 17, 21)]
            else:
                pos = [4 * G + x for x in (1, 3, 6+1, 9, 11, 15, 17, 19)]
            for u, p_ in zip(units, pos): place_units(gaps, p_, [u], (tagp, gs + 3), 1)

def xlane(op, v, t):
    for sw in ("v_permlane16_swap_b32", "v_permlane32_swap_b32"):
        a(f"v_mov_b32 v{t}, v{v}"); a("s_nop 1")
        a(f"{sw} v{v}, v{t}"); a("s_nop 1")
        a(f"{op} v{v}, v{v}, v{t}")
def xlane4(op, vs, ts):
    for sw in ("v_permlane16_swap_b32", "v_permlane32_swap_b32"):
        for v, t in zip(vs, ts): a(f"v_mov_b32 v{t}, v{v}")
        for v, t in zip(vs, ts): a(f"{sw} v{v}, v{t}")
        for v, t in zip(vs, ts): a(f"{op} v{v}, v{v}, v{t}")
def round_bf16(v, t):
    a(f"v_cvt_pk_bf16_f32 v{t}, v{v}, v{v}")
    a(f"v_lshlrev_b32 v{v}, 16, v{t}")

def dump_regs(name, kind, base, n):
    if OPT["dump"] != name: return
    a("s_nop 7"); a("s_nop 7"); a("s_waitcnt vmcnt(0) lgkmcnt(0)")
    a(f"s_lshl_b32 s{S_TMP}, s2, 2"); a(f"s_add_u32 s{S_TMP}, s{S_TMP}, s{S_W}")
    a(f"s_mul_i32 s{S_TMP}, s{S_TMP}, {n*256}")
    a(f"s_add_u32 s{S_TMP}, s{S_TMP}, {DUMP_OFF}")
    a(f"v_lshlrev_b32 v{V_T+7}, 2, v{V_LANE}")
    for i in range(n):
        if kind == "a":
            a(f"v_accvgpr_read_b32 v{V_T+6}, a{base+i}"); src = V_T + 6
        else: src = base + i
        a(f"buffer_store_dword v{src}, v{V_T+7}, s[{S_WS}:{S_WS+3}], s{S_TMP} offen")
        a(f"s_add_u32 s{S_TMP}, s{S_TMP}, 256")
        if kind == "a": a("s_waitcnt vmcnt(0)")
    a("s_waitcnt vmcnt(0)")
    a("s_endpgm")

a("s_cmp_ge_u32 s2, 256")
a("s_cbranch_scc1 L_end")
a("s_load_dwordx2 s[16:17], s[0:1], 0")
if OPT["stamps"]: a("s_memtime s[98:99]")
a(f"v_lshrrev_b32 v{V_T}, 6, v0")
a(f"v_and_b32 v{V_LANE}, 63, v0")
a(f"v_readfirstlane_b32 s{S_W}, v{V_T}")
VQ_, VG_ = V_T + 1, V_T + 2
a(f"v_and_b32 v{VQ_}, 15, v{V_LANE}")
a(f"v_lshrrev_b32 v{VG_}, 4, v{V_LANE}")
a(f"s_lshr_b32 s{S_T}, s2, 3")
a(f"v_mul_u32_u24 v{V_T+3}, 896, v{VQ_}")
a(f"s_lshl_b32 s{S_TMP}, s{S_T}, 2"); a(f"s_add_u32 s{S_TMP}, s{S_TMP}, s{S_W}")
a(f"v_lshl_add_u32 v{V_T+3}, v{VG_}, 4, v{V_T+3}")
a(f"s_mul_i32 s{S_TMP}, s{S_TMP}, {16*896}")
a(f"s_mov_b32 s{S_X+2}, 1835008"); a(f"s_mov_b32 s{S_X+3}, 0x20000")
a("s_waitcnt lgkmcnt(0)")
XR = 0
if OPT["xdma"]:
    a(f"s_lshl_b32 s{S_TMP+1}, s{S_W}, 10"); a(f"s_add_u32 s{S_TMP+1}, s{S_TMP+1}, {2*PS}")
    for ks in range(14):
        a(f"s_add_u32 m0, s{S_TMP+1}, {ks*4096 - 64*ks}")
        a("s_nop 0")
        vmem(f"buffer_load_dwordx4 v{V_T+3}, s[{S_X}:{S_X+3}], s{S_TMP} offen offset:{64*ks} lds", "x")
else:
    for ks in range(14):
        vmem(f"buffer_load_dwordx4 {vr(XR+4*ks,4)}, v{V_T+3}, s[{S_X}:{S_X+3}], s{S_TMP} offen offset:{64*ks}", "x")
a("s_load_dwordx16 s[68:83], s[0:1], 0")
a("s_load_dwordx2 s[84:85], s[0:1], 64")
a("s_load_dwordx2 s[4:5], s[0:1], 96")
a("s_load_dwordx4 s[92:95], s[0:1], 72")
a("s_load_dwordx2 s[96:97], s[0:1], 88")
if OPT["cpf"]:
    a("s_getpc_b64 s[6:7]")
    a.label("L_pc0")
    a(f"s_sub_u32 s6, s6, L_pc0-{NAME}_kernel"); a("s_subb_u32 s7, s7, 0")
    a(f"s_lshl_b32 s{S_TMP+1}, s{S_T}, 11")
    a(f"v_lshlrev_b32 v{V_T+4}, 9, v{V_T}")
    a(f"v_and_b32 v{V_T+5}, 3, v{V_LANE}"); a(f"v_lshl_add_u32 v{V_T+4}, v{V_T+5}, 7, v{V_T+4}")
    a(f"v_add_u32 v{V_T+4}, s{S_TMP+1}, v{V_T+4}")
    a(f"global_load_dword a{A_PF}, v{V_T+4}, s[6:7]")
    vm.issue("cpf")
    a(f"global_load_dword a{A_PF}, v{V_T+4}, s[6:7] offset:64")
    vm.issue("cpf")
a(f"s_and_b32 s{S_J}, s2, 7")
PX, PK, PV_, PWQ, PWO, PW1, PB1, PW2 = 68, 70, 72, 74, 76, 80, 82, 84
a("s_waitcnt lgkmcnt(0)")
a(f"s_cmp_lg_u32 s{S_W}, 0"); a("s_cbranch_scc1 L_nonce")
a("s_memrealtime s[6:7]")
a(f"s_mov_b32 s{S_B1}, s96"); a(f"s_mov_b32 s{S_B1+1}, s97"); a(f"s_mov_b32 s{S_B1+2}, 256"); a(f"s_mov_b32 s{S_B1+3}, 0x20000")
a(f"s_lshl_b32 s{S_X1}, s{S_T}, 2"); a(f"s_add_u32 s{S_X1}, s{S_X1}, 128")
a("s_waitcnt lgkmcnt(0)")
a(f"s_or_b32 s{S_NONCE}, s6, 1")
a("s_mov_b64 exec, 1")
a(f"v_mov_b32 v96, s{S_NONCE}"); a("v_mov_b32 v97, 0"); a("v_mov_b32 v98, 0")
a(f"buffer_atomic_cmpswap v[96:97], v98, s[{S_B1}:{S_B1+3}], s{S_X1} offen sc0")
a("s_mov_b64 exec, -1")
a.label("L_nonce")
a(f"s_lshl_b32 s{S_TMP}, s{S_J}, 20")
a(f"s_add_u32 s{S_K}, s{PK}, s{S_TMP}"); a(f"s_addc_u32 s{S_K+1}, s{PK+1}, 0")
a(f"s_mov_b32 s{S_K+2}, 0x100000"); a(f"s_mov_b32 s{S_K+3}, 0x20000")
a(f"s_add_u32 s{S_V}, s{PV_}, s{S_TMP}"); a(f"s_addc_u32 s{S_V+1}, s{PV_+1}, 0")
a(f"s_mov_b32 s{S_V+2}, 0x100000"); a(f"s_mov_b32 s{S_V+3}, 0x20000")
srd(S_WQ, PWQ, PWQ+1, 3670016)
srd(S_WO, PWO, PWO+1, 3670016)
srd(S_W1, PW1, PW1+1, 1605632)
srd(S_W2, PW2, PW2+1, 1605632)
srd(S_WS, S_WSP, S_WSP+1, WS_SIZE)
srd(S_B1, PB1, PB1+1, 3584)
stamp()
a(f"s_lshr_b32 s{S_A}, s{S_W}, 1"); a(f"s_and_b32 s{S_C}, s{S_W}, 1")
a(f"s_mul_i32 s{S_TMP}, s{S_A}, {BLK}"); a(f"s_mul_i32 s{S_TMP+1}, s{S_C}, {8*UNIT}")
a(f"s_add_u32 s{S_LDSW}, s{S_TMP}, s{S_TMP+1}")
for i in range(4): a(f"s_add_u32 s{S_M0+i}, s{S_LDSW}, {i*PS}")
a(f"s_lshl_b32 s{S_TMP}, s{S_A}, 14"); a(f"s_lshl_b32 s{S_TMP+1}, s{S_C}, 12")
a(f"s_add_u32 s{S_GKV}, s{S_TMP}, s{S_TMP+1}")
a(f"s_sub_u32 s{S_KOFF}, s{S_GKV}, 0x8000"); a(f"s_sub_u32 s{S_VOFF}, s{S_GKV}, 0x8000")
a(f"s_lshl_b32 s{S_TMP}, s{S_A}, 5"); a(f"s_lshl_b32 s{S_TMP+1}, s{S_C}, 4"); a(f"s_add_u32 s{S_TMP}, s{S_TMP}, s{S_TMP+1}")
a(f"s_mul_i32 s{S_BG1}, s{S_TMP}, 3584"); a(f"s_mul_i32 s{S_TMP+1}, s{S_J}, 448"); a(f"s_add_u32 s{S_BG1}, s{S_BG1}, s{S_TMP+1}")
a(f"s_lshl_b32 s{S_TMP}, s{S_C}, 17")
a(f"s_lshl_b32 s{S_TMP+1}, s{S_J}, 10"); a(f"s_add_u32 s{S_TMP}, s{S_TMP}, s{S_TMP+1}")
a(f"s_lshl_b32 s{S_TMP+1}, s{S_A}, 9"); a(f"s_add_u32 s{S_BQP}, s{S_TMP}, s{S_TMP+1}")
a(f"s_mul_i32 s{S_TMP}, s{S_J}, 224"); a(f"s_lshl_b32 s{S_TMP+1}, s{S_C}, 3"); a(f"s_add_u32 s{S_TMP}, s{S_TMP}, s{S_TMP+1}")
a(f"s_mul_i32 s{S_BG2}, s{S_TMP}, 896"); a(f"s_mul_i32 s{S_TMP+2}, s{S_A}, 448"); a(f"s_add_u32 s{S_BG2}, s{S_BG2}, s{S_TMP+2}")
a(f"s_lshl_b32 s{S_TMP}, s{S_J}, 9"); a(f"s_add_u32 s{S_TMP}, s{S_TMP}, s{S_TMP+1}")
a(f"s_mul_i32 s{S_BOP}, s{S_TMP}, 896"); a(f"s_add_u32 s{S_BOP}, s{S_BOP}, s{S_TMP+2}")
a(f"s_mov_b32 s{S_THR}, {OPT['thr']}")
def dma_voffsets(which):
    a(f"v_lshrrev_b32 v{V_T+4}, 5, v{V_LANE}")
    a(f"v_and_b32 v{V_T+5}, 31, v{V_LANE}")
    a(f"v_lshlrev_b32 v{V_T+5}, 4, v{V_T+5}")
    if "1" in which:
        a(f"v_mul_u32_u24 v{V_DW1}, {4*3584}, v{V_T+4}"); a(f"v_add_u32 v{V_DW1}, v{V_DW1}, v{V_T+5}")
    if "q" in which: a(f"v_lshl_add_u32 v{V_DWQ}, v{V_T+4}, 15, v{V_T+5}")
    if "o" in which: a(f"v_lshl_add_u32 v{V_DO}, v{V_T+4}, 13, v{V_T+5}")
    if "w" in which:
        a(f"v_mul_u32_u24 v{V_DWW}, {16*896}, v{V_T+4}"); a(f"v_add_u32 v{V_DWW}, v{V_DWW}, v{V_T+5}")
        a(f"v_cmp_lt_u32 vcc, {27*16}, v{V_T+5}")
        a(f"v_mov_b32 v{V_T+6}, 0x40000000")
        a("s_nop 1")
        a(f"v_cndmask_b32 v{V_DWW}, v{V_DWW}, v{V_T+6}, vcc")
dma_voffsets("1qow")
if OPT["pfpos"] < 3:
    emit_units(stage_dma(0), ("st", 0))
    emit_units(stage_dma(1), ("st", 1))
def rowp_cc():
    a(f"v_bfe_u32 v{V_ROWP}, v{V_LANE}, 2, 2")
    a(f"v_lshrrev_b32 v{V_CC}, 4, v{V_LANE}")
    a(f"v_lshl_add_u32 v{V_ROWP}, v{V_CC}, 2, v{V_ROWP}")
    a(f"v_mul_u32_u24 v{V_ROWP}, {UNIT}, v{V_ROWP}")
    a(f"v_and_b32 v{V_CC}, 3, v{V_LANE}")
rowp_cc()

PFD = OPT["pfd"]
def prefetch(kind, gran):
    dst = "v227" if kind == "wo" else f"a{A_PF}"
    sh = 6 if gran == 64 else 7
    a(f"s_lshl_b32 s{S_TMP}, s{S_T}, 2"); a(f"s_add_u32 s{S_TMP}, s{S_TMP}, s{S_W}")
    T0, T1 = V_T + 4, V_T + 5
    def masked(n):
        if n < 64:
            a(f"v_cmp_lt_u32 vcc, {n-1}, v{V_LANE}")
            a(f"v_mov_b32 v{T1}, 0x40000000")
            a("s_nop 1")
            a(f"v_cndmask_b32 v{T0}, v{T0}, v{T1}, vcc")
    if kind in ("w1", "wq"):
        rowb = 512 if kind == "w1" else 1024
        rs = 3584 if kind == "w1" else 8192
        if kind == "w1": rowb, per_row = 640, 8
        per_row = 8 if kind == "w1" else rowb // gran
        step = 64 if kind == "w1" else gran
        n = 448 * per_row // 128
        a(f"s_mul_i32 s{S_TMP}, s{S_TMP}, {n}")
        a(f"v_add_u32 v{T0}, s{S_TMP}, v{V_LANE}")
        lgp = per_row.bit_length() - 1
        a(f"v_lshrrev_b32 v{T1}, {lgp}, v{T0}")
        a(f"v_and_b32 v{T0}, {per_row-1}, v{T0}")
        a(f"v_mul_u32_u24 v{T0}, {step}, v{T0}")
        a(f"s_mov_b32 s{S_TMP+1}, {rs}")
        a(f"v_mad_u32_u24 v{T0}, v{T1}, s{S_TMP+1}, v{T0}")
        masked(n)
        a(f"s_mul_i32 s{S_TMP+1}, s{S_J}, {448 if kind == 'w1' else 1024}")
        sr_ = S_W1 if kind == "w1" else S_WQ
        vmem(f"buffer_load_dword a{A_PF}, v{T0}, s[{sr_}:{sr_+3}], s{S_TMP+1} offen", "pf")
    else:
        size = {"w2": 200704, "wo": 458752, "k": 1 << 20, "v": 1 << 20, "k0": PFD * 32768, "v0": PFD * 32768}[kind]
        sr_ = {"w2": S_W2, "wo": S_WO, "k": S_K, "v": S_V, "k0": S_K, "v0": S_V}[kind]
        n = (size // gran + 127) // 128
        a(f"s_mul_i32 s{S_TMP}, s{S_TMP}, {n*gran}")
        if kind in ("w2", "wo"):
            a(f"s_mul_i32 s{S_TMP+1}, s{S_J}, {size}"); a(f"s_add_u32 s{S_TMP}, s{S_TMP}, s{S_TMP+1}")
        a(f"v_lshlrev_b32 v{T0}, {sh}, v{V_LANE}")
        masked(n)
        for i in range((n + 63) // 64):
            vmem(f"buffer_load_dword {dst}, v{T0}, s[{sr_}:{sr_+3}], s{S_TMP} offen", "pf")
            if i + 1 < (n + 63) // 64: a(f"s_add_u32 s{S_TMP}, s{S_TMP}, {64*gran}")
GR = OPT["gran"]
def early_pf(which):
    if not OPT["prefetch"]: return
    for kind in which: prefetch(kind, GR)
if OPT["pfpos"] == 0:
    early_pf(("w1", "wq", "w2", "k0", "v0"))
if OPT["pfpos"] == 4: early_pf(("w1", "wq", "w2"))
if OPT["pfpos"] in (0, 1, 4):
    a(f"v_lshlrev_b32 v{V_T+6}, 3, v{VG_}")
    a(f"s_mul_i32 s{S_TMP}, s{S_J}, 448"); a(f"s_lshl_b32 s{S_TMP+1}, s{S_W}, 7"); a(f"s_add_u32 s{S_TMP}, s{S_TMP}, s{S_TMP+1}")
    for fb in range(4):
        vmem(f"buffer_load_dwordx2 {ar(A_BIAS+2*fb,2)}, v{V_T+6}, s[{S_B1}:{S_B1+3}], s{S_TMP} offen offset:{32*fb}", "b1")
if OPT["pfpos"] == 1: early_pf(("w1",))

vm.wait("x")
if OPT["xdma"]:
    a(f"v_lshlrev_b32 v{V_T+6}, 4, v{V_LANE}")
    a(f"s_lshl_b32 s{S_TMP}, s{S_W}, 10"); a(f"s_add_u32 s{S_TMP}, s{S_TMP}, {2*PS}")
    a(f"v_add_u32 v{V_T+6}, s{S_TMP}, v{V_T+6}")
    for ks in range(14): lds(f"ds_read_b128 {vr(XR+4*ks,4)}, v{V_T+6} offset:{ks*4096}", "xr")
    lg.wait_all()
stamp()
XF = 112
for i in range(56):
    a(f"v_lshlrev_b32 v{XF+2*i}, 16, v{XR+i}")
    a(f"v_and_b32 v{XF+2*i+1}, 0xffff0000, v{XR+i}")
ACC = 56
fstamp()
if OPT["pfpos"] in (3, 4): emit_units(stage_dma(0), ("st", 0))
fstamp()
for c in range(4): a(f"v_pk_add_f32 {vr(ACC+2*c,2)}, {vr(XF+4*c,2)}, {vr(XF+4*c+2,2)}")
for n_, i in enumerate(range(8, 56)):
    c = n_ % 4
    a(f"v_pk_add_f32 {vr(ACC+2*c,2)}, {vr(ACC+2*c,2)}, {vr(XF+2*i,2)}")
a(f"v_pk_add_f32 {vr(ACC,2)}, {vr(ACC,2)}, {vr(ACC+2,2)}")
a(f"v_pk_add_f32 {vr(ACC+4,2)}, {vr(ACC+4,2)}, {vr(ACC+6,2)}")
a(f"v_pk_add_f32 {vr(ACC,2)}, {vr(ACC,2)}, {vr(ACC+4,2)}")
a(f"v_add_f32 v{ACC}, v{ACC}, v{ACC+1}")
xlane("v_add_f32", ACC, ACC+1)
VMEAN, VMB = ACC + 2, ACC + 4
a(f"v_mul_f32 v{VMEAN}, {f32(1.0/448)}, v{ACC}")
a(f"v_mov_b32 v{VMB}, v{VMEAN}")
round_bf16(VMB, ACC+1)
a(f"v_mov_b32 v{VMB+1}, v{VMB}")
VAR = 64
XCL = 2 * PS
if OPT["pfpos"] == 1: early_pf(("wq", "w2"))
fstamp()
if OPT["pfpos"] in (3, 4): emit_units(stage_dma(1), ("st", 1))
fstamp()
if OPT["pfpos"] == 2:
    a(f"v_lshlrev_b32 v{V_T+4}, 3, v{VG_}")
    a(f"s_mul_i32 s{S_TMP}, s{S_J}, 448"); a(f"s_lshl_b32 s{S_TMP+1}, s{S_W}, 7"); a(f"s_add_u32 s{S_TMP}, s{S_TMP}, s{S_TMP+1}")
    for fb in range(4):
        vmem(f"buffer_load_dwordx2 {ar(A_BIAS+2*fb,2)}, v{V_T+4}, s[{S_B1}:{S_B1+3}], s{S_TMP} offen offset:{32*fb}", "b1")
    early_pf(("w1", "wq", "w2"))

a(f"v_lshlrev_b32 v{V_T+6}, 4, v{V_LANE}")
a(f"s_lshl_b32 s{S_TMP}, s{S_W}, 10"); a(f"s_add_u32 s{S_TMP}, s{S_TMP}, {XCL}")
a(f"v_add_u32 v{V_T+6}, s{S_TMP}, v{V_T+6}")
for ks in range(14):
    for i in range(4*ks, 4*ks+4):
        a(f"v_pk_add_f32 {vr(XF+2*i,2)}, {vr(XF+2*i,2)}, {vr(VMB,2)} neg_lo:[0,1] neg_hi:[0,1]")
    for i in range(4*ks, 4*ks+4):
        c = i % 4
        if i < 4: a(f"v_pk_mul_f32 {vr(VAR+2*c,2)}, {vr(XF+2*i,2)}, {vr(XF+2*i,2)}")
        else: a(f"v_pk_fma_f32 {vr(VAR+2*c,2)}, {vr(XF+2*i,2)}, {vr(XF+2*i,2)}, {vr(VAR+2*c,2)}")
if OPT["pfpos"] == 3:
    a(f"v_lshlrev_b32 v{V_T+4}, 3, v{VG_}")
    a(f"s_mul_i32 s{S_TMP}, s{S_J}, 448"); a(f"s_lshl_b32 s{S_TMP+1}, s{S_W}, 7"); a(f"s_add_u32 s{S_TMP}, s{S_TMP}, s{S_TMP+1}")
    for fb in range(4):
        vmem(f"buffer_load_dwordx2 {ar(A_BIAS+2*fb,2)}, v{V_T+4}, s[{S_B1}:{S_B1+3}], s{S_TMP} offen offset:{32*fb}", "b1")
    early_pf(("w1", "wq", "w2"))

fstamp()
a(f"v_pk_add_f32 {vr(VAR,2)}, {vr(VAR,2)}, {vr(VAR+2,2)}")
a(f"v_pk_add_f32 {vr(VAR+4,2)}, {vr(VAR+4,2)}, {vr(VAR+6,2)}")
a(f"v_pk_add_f32 {vr(VAR,2)}, {vr(VAR,2)}, {vr(VAR+4,2)}")
a(f"v_add_f32 v{VAR}, v{VAR}, v{VAR+1}")
xlane("v_add_f32", VAR, VAR+1)
a(f"v_sub_f32 v{VAR+2}, v{VMEAN}, v{VMB}")
a(f"v_mul_f32 v{VAR+2}, v{VAR+2}, v{VAR+2}")
a(f"v_mov_b32 v{VAR+3}, {f32(1.0/448)}")
a(f"v_fma_f32 v{VAR}, v{VAR}, v{VAR+3}, -v{VAR+2}")
a(f"v_max_f32 v{VAR}, 0, v{VAR}")
a(f"v_mov_b32 v{VAR+4}, v{VAR}")
round_bf16(VAR+4, VAR+1)
a(f"v_add_f32 v{VAR+4}, {f32(1e-5)}, v{VAR+4}")
round_bf16(VAR+4, VAR+1)
a(f"v_sqrt_f32 v{VAR+4}, v{VAR+4}"); a("s_nop 0")
round_bf16(VAR+4, VAR+1)
a(f"v_rcp_f32 v{VAR+5}, v{VAR+4}"); a("s_nop 0")
fstamp()
CQ = math.log2(math.e) / 16
a(f"v_mul_f32 v{VAR+2}, {f32(CQ)}, v{VAR+5}")
a(f"v_mov_b32 v{VAR+3}, v{VAR+2}")
for ks in range(14):
    for i in range(4*ks, 4*ks+4):
        a(f"v_pk_mul_f32 {vr(XF+2*i,2)}, {vr(XF+2*i,2)}, {vr(VAR+2,2)}")
    for i in range(4*ks, 4*ks+4):
        a(f"v_cvt_pk_bf16_f32 v{XR+i}, v{XF+2*i}, v{XF+2*i+1}")
    lds(f"ds_write_b128 v{V_T+6}, {vr(XR+4*ks,4)} offset:{ks*4096}")
a(f"v_mul_f32 v{VAR+6}, v{VAR+5}, v{VAR+5}")
a(f"v_mul_f32 v{VAR+6}, v{VAR+6}, v{VAR}")
round_bf16(VAR+6, VAR+7)
a(f"v_add_f32 v{VAR+6}, {f32(1e-5)}, v{VAR+6}")
round_bf16(VAR+6, VAR+7)
a(f"v_sqrt_f32 v{VAR+6}, v{VAR+6}"); a("s_nop 0")
round_bf16(VAR+6, VAR+7)
a(f"v_rcp_f32 v{VAR+6}, v{VAR+6}"); a("s_nop 0")
a(f"v_mul_f32 v{VAR+6}, {f32(1.0/CQ)}, v{VAR+6}")
a(f"s_lshl_b32 s{S_TMP}, s{S_W}, 6"); a(f"s_add_u32 s{S_TMP}, s{S_TMP}, {STATS}")
a(f"v_lshlrev_b32 v{V_T+5}, 2, v{VQ_}"); a(f"v_add_u32 v{V_T+5}, s{S_TMP}, v{V_T+5}")
lds(f"ds_write_b32 v{V_T+5}, v{VAR+6}")
a(f"v_lshlrev_b32 v{V_T+6}, 4, v{V_LANE}"); a(f"v_add_u32 v{V_T+6}, {XCL}, v{V_T+6}")
a(f"v_lshlrev_b32 v{V_T+7}, 2, v{VQ_}"); a(f"v_add_u32 v{V_T+7}, {STATS}, v{V_T+7}")
a(f"s_lshl_b32 s{S_TMP}, s{S_W}, 7")
a(f"v_lshl_add_u32 v{V_AA[0]}, v{V_CC}, 3, v{V_ROWP}")
a(f"v_add_u32 v{V_AA[0]}, s{S_TMP}, v{V_AA[0]}")
a(f"v_add_u32 v{V_AA[1]}, {2*PS}, v{V_AA[0]}")
a(f"s_cmp_lg_u32 s{S_W}, 0"); a("s_cbranch_scc1 L_nonce2")
a("s_waitcnt vmcnt(0)") if False else None
vm_n = vm.count(("st", 0))
a(f"s_waitcnt vmcnt({min(63, len(vm.ops) - [i for i, t in enumerate(vm.ops) if t == ('st', 0)][0])})")
a(f"v_readfirstlane_b32 s{S_TMP}, v96")
a(f"s_cmp_eq_u32 s{S_TMP}, 0"); a(f"s_cselect_b32 s{S_NONCE}, s{S_NONCE}, s{S_TMP}")
a(f"v_mov_b32 v97, s{S_NONCE}"); a(f"v_mov_b32 v98, {STATS + 512}")
a("ds_write_b32 v98, v97")
a.label("L_nonce2")
fstamp()
lg.wait_all()
a("s_barrier")
fstamp()
a(f"v_mov_b32 v98, {STATS + 512}")
lds("ds_read_b32 v97, v98", "nn")
for f in range(56):
    lds(f"ds_read_b128 {ar(4*f,4)}, v{V_T+6} offset:{f*1024}", "xc")
    if f % 12 == 11: a("s_waitcnt lgkmcnt(4)"); lg.ops = lg.ops[-4:]
for qb in range(4): lds(f"ds_read_b32 v{V_SC+2*qb+1}, v{V_T+7} offset:{qb*64}", "sc")
lg.wait_all()
a(f"v_readfirstlane_b32 s{S_NONCE}, v97")
fstamp()
vm.wait(("st", 1))
fstamp()
a("s_barrier")
dump_regs("xc", "a", 0, 224)
stamp(OPT["fine"] not in (2, 3))
emit_units(stage_dma(2), ("st", 2))
emit_units(stage_dma(3), ("st", 3))
if OPT["pfpos"] in (1, 2, 3, 4): early_pf(("k0", "v0"))

RING_A = ("a", 236); RING_V = ("v", V_F)
xcf = lambda ks, qb: ar((ks * 4 + qb) * 4, 4)
H1 = 0; HP = 64; QA = 96; GA = 112
h1acc = lambda fb, qb: vr(H1 + (fb * 4 + qb) * 4, 4)
qacc = lambda db, qb: vr(QA + (db * 4 + qb) * 4, 4)
hfrag = lambda ks, qb: ar((ks * 4 + qb) * 4, 4)
g2acc = lambda nb, qb: ar(GA + (nb * 4 + qb) * 4, 4)
VQA = [V_DW1 - 0, 0]
VQA = [V_KA, V_VA]
a(f"s_mul_i32 s{S_TMP}, s{S_A}, {BLK}"); a(f"s_lshl_b32 s{S_TMP+1}, s{S_C}, 8"); a(f"s_add_u32 s{S_TMP}, s{S_TMP}, s{S_TMP+1}")
a(f"v_lshl_add_u32 v{VQA[0]}, v{V_CC}, {4 if not OPT['x_nat'] else 3}, v{V_ROWP}")
a(f"v_add_u32 v{VQA[0]}, s{S_TMP}, v{VQA[0]}")
a(f"v_add_u32 v{VQA[1]}, {2*PS}, v{VQA[0]}")

def att_reads(p, f):
    if f < 16:
        kb, x = f // 8, f % 8
        return [f"ds_read_b128 {{r}}, v{V_KA if x < 4 else V_KA2} offset:{((p + 1) % 2) * PS + kb*512 + x*64}"]
    return trd(V_VA, (p % 2) * PS + (f - 16) * 32)
g1 = gemm_groups("G1", 7, 0, h1acc, xcf, RING_A, V_AA, "st", first_top=False)
qp = gemm_groups("QP", 14, 7, qacc, xcf, RING_A, VQA, "st")
g2 = gemm_groups("G2", 7, 21, g2acc, hfrag, RING_A, V_AA, "st")
allg = g1 + qp + g2
POSTA = [(att_reads(-1, i), RING_V) for i in range(LA)]
allgaps = prep_groups(allg, post=POSTA)
gemm_dma(allg, allgaps, stage_dma, "st", skip=(3,))
fq = allgaps[4*56:4*168]; fg = allgaps[4*168:]

C1 = 2 * math.sqrt(2 / math.pi) * math.log2(math.e); C2 = C1 * 0.044715
def gelu_stream():
    st = [f"s_mov_b32 s{S_X1}, {f32(-C2)}", f"v_mov_b32 v{V_T+7}, {f32(-C1)}", I_wvm("b1")]
    for fb in range(4):
        st += [f"v_accvgpr_read_b32 v{V_T}, a{A_BIAS+2*fb}", f"v_accvgpr_read_b32 v{V_T+1}, a{A_BIAS+2*fb+1}", "s_nop 0",
               f"v_lshlrev_b32 v{V_B4}, 16, v{V_T}", f"v_and_b32 v{V_B4+1}, 0xffff0000, v{V_T}",
               f"v_lshlrev_b32 v{V_B4+2}, 16, v{V_T+1}", f"v_and_b32 v{V_B4+3}, 0xffff0000, v{V_T+1}"]
        for qb in range(4):
            base = H1 + (fb * 4 + qb) * 4
            st += [f"v_fma_f32 v{base+r}, v{base+r}, v{V_SC+2*qb+1}, v{V_B4+r}" for r in range(4)]
            st += [f"v_mul_f32 v{V_T+r}, v{base+r}, v{base+r}" for r in range(4)]
            st += [f"v_fma_f32 v{V_T+r}, v{V_T+r}, s{S_X1}, v{V_T+7}" for r in range(4)]
            st += [f"v_mul_f32 v{V_T+r}, v{V_T+r}, v{base+r}" for r in range(4)]
            st += [f"v_exp_f32 v{V_T+r}, v{V_T+r}" for r in range(4)]
            st += [f"v_add_f32 v{V_T+r}, 1.0, v{V_T+r}" for r in range(4)]
            st += [f"v_rcp_f32 v{V_T+r}, v{V_T+r}" for r in range(4)]
            st += [f"v_mul_f32 v{base+r}, v{base+r}, v{V_T+r}" for r in range(4)]
            hp = HP + ((fb // 2) * 4 + qb) * 4 + (fb % 2) * 2
            st += [f"v_cvt_pk_bf16_f32 v{hp}, v{base}, v{base+1}", f"v_cvt_pk_bf16_f32 v{hp+1}, v{base+2}, v{base+3}"]
    st += [f"s_lshl_b32 s{S_X1}, s{S_W}, 1", f"s_add_u32 s{S_X2}, s{S_X1}, 1", f"s_min_u32 s{S_X2}, s{S_X2}, 6",
           f"s_lshl_b32 s{S_X1}, s{S_X1}, 12", f"s_lshl_b32 s{S_X2}, s{S_X2}, 12",
           f"v_lshlrev_b32 v{V_T+6}, 4, v{V_LANE}", f"v_add_u32 v{V_T+6}, {HL}, v{V_T+6}",
           f"v_add_u32 v{V_T+5}, s{S_X2}, v{V_T+6}", f"v_add_u32 v{V_T+4}, s{S_X1}, v{V_T+6}"]
    st += [I_lds(f"ds_write_b128 v{V_T+5}, {vr(HP+16+4*qb,4)} offset:{qb*1024}", "hw") for qb in range(4)]
    st += [I_lds(f"ds_write_b128 v{V_T+4}, {vr(HP+4*qb,4)} offset:{qb*1024}", "hw") for qb in range(4)]
    st += [I_wlg("hw")]
    return st
GE = OPT["gelu_end"]
_gs = gelu_stream()
if OPT["x_g"] == 1: _gs = [x for x in _gs if not (isinstance(x, str) and x.startswith(("v_fma", "v_mul", "v_exp", "v_add_f32", "v_rcp", "v_cvt")))]
if OPT["x_g"] == 2: _gs = [x.replace("v_exp_f32", "v_mov_b32").replace("v_rcp_f32", "v_mov_b32") if isinstance(x, str) else x for x in _gs]
if OPT["x_g"] == 3: _gs = [x for x in _gs if not (isinstance(x, str) and x.startswith(("v_exp", "v_rcp")))]
place_stream(fq, _gs, 4*2, 4*(8*GE) - 1)
st = [f"s_mul_i32 s{S_X1}, s{S_A}, {BLK}", f"s_mul_i32 s{S_X2}, s{S_C}, 224", f"s_add_u32 s{S_X1}, s{S_X1}, s{S_X2}",
      f"v_lshl_add_u32 v{V_AA[0]}, v{V_CC}, 3, v{V_ROWP}", f"v_add_u32 v{V_AA[0]}, s{S_X1}, v{V_AA[0]}", f"v_add_u32 v{V_AA[1]}, {2*PS}, v{V_AA[0]}"]
st += [I_lds(f"ds_read_b128 {ar(4*f,4)}, v{V_T+6} offset:{f*1024}", "hr") for f in range(28)] + [I_wlg("hr")]
place_stream(fq, st, 4*(8*(GE+1)), 4*(8*14) - 5)

def q_frag(f):
    x, qb = f // 4, f % 4
    b0 = QA + ((2 * x) * 4 + qb) * 4; b1_ = QA + ((2 * x + 1) * 4 + qb) * 4
    st = []
    t = 4 * f
    st += [f"v_cvt_pk_bf16_f32 v{t}, v{b0}, v{b0+1}", f"v_cvt_pk_bf16_f32 v{t+1}, v{b0+2}, v{b0+3}",
           f"v_cvt_pk_bf16_f32 v{t+2}, v{b1_}, v{b1_+1}", f"v_cvt_pk_bf16_f32 v{t+3}, v{b1_+2}, v{b1_+3}"]
    return st
UQW, UQR = V_T + 5, V_T + 4
def q_write(fs, tag): return [I_lds(f"ds_write_b128 v{UQW}, {vr(4*f,4)} offset:{(f - fs[0])*1024}", tag) for f in fs] + [I_wlg(tag)]
def q_read(fs, tag): return [I_lds(f"ds_read_b128 {vr(64+4*f,4)}, v{UQR} offset:{(f - fs[0])*1024}", tag) for f in fs] + [I_wlg(tag)]
R1, R2, R3 = list(range(0, 7)), list(range(7, 14)), [14, 15]
SG = lambda s: 4 * 7 * (s - 21)
st = [f"s_mul_i32 s{S_X1}, s{S_W}, 7168", f"s_xor_b32 s{S_X2}, s{S_W}, 1", f"s_mul_i32 s{S_X2}, s{S_X2}, 7168",
      f"v_lshlrev_b32 v{V_T+6}, 4, v{V_LANE}", f"v_add_u32 v{V_T+6}, {XREG}, v{V_T+6}",
      f"v_add_u32 v{UQW}, s{S_X1}, v{V_T+6}", f"v_add_u32 v{UQR}, s{S_X2}, v{V_T+6}"]
for f in R1: st += q_frag(f)
st += q_write(R1, "qw1")
place_stream(fg, st, SG(21) + 6, SG(22) - 1)
st = q_read(R1, "qr1")
for f in R2[:4]: st += q_frag(f)
place_stream(fg, st, SG(22) + 1, SG(23) - 1)
st = []
for f in R2[4:]: st += q_frag(f)
st += q_write(R2, "qw2")
place_stream(fg, st, SG(23) + 1, SG(24) - 1)
st = q_read(R2, "qr2")
for f in R3: st += q_frag(f)
place_stream(fg, st, SG(24) + 1, SG(25) - 1)
place_stream(fg, q_write(R3, "qw3"), SG(25) + 1, SG(26) - 1)
place_stream(fg, q_read(R3, "qr3"), SG(26) + 1, SG(26) + 12)
st = [f"v_and_b32 v{V_T}, 15, v{V_LANE}", f"v_lshrrev_b32 v{V_T+1}, 4, v{V_LANE}",
      f"s_mul_i32 s{S_X1}, s{S_C}, {BLK}", f"s_lshl_b32 s{S_X2}, s{S_C}, 8",
      f"v_mul_u32_u24 v{V_KA}, {UNIT}, v{V_T}", f"v_lshl_add_u32 v{V_KA}, v{V_T+1}, 4, v{V_KA}",
      f"v_add_u32 v{V_KA}, s{S_X1}, v{V_KA}",
      f"v_subrev_u32 v{V_KA2}, s{S_X2}, v{V_KA}", f"v_add_u32 v{V_KA}, s{S_X2}, v{V_KA}",
      f"v_lshl_add_u32 v{V_VA}, v{V_CC}, 3, v{V_ROWP}", f"v_add_u32 v{V_VA}, s{S_X1}, v{V_VA}", f"v_add_u32 v{V_VA}, {2*PS}, v{V_VA}"]
st += [f"v_mov_b32 v{V_NEG+i}, 0" for i in range(16)]
def _pfs():
    a(f"s_cmp_eq_u32 s{S_C}, 0")
    a(f"s_cselect_b32 s{S_B1}, s{S_K}, s{S_V}"); a(f"s_cselect_b32 s{S_B1+1}, s{S_K+1}, s{S_V+1}")
    a(f"s_mov_b32 s{S_B1+2}, 0x100000")
    a(f"s_mov_b32 s{S_TMP+3}, {(PFD-1)*0x8000}")
    a(f"s_mov_b32 s{S_W2}, s96"); a(f"s_mov_b32 s{S_W2+1}, s97"); a(f"s_mov_b32 s{S_W2+2}, 256")
    a(f"s_lshl_b32 s{S_X1}, s{S_T}, 10"); a(f"s_lshl_b32 s{S_X2}, s{S_A}, 9"); a(f"s_add_u32 s{S_X1}, s{S_X1}, s{S_X2}")
    a(f"v_lshlrev_b32 v226, 7, v{V_LANE}"); a(f"v_add_u32 v226, s{S_X1}, v226")
    a(f"v_cmp_lt_u32 vcc, 3, v{V_LANE}"); a(f"v_mov_b32 v227, 0x40000000"); a("s_nop 1")
    a(f"v_cndmask_b32 v226, v226, v227, vcc")
st += [It(8, _pfs, "v")]
place_stream(fg, st, SG(26) + 13, SG(28) - 1)

emit_groups(allg[:56], post=[(g["reads"], g["ring"]) for g in allg[56:59]])
stamp()
emit_groups(allg[56:168], pre_issued=LA, post=[(g["reads"], g["ring"]) for g in allg[168:171]])
dump_regs("hp", "v", HP, 32)
stamp()
if OPT["prefetch"] and OPT["kvpf"] == 2:
    for kind in ("k", "v"): prefetch(kind, GR)
emit_groups(allg[168:], pre_issued=LA, post=POSTA)
stamp()

def att_mf(p, f, czero=False):
    out = []
    for qb in range(4):
        if f < 16:
            kb, x = f // 8, f % 8
            S = V_S + (kb * 4 + qb) * 4
            out.append(mf16(vr(S, 4), vr(V_Q + (x * 4 + qb) * 4, 4), vr(V_NEG + 4 * qb, 4) if x == 0 else vr(S, 4)))
        else:
            o = ar(((f - 16) * 4 + qb) * 4, 4)
            out.append(mf16(o, vr(V_P + (p % 2) * 16 + 4 * qb, 4), "0" if czero else o))
    return out
def sm_stream(p, kb):
    st = []
    Pb = V_P + ((p + 1) % 2) * 16
    lo = V_L + (p % 2) * 4; ln = V_L + ((p + 1) % 2) * 4
    items = [(qb, r) for qb in range(4) for r in range(4)]
    n = len(items)
    T = lambda k: V_T + (k % 8)
    for k in range(n + 3):
        if k < n:
            qb, r = items[k]
            st.append(f"v_exp_f32 v{T(k)}, v{V_S + (kb*4+qb)*4 + r}")
        if 1 <= k <= n:
            qb, r = items[k - 1]
            src = lo + qb if (kb == 0 and r == 0) else ln + qb
            st.append(f"v_add_f32 v{ln + qb}, v{T(k-1)}, v{src}")
        if k >= 3 and (k - 3) % 2 == 0 and (k - 2) < n:
            j = k - 3
            qb, r = items[j]
            st.append(f"v_cvt_pk_bf16_f32 v{Pb + qb*4 + kb*2 + r//2}, v{T(j)}, v{T(j+1)}")
    return st
def rescale(p, first):
    lo = V_L + (p % 2) * 4
    a("s_nop 7"); a("s_nop 3")
    MX = V_T
    for qb in range(4):
        b0 = V_S + qb * 4; b1_ = V_S + (4 + qb) * 4
        a(f"v_max3_f32 v{MX+qb}, v{b0}, v{b0+1}, v{b0+2}")
    for qb in range(4):
        b0 = V_S + qb * 4; b1_ = V_S + (4 + qb) * 4
        a(f"v_max3_f32 v{MX+qb}, v{MX+qb}, v{b0+3}, v{b1_}")
    for qb in range(4):
        b0 = V_S + qb * 4; b1_ = V_S + (4 + qb) * 4
        a(f"v_max3_f32 v{MX+qb}, v{MX+qb}, v{b1_+1}, v{b1_+2}")
    for qb in range(4):
        b1_ = V_S + (4 + qb) * 4
        a(f"v_max_f32 v{MX+qb}, v{MX+qb}, v{b1_+3}")
    a("s_nop 0")
    xlane4("v_max_f32", [MX + q for q in range(4)], [V_T + 4 + q for q in range(4)])
    if not first:
        for qb in range(4): a(f"v_max_f32 v{MX+qb}, 0, v{MX+qb}")
    for qb in range(4):
        for kb in range(2):
            for r in range(4):
                a(f"v_sub_f32 v{V_S+(kb*4+qb)*4+r}, v{V_S+(kb*4+qb)*4+r}, v{MX+qb}")
        for r in range(4):
            a(f"v_sub_f32 v{V_NEG+qb*4+r}, v{V_NEG+qb*4+r}, v{MX+qb}")
    if not first:
        for qb in range(4): a(f"v_exp_f32 v{MX+qb}, -v{MX+qb}")
        a("s_nop 0")
        for qb in range(4): a(f"v_mul_f32 v{lo+qb}, v{lo+qb}, v{MX+qb}")
        for d in range(16):
            for qb in range(4):
                for r in range(4): a(f"v_accvgpr_read_b32 v{V_T+4+r}, a{(d*4+qb)*4+r}")
                a("s_nop 0")
                for r in range(4): a(f"v_mul_f32 v{V_T+4+r}, v{V_T+4+r}, v{MX+qb}")
                for r in range(4): a(f"v_accvgpr_write_b32 a{(d*4+qb)*4+r}, v{V_T+4+r}")
    for kb in range(2):
        st = sm_stream(p, kb)
        for i, x in enumerate(st):
            a(x)
            if x.startswith("v_exp") and i + 1 < len(st) and not st[i+1].startswith("v_exp"):
                dst = x.split()[1].rstrip(",")
                if dst in st[i+1]: a("s_nop 0")
    a("s_nop 1")
slow = []
V_PFO, V_PFD = 226, 227
S_PFS = S_B1; S_PFO = S_TMP + 3
def sm_place(gaps, p, g_s0, g_s1, g_end):
    Pb = V_P + ((p + 1) % 2) * 16
    lo = V_L + (p % 2) * 4; ln = V_L + ((p + 1) % 2) * 4
    items = [(kb, qb, r) for kb in range(2) for qb in range(4) for r in range(4)]
    NT = 8
    T = lambda k: V_T + (k % NT)
    E = [f"v_exp_f32 v{T(k)}, v{V_S + (kb*4+qb)*4 + r}" for k, (kb, qb, r) in enumerate(items)]
    A = []
    for k, (kb, qb, r) in enumerate(items):
        src = lo + qb if (kb == 0 and r == 0) else ln + qb
        A.append(f"v_add_f32 v{ln + qb}, v{T(k)}, v{src}")
    C = [f"v_cvt_pk_bf16_f32 v{Pb + items[2*j][1]*4 + items[2*j][0]*2 + items[2*j][2]//2}, v{T(2*j)}, v{T(2*j+1)}" for j in range(16)]
    e = a_ = c = 0
    egap = {}
    for g in range(g_s0, g_end + 1):
        G = gaps[g]
        while G.cap >= 4:
            ra = a_ < 32 and a_ < e and egap[a_] < g
            rc = c < 16 and 2*c + 1 < e and egap[2*c+1] < g
            can_e = e < 32 and G.cap >= 8 and not G.v and (e < 16 or g >= g_s1) and (e < NT or (a_ > e - NT and c > (e - NT) // 2))
            pending = (e - a_) + (e // 2 - c)
            remaining_gaps = g_end - g
            if can_e and (pending < 5 or not (ra or rc)):
                G.add(E[e]); egap[e] = g; e += 1; break
            elif rc and (c <= a_ // 2 or not ra):
                G.add(C[c]); c += 1
            elif ra:
                G.add(A[a_]); a_ += 1
            elif rc:
                G.add(C[c]); c += 1
            else: break
    assert e == 32 and a_ == 32 and c == 16, (e, a_, c)

def period(p, qk=True, pv=True, sm=True, dK=None, dV=None, wait30="s_waitcnt vmcnt(1)", post=None, lab="", pre_issued=LA,
           czero=False, extra=None, top0=None, dtag=None, pf=False, nobar=False, midbar=None, postbar=None):
    fl = [f for f in range(32) if (f < 16 and qk) or (f >= 16 and pv)]
    n = len(fl)
    groups = [dict(reads=att_reads(p, f), mf=att_mf(p, f, czero), top=[], ring=RING_V) for f in fl]
    if top0: groups[0]["top"] = top0
    delay = {}
    inloop = lab in ("A", "B")
    if not nobar:
        groups[n - 2]["top"] = [wait30, "s_waitcnt lgkmcnt(0)", lambda: lg.ops.clear(), "s_barrier"]
        if inloop and OPT["x_nobar"] == 1: groups[n - 2]["top"] = ["s_waitcnt lgkmcnt(0)", lambda: lg.ops.clear()]
        if inloop and OPT["x_nobar"] == 2: groups[n - 2]["top"] = ["s_waitcnt lgkmcnt(0)", lambda: lg.ops.clear(), "s_barrier"]
        if postbar: groups[n - 2]["top"] = groups[n - 2]["top"] + [postbar]
        delay = {n: n - 2}
    if inloop and OPT["x_nodma"]: dK = dV = None
    if inloop and OPT["x_nopf"]: pf = False
    if inloop and OPT["x_nosm"]: sm = False
    if midbar is not None: groups[midbar]["top"] = groups[midbar]["top"] + ["s_barrier"]
    gaps = prep_groups(groups, pre_issued, post, delay)
    units = (dK or []) + (dV or [])
    if units: place_units(gaps, OPT["d0"], units, dtag, min(OPT["dstep"], (4 * n - 12) // len(units)))
    if pf:
        ins = f"buffer_load_dword v{V_PFD}, v{V_PFO}, s[{S_PFS}:{S_PFS+3}], s{S_PFO} offen"
        pos = min(4 * (n - 4), OPT["d0"] + 16 * OPT["dstep"] + 2)
        place_units(gaps, pos, [([f"s_add_u32 s{S_PFO}, s{S_PFO}, 0x8000"], ins)], "pf" if dtag else None, 1)
    if sm:
        sm_place(gaps, p, OPT["sm0a"], OPT["sm1a"], OPT["smend"])
        ln = V_L + ((p + 1) % 2) * 4
        tail = [f"v_max3_f32 v{V_T}, v{ln}, v{ln+1}, v{ln+2}", f"v_max_f32 v{V_T}, v{V_T}, v{ln+3}", f"v_cmp_lt_f32 vcc, s{S_THR}, v{V_T}"]
        for k, x in enumerate(tail): gaps[OPT["smend"] + 1 + k].add(x)
    if extra:
        for st, f0, f1 in extra: place_stream(gaps, st, f0, f1)
    emit_groups(groups, pre_issued=pre_issued, post=post, delay=delay)
    if sm:
        a(f"s_cbranch_vccnz L_slow{lab}")
        a.label(f"L_ret{lab}")
        slow.append((p, lab))
PR = lambda p, base=0: [(att_reads(p, base + i), RING_V) for i in range(LA)]

def store_stream(accreg, is_agpr, wsoff, tag, sreg, flags=""):
    st = [f"v_lshlrev_b32 v{V_T+6}, 4, v{V_LANE}",
          f"s_lshl_b32 s{sreg}, s{S_J}, 5", f"s_add_u32 s{sreg}, s{sreg}, s{S_T}",
          f"s_lshl_b32 s{sreg}, s{sreg}, 2", f"s_add_u32 s{sreg}, s{sreg}, s{S_W}",
          f"s_mul_i32 s{sreg}, s{sreg}, 14336", f"s_add_u32 s{sreg}, s{sreg}, {wsoff}"]
    return st
def store_body(accreg, is_agpr, tag, sreg, stage_regs, tmp, flags=""):
    st = []
    for s in range(14):
        nb, qp_ = s // 2, s % 2
        t = stage_regs + 4 * (s % 2)
        for hh in range(2):
            base = accreg + (nb * 4 + 2 * qp_ + hh) * 4
            if is_agpr:
                st += [f"v_accvgpr_read_b32 v{tmp+r}, a{base+r}" for r in range(4)] + ["s_nop 0"]
                src = tmp
            else: src = base
            st += [f"v_cvt_pk_bf16_f32 v{t+2*hh}, v{src}, v{src+1}", f"v_cvt_pk_bf16_f32 v{t+2*hh+1}, v{src+2}, v{src+3}"]
        st += [I_vm(f"buffer_store_dwordx4 {vr(t,4)}, v{V_T+6}, s[{S_WS}:{S_WS+3}], s{sreg} offen{flags}", tag), f"s_add_u32 s{sreg}, s{sreg}, 1024"]
    return st

top0 = [lambda: vm.wait(("st", 29)), "s_barrier"]
period(-1, qk=True, pv=False, sm=False, wait30=(lambda: vm.wait(("st", 30))), post=PR(0), top0=top0, dtag="kk")
for i in range(8): a(f"v_mov_b32 v{V_L+i}, 0")
n0 = len(a.lines)
rescale(-1, True)
rs = [l.strip() for l in a.lines[n0:]]; del a.lines[n0:]
def mp_items():
    VA = 252; TM = 228; sreg = S_X1
    st = [f"v_lshlrev_b32 v{VA}, 4, v{V_LANE}",
          f"s_lshl_b32 s{sreg}, s{S_J}, 5", f"s_add_u32 s{sreg}, s{sreg}, s{S_T}",
          f"s_lshl_b32 s{sreg}, s{sreg}, 2", f"s_add_u32 s{sreg}, s{sreg}, s{S_W}",
          f"s_mul_i32 s{sreg}, s{sreg}, 14336", f"s_add_u32 s{sreg}, s{sreg}, {MP_OFF}"]
    fl = ["", " sc1", " nt", " sc0 sc1"][OPT["mpf"]]
    for s_ in range(14):
        nb, qp_ = s_ // 2, s_ % 2
        t = V_P + 16 + 4 * (s_ % 2)
        for hh in range(2):
            base = GA + (nb * 4 + 2 * qp_ + hh) * 4
            st += [f"v_accvgpr_read_b32 v{TM+r}, a{base+r}" for r in range(4)]
            st += [f"v_cvt_pk_bf16_f32 v{t+2*hh}, v{TM}, v{TM+1}", f"v_cvt_pk_bf16_f32 v{t+2*hh+1}, v{TM+2}, v{TM+3}"]
        if OPT["x_b"] == 1: st += ["s_nop 3"]
        st += [I_vm(f"buffer_store_dwordx4 {vr(t,4)}, v{VA}, s[{S_WS}:{S_WS+3}], s{sreg} offen{fl}", "mp"), f"s_add_u32 s{sreg}, s{sreg}, 1024"]
        if OPT["x_b"] == 2: st += ["s_nop 3"]
    return st
mp = mp_items()
units = dma_kv("K", 0) + dma_kv("V", 3)
per = max(1, len(rs) // 17)
ui = 0
for k, x in enumerate(rs):
    if k % per == per - 1 and ui < len(units) and not x.startswith("s_nop"):
        sal, d = units[ui]; ui += 1
        for y in sal: a(y)
        a(x); vmem(d, "kv0")
    else:
        a(x)
while ui < len(units):
    sal, d = units[ui]; ui += 1
    for y in sal: a(y)
    a("s_nop 0"); vmem(d, "kv0")
for x in mp: do(x)
if OPT["x_b"] == 3: a("s_waitcnt vmcnt(0)")
if OPT["prefetch"]: prefetch("wo", GR)
dump_regs("q", "v", V_Q, 128)
stamp()
PFL = OPT["kvpf"] == 3
W30 = "s_waitcnt vmcnt(1)" if PFL else "s_waitcnt vmcnt(0)"
S_DBG = S_W2
def mp_signal():
    a(f"s_cmp_lg_u32 s{S_W}, 0"); a("s_cbranch_scc1 L_mpsig")
    a(f"s_lshl_b32 s{S_X1}, s{S_T}, 8"); a(f"s_lshl_b32 s{S_X2}, s{S_J}, 2"); a(f"s_add_u32 s{S_X1}, s{S_X1}, s{S_X2}"); a(f"s_add_u32 s{S_X1}, s{S_X1}, {FLG_OFF}")
    a("s_mov_b64 exec, 1")
    a(f"v_mov_b32 v228, s{S_NONCE}"); a("v_mov_b32 v229, 0")
    a(f"buffer_store_dword v228, v229, s[{S_WS}:{S_WS+3}], s{S_X1} offen sc1")
    a("s_mov_b64 exec, -1")
    a.label("L_mpsig")
period(0, post=PR(1), lab="Z", czero=True, wait30=(lambda: vm.wait("kv0")), pf=PFL, dtag="pf0")
vm.ops = []
a(f"s_mov_b32 s{S_CNT}, 15")
a(".p2align 6")
a.label("L_loop")
sv = list(lg.ops)
period(1, dK=dma_kv("K", 1), dV=dma_kv("V", 2), post=PR(2), lab="A", pf=PFL, wait30=W30)
period(2, dK=dma_kv("K", 0), dV=dma_kv("V", 3), post=PR(3), lab="B", pf=PFL, wait30=W30)
assert len(lg.ops) == len(sv), (lg.ops, sv)
a(f"s_sub_u32 s{S_CNT}, s{S_CNT}, 1")
a(f"s_cmp_lg_u32 s{S_CNT}, 0")
a("s_cbranch_scc1 L_loop")
stamp()
mp_signal()
V_DWW = V_SC + 1
dma_voffsets("w")
op_dma = lambda s: dma_stage("OP", s, s % 4) if s < 16 else None
vm.ops = []
LF = V_L + 4 * ((30 + 1) % 2)
SCL = 16; SCP = 24
VA1, VA2, VMGW, VMGR, VL16 = 28, 29, 30, 31, 228
def stats_a():
    st = []
    vs = [LF + q for q in range(4)]; ts = [q for q in range(4)]
    for sw in ("v_permlane16_swap_b32", "v_permlane32_swap_b32"):
        st += [f"v_mov_b32 v{t}, v{v}" for v, t in zip(vs, ts)]
        st += [f"{sw} v{v}, v{t}" for v, t in zip(vs, ts)]
        st += [f"v_add_f32 v{v}, v{v}, v{t}" for v, t in zip(vs, ts)]
    for qb in range(4):
        st += [f"v_sub_f32 v{2*qb}, 0, v{V_NEG+4*qb}", f"v_mov_b32 v{2*qb+1}, v{LF+qb}"]
    st += [f"v_and_b32 v{VA2}, 15, v{V_LANE}", f"v_lshlrev_b32 v{VA2}, 3, v{VA2}",
           f"s_lshl_b32 s{S_X1}, s{S_W}, 9", f"s_add_u32 s{S_X1}, s{S_X1}, {ML}", f"v_add_u32 v{VA1}, s{S_X1}, v{VA2}",
           f"s_xor_b32 s{S_X1}, s{S_X1}, 512", f"v_add_u32 v{VA2}, s{S_X1}, v{VA2}"]
    st += [I_lds(f"ds_write_b64 v{VA1}, {vr(2*qb,2)} offset:{qb*128}", "mlw") for qb in range(4)]
    st += [I_wlg("mlw")]
    return st
def stats_b():
    st = [I_lds(f"ds_read_b64 {vr(8+2*qb,2)}, v{VA2} offset:{qb*128}", "mlr") for qb in range(4)]
    st += [f"v_lshlrev_b32 v{VL16}, 4, v{V_LANE}",
           f"s_lshl_b32 s{S_X1}, s{S_W}, 14", f"s_add_u32 s{S_X1}, s{S_X1}, {2*PS}", f"v_add_u32 v{VMGW}, s{S_X1}, v{VL16}",
           f"s_xor_b32 s{S_X2}, s{S_W}, 1", f"s_lshl_b32 s{S_X2}, s{S_X2}, 14", f"s_add_u32 s{S_X2}, s{S_X2}, {2*PS}", f"v_add_u32 v{VMGR}, s{S_X2}, v{VL16}"]
    st += [I_wlg("mlr")]
    st += [f"v_max_f32 v{20+qb}, v{2*qb}, v{8+2*qb}" for qb in range(4)]
    for qb in range(4): st += [f"v_sub_f32 v{2*qb}, v{2*qb}, v{20+qb}", f"v_sub_f32 v{8+2*qb}, v{8+2*qb}, v{20+qb}"]
    for qb in range(4): st += [f"v_exp_f32 v{2*qb}, v{2*qb}", f"v_exp_f32 v{8+2*qb}, v{8+2*qb}"]
    st += [f"v_mul_f32 v{2*qb+1}, v{2*qb+1}, v{2*qb}" for qb in range(4)]
    st += [f"v_fma_f32 v{2*qb+1}, v{9+2*qb}, v{8+2*qb}, v{2*qb+1}" for qb in range(4)]
    st += [f"v_rcp_f32 v{2*qb+1}, v{2*qb+1}" for qb in range(4)]
    st += [f"v_mul_f32 v{SCL+qb}, v{2*qb}, v{2*qb+1}" for qb in range(4)]
    st += [f"v_mul_f32 v{SCP+qb}, v{8+2*qb}, v{2*qb+1}" for qb in range(4)]
    return st
assert ML % 1024 == 0
period(1, qk=False, pv=True, sm=False, dK=op_dma(0), dV=op_dma(1), dtag=("s3", 1), nobar=True, pre_issued=0,
       extra=[(stats_a(), 1, 27), (stats_b(), 29, 63)], midbar=7)
stamp()

gstamp()
a("s_nop 7"); a("s_nop 3")
a("s_barrier")
gstamp()
OFR = 32
TS = 96
TK = 160
def bsel(reg):
    if reg % 2 == 0: return vr(reg, 2), "op_sel_hi:[1,0]", "op_sel_hi:[1,0,1]"
    return vr(reg - 1, 2), "op_sel:[0,1]", "op_sel:[0,1,0]"
def merge_variant(c):
    send0 = 8 * (1 - c); keep0 = 8 * c
    for rho in range(2):
        blocks = [(dl, qb) for dl in range(4) for qb in range(4)]
        for k, (dl, qb) in enumerate(blocks):
            sb = ((send0 + 4*rho + dl) * 4 + qb) * 4
            lds(f"ds_write_b128 v{VMGW}, {ar(sb,4)} offset:{k*1024}")
            kb_ = ((keep0 + 4*rho + dl) * 4 + qb) * 4
            t = TS + 4 * k
            for r in range(4): a(f"v_accvgpr_read_b32 v{t+r}, a{kb_+r}")
            pr, s2, s3 = bsel(SCL + qb)
            for r in (0, 2): a(f"v_pk_mul_f32 {vr(t+r,2)}, {vr(t+r,2)}, {pr} {s2}")
        if c == 0: gstamp()
        lg.wait_all()
        a("s_barrier")
        if c == 0: gstamp()
        for k in range(16): lds(f"ds_read_b128 {vr(TK+4*k,4)}, v{VMGR} offset:{k*1024}", ("mr", k // 2))
        for k2 in range(8):
            lg.wait(("mr", k2))
            for k in (2*k2, 2*k2+1):
                dl, qb = blocks[k]
                t = TS + 4 * k; u = TK + 4 * k
                pr, s2, s3 = bsel(SCP + qb)
                for r in (0, 2): a(f"v_pk_fma_f32 {vr(t+r,2)}, {vr(u+r,2)}, {pr}, {vr(t+r,2)} {s3}")
            for k in (2*k2, 2*k2+1):
                dl, qb = blocks[k]
                t = TS + 4 * k
                d = 4 * rho + dl
                o = OFR + ((d // 2) * 4 + qb) * 4 + (d % 2) * 2
                a(f"v_cvt_pk_bf16_f32 v{o}, v{t}, v{t+1}"); a(f"v_cvt_pk_bf16_f32 v{o+1}, v{t+2}, v{t+3}")
        if c == 0: gstamp()
        a("s_barrier")
sv = list(lg.ops)
a(f"s_cmp_eq_u32 s{S_C}, 0")
a("s_cbranch_scc0 L_mv1")
merge_variant(0)
a("s_branch L_mvd")
a.label("L_mv1")
lg.ops = list(sv)
merge_variant(1)
a.label("L_mvd")
for f in range(16): lds(f"ds_write_b128 v{VMGW}, {vr(OFR+4*f,4)} offset:{f*1024}")
a(f"v_add_u32 v{VL16}, {2*PS}, v{VL16}")
rowp_cc()
a(f"v_lshl_add_u32 v{V_AA[0]}, v{V_CC}, 3, v{V_ROWP}")
a(f"s_mul_i32 s{S_TMP}, s{S_A}, {BLK}"); a(f"s_mul_i32 s{S_TMP+1}, s{S_C}, 224"); a(f"s_add_u32 s{S_TMP}, s{S_TMP}, s{S_TMP+1}")
a(f"v_add_u32 v{V_AA[0]}, s{S_TMP}, v{V_AA[0]}")
a(f"v_add_u32 v{V_AA[1]}, {2*PS}, v{V_AA[0]}")
lg.wait_all()
gstamp()
a("s_barrier")
gstamp()
for f in range(64):
    lds(f"ds_read_b128 {ar(4*f,4)}, v{VL16} offset:{f*1024}")
    if f % 12 == 11: a("s_waitcnt lgkmcnt(4)"); lg.ops = lg.ops[-4:]
lg.wait_all()
vm.wait(("s3", 1))
a("s_barrier")
dump_regs("o", "a", 0, 256)
stamp(OPT["fine"] in (0, 2, 3))
emit_units(op_dma(2), ("s3", 2))
emit_units(op_dma(3), ("s3", 3))

ofrag = lambda ks, qb: ar((ks * 4 + qb) * 4, 4)
OA = 0
opacc = lambda nb, qb: vr(OA + (nb * 4 + qb) * 4, 4)
S_OUT = S_W1; S_B2 = S_WQ; S_FL = 8
S_MPOK = S_CNT; S_SH = S_KOFF; S_MASK = S_VOFF
S_PO = [S_BG1, S_BQP]; S_RO = [S_BG2, S_GKV]; S_BO = [S_LDSW, S_PFO]
VMP = 112; VG_G = 176; VXR = 192; VB2 = 200; VLN = 204; VXO = 205; VBO = 206
JS = 32 * PART
uid = [0]
def share_scalars(sh):
    for b in range(2):
        t0, t1, t2 = S_TMP, S_TMP + 1, S_TMP + 2
        a(f"s_mul_i32 s{t0}, s{sh}, 7"); a(f"s_add_u32 s{t0}, s{t0}, s{S_W}")
        if b: a(f"s_add_u32 s{t0}, s{t0}, 4")
        a(f"s_mul_i32 s{S_PO[b]}, s{S_T}, {PART}"); a(f"s_lshl_b32 s{t1}, s{t0}, 10"); a(f"s_add_u32 s{S_PO[b]}, s{S_PO[b]}, s{t1}")
        a(f"s_mul_hi_u32 s{t1}, s{t0}, 0x12492493")
        a(f"s_mul_i32 s{t2}, s{t1}, 14"); a(f"s_sub_u32 s{t2}, s{t0}, s{t2}")
        a(f"s_mul_i32 s{t1}, s{t1}, 112"); a(f"s_lshr_b32 s{t0}, s{t2}, 1"); a(f"s_lshl_b32 s{t0}, s{t0}, 4"); a(f"s_add_u32 s{t1}, s{t1}, s{t0}")
        a(f"s_lshl_b32 s{S_BO[b]}, s{t1}, 1")
        a(f"s_and_b32 s{t2}, s{t2}, 1"); a(f"s_lshl_b32 s{t2}, s{t2}, 5"); a(f"s_lshl_b32 s{t0}, s{S_T}, 6"); a(f"s_add_u32 s{t2}, s{t2}, s{t0}")
        a(f"s_mul_i32 s{t2}, s{t2}, 896"); a(f"s_add_u32 s{S_RO[b]}, s{t2}, s{S_BO[b]}")
        if b:
            a(f"s_cmp_lt_u32 s{S_W}, 3")
            for r_ in (S_PO[b], S_RO[b], S_BO[b]): a(f"s_cselect_b32 s{r_}, s{r_}, 0x40000000")
def load_mp(tag):
    for b in range(2):
        for jj in range(8):
            a(f"s_add_u32 s{S_SO}, s{S_PO[b]}, {MP_OFF + jj*JS}")
            vmem(f"buffer_load_dwordx4 {vr(VMP + (b*8+jj)*4,4)}, v{VLN}, s[{S_WS}:{S_WS+3}], s{S_SO} offen sc1", tag)
    for b in range(2):
        vmem(f"buffer_load_dwordx2 {vr(VXR+4*b,2)}, v{VXO}, s[{S_X}:{S_X+3}], s{S_RO[b]} offen", tag)
        a(f"s_add_u32 s{S_SO}, s{S_RO[b]}, 14336")
        vmem(f"buffer_load_dwordx2 {vr(VXR+4*b+2,2)}, v{VXO}, s[{S_X}:{S_X+3}], s{S_SO} offen", tag)
        vmem(f"buffer_load_dwordx2 {vr(VB2+2*b,2)}, v{VBO}, s[{S_B2}:{S_B2+3}], s{S_BO[b]} offen", tag)
def sum8(dst, src0, T0):
    for jj in range(8):
        for i in range(4):
            r = src0 + 4*jj + i
            if jj == 0:
                a(f"v_lshlrev_b32 v{dst+2*i}, 16, v{r}"); a(f"v_and_b32 v{dst+2*i+1}, 0xffff0000, v{r}")
            else:
                a(f"v_lshlrev_b32 v{T0}, 16, v{r}"); a(f"v_and_b32 v{T0+1}, 0xffff0000, v{r}")
                a(f"v_pk_add_f32 {vr(dst+2*i,2)}, {vr(dst+2*i,2)}, {vr(T0,2)}")
def calc_g():
    a(f"s_mov_b32 s{S_SO}, {f32(-math.log2(math.e))}")
    for b in range(2):
        g = VG_G + 8*b
        sum8(g, VMP + b*32, V_T)
        for i in range(2):
            a(f"v_lshlrev_b32 v{V_T+2+2*i}, 16, v{VB2+2*b+i}"); a(f"v_and_b32 v{V_T+3+2*i}, 0xffff0000, v{VB2+2*b+i}")
        for e in range(8): a(f"v_add_f32 v{g+e}, v{g+e}, v{V_T+2+e%4}")
        E = V_F + 8*b
        for e in range(8): a(f"v_mul_f32 v{E+e}, s{S_SO}, v{g+e}")
        for e in range(8): a(f"v_exp_f32 v{E+e}, v{E+e}")
        for e in range(8): a(f"v_add_f32 v{E+e}, 1.0, v{E+e}")
        for e in range(8): a(f"v_rcp_f32 v{E+e}, v{E+e}")
        a("s_nop 0")
        for e in range(8): a(f"v_mul_f32 v{g+e}, v{g+e}, v{E+e}")
def fin():
    VSP = 0
    for b in range(2):
        for jj in range(8):
            a(f"s_add_u32 s{S_SO}, s{S_PO[b]}, {SP_OFF + jj*JS}")
            a(f"buffer_load_dwordx4 {vr(VSP + (b*8+jj)*4,4)}, v{VLN}, s[{S_WS}:{S_WS+3}], s{S_SO} offen sc1")
    for b in range(2):
        a(f"s_waitcnt vmcnt({8 if b == 0 else 0})")
        sm_ = 64 + 8*b
        sum8(sm_, VSP + b*32, V_T)
        for hh in range(2):
            for i in range(2):
                a(f"v_lshlrev_b32 v{V_T+2}, 16, v{VXR+4*b+2*hh+i}"); a(f"v_and_b32 v{V_T+3}, 0xffff0000, v{VXR+4*b+2*hh+i}")
                e = 4*hh + 2*i
                a(f"v_fma_f32 v{sm_+e}, v{sm_+e}, v{VG_G+8*b+e}, v{V_T+2}"); a(f"v_fma_f32 v{sm_+e+1}, v{sm_+e+1}, v{VG_G+8*b+e+1}, v{V_T+3}")
        o = 80 + 4*b
        for hh in range(2):
            a(f"v_cvt_pk_bf16_f32 v{o+2*hh}, v{sm_+4*hh}, v{sm_+4*hh+1}"); a(f"v_cvt_pk_bf16_f32 v{o+2*hh+1}, v{sm_+4*hh+2}, v{sm_+4*hh+3}")
        a(f"buffer_store_dwordx2 {vr(o,2)}, v{VXO}, s[{S_OUT}:{S_OUT+3}], s{S_RO[b]} offen")
        a(f"s_add_u32 s{S_SO}, s{S_RO[b]}, 14336")
        a(f"buffer_store_dwordx2 {vr(o+2,2)}, v{VXO}, s[{S_OUT}:{S_OUT+3}], s{S_SO} offen")

op = gemm_groups("OP", 16, 0, opacc, ofrag, RING_V, V_AA, "s3", first_top=False)
def op_pre():
    srd(S_OUT, 94, 95, 1835008); srd(S_B2, 92, 93, 896)
    a(f"v_lshlrev_b32 v{VLN}, 4, v{V_LANE}")
    a(f"v_and_b32 v{V_T}, 15, v{V_LANE}"); a(f"v_lshrrev_b32 v{V_T+1}, 4, v{V_LANE}")
    a(f"v_mul_u32_u24 v{VXO}, 896, v{V_T}"); a(f"v_lshl_add_u32 v{VXO}, v{V_T+1}, 3, v{VXO}")
    a(f"v_lshlrev_b32 v{VBO}, 3, v{V_T+1}")
    a(f"s_lshl_b32 s{S_X1}, s{S_T}, 8"); a(f"s_add_u32 s{S_X1}, s{S_X1}, {FLG_OFF}")
    a(f"s_load_dwordx8 s[{S_FL}:{S_FL+7}], s[{S_WSP}:{S_WSP+1}], s{S_X1}")
def op_flag():
    a("s_waitcnt lgkmcnt(0)"); lg.ops.clear()
    a(f"s_mov_b32 s{S_X2}, 0")
    for k in range(8):
        a(f"s_xor_b32 s{S_FL+k}, s{S_FL+k}, s{S_NONCE}"); a(f"s_or_b32 s{S_X2}, s{S_X2}, s{S_FL+k}")
    a(f"s_cmp_eq_u32 s{S_X2}, {0 if not OPT['noearly'] else 99}")
    a(f"s_cselect_b32 s{S_MPOK}, 1, 0")
    share_scalars_x(S_J)
def share_scalars_x(sh):
    share_scalars(sh)
op[7 * 9]["top"].append(op_pre)
op[7 * 12]["top"].append(op_flag)
opgaps = prep_groups(op)
gemm_dma(op, opgaps, op_dma, "s3", skip=(3,))
st = []
for b in range(2):
    for jj in range(8):
        st += [f"s_add_u32 s{S_X2}, s{S_PO[b]}, {MP_OFF + jj*JS}",
               I_vm(f"buffer_load_dwordx4 {vr(VMP + (b*8+jj)*4,4)}, v{VLN}, s[{S_WS}:{S_WS+3}], s{S_X2} offen sc1", "mpl")]
for b in range(2):
    st += [I_vm(f"buffer_load_dwordx2 {vr(VXR+4*b,2)}, v{VXO}, s[{S_X}:{S_X+3}], s{S_RO[b]} offen", "mpl"),
           f"s_add_u32 s{S_X2}, s{S_RO[b]}, 14336",
           I_vm(f"buffer_load_dwordx2 {vr(VXR+4*b+2,2)}, v{VXO}, s[{S_X}:{S_X+3}], s{S_X2} offen", "mpl"),
           I_vm(f"buffer_load_dwordx2 {vr(VB2+2*b,2)}, v{VBO}, s[{S_B2}:{S_B2+3}], s{S_BO[b]} offen", "mpl")]
if OPT["mpin"]: place_stream(opgaps, st, 4 * 7 * 13 + 1, 4 * 7 * 16 - 1)
emit_groups(op)
stamp(); hstamp()
a("s_nop 7"); a("s_nop 1")
for x in store_stream(OA, False, SP_OFF, "sp", S_X1) + store_body(OA, False, "sp", S_X1, V_F, V_T + 4, " sc1"): do(x)
hstamp()
vm.wait("sp")
hstamp()
a("s_barrier")
hstamp()
a(f"s_cmp_lg_u32 s{S_W}, 0"); a("s_cbranch_scc1 L_posted")
a(f"s_lshl_b32 s{S_X1}, s{S_T}, 2")
a(f"s_lshl_b32 s{S_X2}, s{S_T}, 8"); a(f"s_add_u32 s{S_X2}, s{S_X2}, {FLG_OFF + 128}")
a("s_mov_b64 exec, 1")
a(f"s_lshl_b32 s{S_TMP}, s{S_J}, 2"); a(f"v_mov_b32 v2, s{S_TMP}"); a(f"v_mov_b32 v4, s{S_NONCE}")
a(f"buffer_store_dword v4, v2, s[{S_WS}:{S_WS+3}], s{S_X2} offen sc1")
a("v_mov_b32 v0, 1"); a("v_mov_b32 v1, 0")
a(f"buffer_atomic_add v0, v1, s[{S_DBG}:{S_DBG+3}], s{S_X1} offen sc0")
a("s_mov_b64 exec, -1")
a.label("L_posted")
if not OPT["mpin"]:
    load_mp("mpl")
    a("s_waitcnt vmcnt(0)")
calc_g()
hstamp()
a(f"s_cmp_lg_u32 s{S_W}, 0"); a("s_cbranch_scc1 L_sync_done")
a(f"v_lshlrev_b32 v3, 2, v{V_LANE}")
a(f"s_lshl_b32 s{S_MASK}, 1, s{S_J}")
a(f"s_mov_b32 s{S_TMP+2}, {OPT['polls']}")
a("s_mov_b64 exec, 0xff")
a.label("L_poll")
a(f"s_cmp_eq_u32 s{S_TMP+2}, 0"); a("s_cbranch_scc1 L_abandon")
a(f"buffer_load_dword v5, v3, s[{S_WS}:{S_WS+3}], s{S_X2} offen sc1")
a("s_waitcnt vmcnt(0)")
a(f"v_cmp_eq_u32 vcc, s{S_NONCE}, v5")
a("s_nop 4")
a("s_cmp_eq_u64 vcc, 0xff"); a("s_cbranch_scc1 L_polled")
a(f"s_sub_u32 s{S_TMP+2}, s{S_TMP+2}, 1")
a(f"s_sleep {OPT['slp']}")
a("s_branch L_poll")
a.label("L_abandon")
a("s_mov_b64 exec, 1")
a("s_waitcnt vmcnt(0)")
a(f"v_readfirstlane_b32 s{S_TMP}, v0")
a(f"s_and_b32 s{S_TMP}, s{S_TMP}, 0xff")
a(f"s_cmp_eq_u32 s{S_TMP}, 7"); a("s_cbranch_scc1 L_polled")
a(f"s_add_u32 s{S_TMP+1}, s{S_J}, 8"); a(f"s_lshl_b32 s{S_TMP+1}, 1, s{S_TMP+1}")
a(f"v_mov_b32 v6, s{S_TMP+1}")
a(f"buffer_atomic_or v6, v1, s[{S_DBG}:{S_DBG+3}], s{S_X1} offen sc0")
a("s_waitcnt vmcnt(0)")
a(f"v_readfirstlane_b32 s{S_TMP}, v6")
a(f"s_and_b32 s{S_TMP}, s{S_TMP}, 0xff")
a(f"s_cmp_eq_u32 s{S_TMP}, 8")
a(f"s_cselect_b32 s{S_MASK}, s{S_MASK}, 0")
a("s_branch L_decided")
a.label("L_polled")
a("s_mov_b64 exec, 1")
a(f"v_readfirstlane_b32 s{S_TMP}, v0")
a(f"s_and_b32 s{S_TMP+1}, s{S_TMP}, 0xff")
a(f"s_cmp_eq_u32 s{S_TMP+1}, 7"); a("s_cbranch_scc0 L_decided")
a(f"s_bfe_u32 s{S_TMP+1}, s{S_TMP}, 0x80008"); a(f"s_or_b32 s{S_MASK}, s{S_MASK}, s{S_TMP+1}")
a.label("L_decided")
a(f"v_mov_b32 v0, s{S_MASK}"); a(f"v_mov_b32 v1, {XREG}")
a("ds_write_b32 v1, v0")
a("s_waitcnt lgkmcnt(0)")
a("s_mov_b64 exec, -1")
a.label("L_sync_done")
a("s_barrier")
a(f"v_mov_b32 v1, {XREG}")
a("ds_read_b32 v0, v1")
a("s_waitcnt lgkmcnt(0)")
a(f"v_readfirstlane_b32 s{S_MASK}, v0")
hstamp()
a.label("L_shares")
a(f"s_cmp_eq_u32 s{S_MASK}, 0"); a("s_cbranch_scc1 L_fin_done")
a(f"s_ff1_i32_b32 s{S_SH}, s{S_MASK}")
a(f"s_bitset0_b32 s{S_MASK}, s{S_SH}")
a(f"s_cmp_eq_u32 s{S_SH}, s{S_J}"); a(f"s_cselect_b32 s{S_X1}, s{S_MPOK}, 0")
a(f"s_cmp_eq_u32 s{S_X1}, 1"); a("s_cbranch_scc1 L_haveg")
share_scalars(S_SH)
load_mp("mpl2")
a("s_waitcnt vmcnt(0)")
calc_g()
a(f"s_mov_b32 s{S_MPOK}, 0")
a.label("L_haveg")
fin()
a("s_branch L_shares")
a.label("L_fin_done")
hstamp()
vm.ops = []
if OPT["stamps"]:
    a("s_waitcnt vmcnt(0) lgkmcnt(0)")
    stamp(True)
    a("s_waitcnt lgkmcnt(0)")
    a(f"s_cmp_lg_u32 s{S_W}, {OPT['swave']}"); a("s_cbranch_scc1 L_end")
    a(f"s_lshl_b32 s{S_TMP}, s2, 7"); a(f"s_add_u32 s{S_TMP}, s{S_TMP}, {STAMP_OFF}")
    a("v_mov_b32 v20, 0")
    a("v_mov_b32 v0, s98")
    for i in range(15): a(f"v_mov_b32 v{i+1}, s{S_ST+2*min(i, nstamp[0]-1)}")
    for q in range(4): a(f"buffer_store_dwordx4 {vr(4*q,4)}, v20, s[{S_WS}:{S_WS+3}], s{S_TMP} offen offset:{16*q}")
a.label("L_end")
a("s_endpgm")
for p, lab in slow:
    a.label(f"L_slow{lab}")
    rescale(p, False)
    a(f"s_branch L_ret{lab}")
main_text = a.text()

KMAIN = NAME + "_kernel"
src = HEADER_COMMENT
src += f"; @launch grid=(256,1,1) block=(256,1,1) lds={LDS_TOTAL}\n"
src += '.amdgcn_target "amdgcn-amd-amdhsa--gfx950"\n.text\n'
src += kernel_begin(KMAIN) + main_text
src += kernel_desc(KMAIN, 512, 102, 256)
open(sys.argv[1], "w").write(src)
```

```python
import sys, math, struct
from asmlib import Asm, NAME, HEADER_COMMENT, kernel_begin, kernel_desc, vr, ar

OPT = dict(x_b=0, x_nat=0, ew=1, dpos=0, x_g=0, mpin=1, slp=4, polls=64, noearly=0, xdma=0, swave=0, fine=0, cpf=1, tlbw=0, pfpos=3, gcap=12, tt=1, xs=1, mpf=1, spf=1, x_nodma=0, x_nobar=0, x_nosm=0, x_nopf=0, x_nolg0=0, d0=2, sm1a=68, smend=123, W=2, dstep=4, pfd=6, qlsc=0, kvpf=3, gelu_end=11, gran=128, stamps=0, prefetch=1, thr=0x4f800000, dump="", sm0a=36, sm0b=76, sm1b=120, kstep=6, vstep=3)
for x in sys.argv[2:]:
    k, v = x.split("=")
    OPT[k] = int(v, 0) if k != "dump" else v

def f32(x):
    return "0x%08x" % struct.unpack("<I", struct.pack("<f", x))[0]

UNIT = 1056; BLK = 16 * UNIT; PS = 2 * BLK
XREG = 4 * PS
LDS_TOTAL = 163840
STATS = XREG
HL = XREG
ML = XREG
SP_OFF = 0
MP_OFF = 0x1000000
QX_OFF = 0x1E00000
QX_OFF = 0x2000000
FLG_OFF = 0x2000000
PART = 57344
DUMP_OFF = 0x3000000
STAMP_OFF = 0x7000000
WS_SIZE = 0x8000000

S_W = 3; S_WSP = 4
S_K, S_V, S_X, S_WQ, S_WO, S_W1, S_W2, S_WS, S_B1 = 8, 12, 16, 20, 24, 28, 32, 36, 40
S_J, S_T = 44, 45
S_LDSW = 46; S_GKV = 47
S_KOFF, S_VOFF = 48, 49
S_SO = 50; S_CNT = 51; S_THR = 52
S_A, S_C = 53, 54
S_TMP = 55
S_BG1, S_BQP, S_BG2, S_BOP = 60, 61, 62, 63
S_M0 = 64
S_ST = 68
S_X1 = 100; S_X2 = 101
S_NONCE = 59

V_Q = 0; V_S = 128; V_P = 160; V_NEG = 192; V_F = 208; V_SC = 224; V_T = 232; V_L = 240
V_KA2 = 246 + 0
V_KA2 = 224
V_KA = 248; V_VA = 249; V_DO = 250; V_LANE = 251
V_AA = [252, 253]; V_DW1 = 254; V_DWQ = 255; V_DWW = 247
V_B4 = 240
V_ROWP, V_CC = 244, 245
A_PF = 255
A_BIAS = 224

a = Asm()

class Tracker:
    def __init__(self, name, maxc): self.ops = []; self.name = name; self.maxc = maxc
    def issue(self, tag): self.ops.append(tag)
    def count(self, tag):
        idx = max([i for i, t in enumerate(self.ops) if t == tag], default=None)
        return None if idx is None else len(self.ops) - 1 - idx
    def wait(self, tag):
        n = self.count(tag)
        if n is None: return
        a(f"s_waitcnt {self.name}({min(n, self.maxc)})")
        n = min(n, self.maxc)
        self.ops = self.ops[len(self.ops) - n:] if n > 0 else []
    def wait_all(self):
        a(f"s_waitcnt {self.name}(0)"); self.ops = []
vm = Tracker("vmcnt", 63)
lg = Tracker("lgkmcnt", 15)
def vmem(ins, tag): a(ins); vm.issue(tag)
def lds(ins, tag="x"): a(ins); lg.issue(tag)

class It:
    def __init__(self, cost, fn, kind="m"): self.cost = cost; self.fn = fn; self.kind = kind
def kind_of(x):
    if isinstance(x, It): return x.kind
    op = x.split()[0]
    if op.startswith("s_"): return "s"
    if op.startswith(("ds_", "buffer_", "global_")): return "m"
    return "v"
def cost(x):
    if isinstance(x, It): return x.cost
    op = x.split()[0]
    if op.startswith("s_"): return 0
    if op.startswith(("v_exp", "v_log", "v_rcp", "v_rsq", "v_sqrt")): return 8
    if op.startswith("buffer_"): return 8
    return 4
def do(x):
    if isinstance(x, It): x.fn()
    elif callable(x): x()
    else: a(x)
def I_vm(ins, tag): return It(8, lambda: vmem(ins, tag), "m")
def I_lds(ins, tag="x"): return It(8 if "write" in ins else 4, lambda: lds(ins, tag), "m")
def I_wvm(tag): return It(0, lambda: vm.wait(tag), "s")
def I_wlg(tag): return It(0, lambda: lg.wait(tag), "s")

class Gap:
    def __init__(self): self.s = []; self.m = []; self.v = []; self.cap = 8
    def add(self, x, force=False):
        k = kind_of(x); c = cost(x)
        if k == "s":
            if self.v: self.v.append(x)
            elif self.m and getattr(self, "strict", False): self.m.append(x)
            else: self.s.append(x)
        elif k == "m":
            if self.v: self.v.append(x)
            else: self.m.append(x)
        else: self.v.append(x)
        self.cap -= c
    def items(self): return self.s + self.m + self.v

def place_stream(gaps, stream, first, last):
    idxs = list(range(first, last + 1))
    free = sum(max(gaps[g].cap, 0) for g in idxs)
    need = sum(cost(x) for x in stream)
    ratio = min(1.0, need / max(free, 1))
    k = 0; used = 0.0; budget = 0.0
    for j, g in enumerate(idxs):
        G = gaps[g]; G.strict = True
        budget += max(G.cap, 0) * ratio + 1e-9
        lastg = j == len(idxs) - 1
        while k < len(stream):
            x = stream[k]; c = cost(x)
            if lastg or c == 0 or (c <= G.cap and used + c <= budget + 4):
                if kind_of(x) == "m" and G.v and not lastg: break
                G.add(x); used += c; k += 1
            else: break
    assert k == len(stream), (k, len(stream))

KMAIN = "fused_main_kernel"; KFIN = "fused_final_kernel"
nstamp = [0]
def fstamp():
    if OPT["fine"] == 1: stamp(True)
def gstamp():
    if OPT["fine"] == 2: stamp(True)
def hstamp():
    if OPT["fine"] == 3: stamp(True)
def stamp(force=False):
    if not OPT["stamps"]: return
    if OPT["fine"] == 1 and not force and nstamp[0] >= 3: return
    if OPT["fine"] == 1 and force and nstamp[0] >= 15: return
    if OPT["fine"] in (2, 3) and not force: return
    i = nstamp[0]; nstamp[0] += 1
    assert i < 12, i
    a(f"s_memtime s[{S_ST+2*i}:{S_ST+2*i+1}]")
def srd(base, lo, hi, size):
    a(f"s_mov_b32 s{base}, s{lo}"); a(f"s_mov_b32 s{base+1}, s{hi}")
    a(f"s_mov_b32 s{base+2}, {size}"); a(f"s_mov_b32 s{base+3}, 0x20000")
def reg(spec, off, n):
    kind, base = spec
    return (vr if kind == "v" else ar)(base + off, n)

def dma_stage(kind, s, ps):
    out = []
    if kind in ("G1", "QP"):
        rs = 3584 if kind == "G1" else 8192
        sr_ = S_W1 if kind == "G1" else S_WQ
        base = S_BG1 if kind == "G1" else S_BQP
        vo = V_DW1 if kind == "G1" else V_DWQ
        for k in range(8):
            rho = 8 * (k >> 2) + (k & 3)
            rows = (64 * s if kind == "G1" else 32 * s) + rho
            out.append(([f"s_add_u32 s{S_SO}, s{base}, {rows * rs}", f"s_add_u32 m0, s{S_M0+ps}, {k*UNIT}"],
                        f"buffer_load_dwordx4 v{vo}, s[{sr_}:{sr_+3}], s{S_SO} offen lds"))
    else:
        sr_ = S_W2 if kind == "G2" else S_WO
        base = S_BG2 if kind == "G2" else S_BOP
        for k in range(8):
            sal = []
            if k % 4 == 0: sal.append(f"s_add_u32 s{S_SO}, s{base}, {(32 * s + k) * 896}")
            sal.append(f"s_add_u32 m0, s{S_M0+ps}, {k*UNIT - 896*(k%4)}")
            out.append((sal, f"buffer_load_dwordx4 v{V_DWW}, s[{sr_}:{sr_+3}], s{S_SO} offen offset:{896*(k%4)} lds"))
    return out
def dma_kv(which, ps):
    sr_ = S_K if which == "K" else S_V
    so = S_KOFF if which == "K" else S_VOFF
    out = []
    for k in range(8):
        sal = [f"s_add_u32 s{so}, s{so}, 0x8000", f"s_mov_b32 m0, s{S_M0+ps}"] if k == 0 else ["s_add_u32 m0, m0, 544"]
        out.append((sal, f"buffer_load_dwordx4 v{V_DO}, s[{sr_}:{sr_+3}], s{so} offen offset:{512*k} lds"))
    return out
def emit_units(units, tag):
    for sal, d in units:
        for x in sal: a(x)
        a("s_nop 0")
        vmem(d, tag)
def stage_dma(gs):
    if gs < 7: return dma_stage("G1", gs, gs % 4)
    if gs < 21: return dma_stage("QP", gs - 7, gs % 4)
    if gs < 28: return dma_stage("G2", gs - 21, gs % 4)
    if gs == 28: return dma_kv("K", 0)
    if gs == 29: return dma_kv("K", 1)
    if gs == 30: return dma_kv("V", 2)
    return None

LA = 3; R = 4
gctr = [0]
def read_sched(groups, post, delay, pre_issued):
    n = len(groups); post = post or []; delay = delay or {}
    sched = {}
    for i in range(pre_issued, n + LA):
        G = delay.get(i, i - LA)
        rs = groups[i]["reads"] if i < n else (post[i - n][0] if i - n < len(post) else [])
        for k in range(len(rs)): sched.setdefault(G, []).append((i, k))
    return sched
def rgap(g, j):
    if g.get("stage") is not None and OPT["tt"]: return min(j // 2, 3)
    return min(j, 3)
def prep_groups(groups, pre_issued=0, post=None, delay=None):
    sched = read_sched(groups, post, delay, pre_issued)
    for G, g in enumerate(groups):
        g["gaps"] = [Gap() for _ in range(4)]
        if g.get("stage") is not None:
            for gp in g["gaps"]: gp.cap = OPT["gcap"]
        for q, _ in enumerate(sched.get(G, [])): g["gaps"][rgap(g, q)].cap -= 4
    return [gp for g in groups for gp in g["gaps"]]
def emit_groups(groups, pre_issued=0, post=None, delay=None, W=None):
    n = len(groups)
    post = post or []
    W = W or OPT["W"]
    G0 = gctr[0]
    def info(i):
        if i < n: return groups[i]["reads"], groups[i]["ring"]
        return post[i - n] if i - n < len(post) else ([], None)
    def fmt(x, i, ring):
        o = 4 * ((G0 + i) % R)
        return x.format(r=reg(ring, o, 4), r0=reg(ring, o, 2), r1=reg(ring, o + 2, 2), A=reg(ring, o, 4))
    sched = read_sched(groups, post, delay, pre_issued)
    def issue(i, k):
        rs, ring = info(i)
        lds(fmt(rs[k], i, ring), ("f", G0 + i))
    for G in sorted(g for g in sched if g < 0):
        for (i, k) in sched[G]: issue(i, k)
    for i, g in enumerate(groups):
        for x in g.get("top", []): do(x)
        if W == 2 and (G0 + i) % 2 == 0 and i + 1 < n and lg.count(("f", G0 + i + 1)) is not None and not groups[i + 1].get("top"):
            lg.wait(("f", G0 + i + 1))
        lg.wait(("f", G0 + i))
        rl = sched.get(i, [])
        for q, m in enumerate(g["mf"]):
            a(fmt(m, i, g["ring"]))
            gp = g["gaps"][q]
            if q == 3 and OPT["ew"] and i + 1 < n and not groups[i + 1].get("top"):
                j = i + 1
                if W == 2 and (G0 + j) % 2 == 0 and j + 1 < n and lg.count(("f", G0 + j + 1)) is not None and not groups[j + 1].get("top"):
                    lg.wait(("f", G0 + j + 1))
                lg.wait(("f", G0 + j))
            for x in gp.s: do(x)
            for j, (ii, k) in enumerate(rl):
                if rgap(g, j) == q: issue(ii, k)
            for x in gp.m + gp.v: do(x)
    gctr[0] += n

def place_units(gaps, pos, units, tag, step):
    for sal, d in units:
        while gaps[pos].cap < 8: pos += 1
        tgt = gaps[pos - 1]
        assert not tgt.v
        for x in sal: (tgt.m if tgt.m else tgt.s).append(x)
        gaps[pos].add(I_vm(d, tag) if tag is not None else d)
        pos += step
def trd(aa, off):
    return [f"ds_read_b64_tr_b16 {{r0}}, v{aa} offset:{off}", f"ds_read_b64_tr_b16 {{r1}}, v{aa} offset:{off+512}"]
def mf16(d, b, c): return f"v_mfma_f32_16x16x32_bf16 {d}, {{A}}, {b}, {c}"

def gemm_groups(kind, nstage, gs0, accf, bf, ring, aa, tagp, first_top=True):
    groups = []
    for s in range(nstage):
        gs = gs0 + s; ps = gs % 4
        av = aa[ps // 2]; pso = (ps % 2) * PS
        first = len(groups)
        if kind == "G1": items = [(pso + blk * BLK + fb * 32, fb, 2 * s + blk) for blk in range(2) for fb in range(4)]
        elif kind == "QP": items = [(pso + ((db // 2) * 64 + (db % 2) * 8 if not OPT["x_nat"] else db * 32), db, s) for db in range(8)]
        else: items = [(pso + nb * 32, nb, s) for nb in range(7)]
        for off, blk, ks in items:
            groups.append(dict(reads=trd(av, off), ring=ring, stage=gs, first=(len(groups) == first),
                               mf=[mf16(accf(blk, qb), bf(ks, qb), accf(blk, qb) if ks > 0 else "0") for qb in range(4)], top=[]))
        if s > 0 or first_top:
            groups[first]["top"] = [lambda gs=gs: vm.wait((tagp, gs + 1)), "s_barrier"]
    return groups
def gemm_dma(groups, gaps, dmaf, tagp, skip=()):
    for G, g in enumerate(groups):
        if g.get("first"):
            gs = g["stage"]
            if (gs + 3) in skip: continue
            units = dmaf(gs + 3)
            if not units: continue
            ng = sum(1 for x in groups if x["stage"] == gs)
            dq = 1 if OPT["tt"] else 2
            if OPT["dpos"] == 0:
                pos = [4 * (G + i) + dq for i in range(ng)]
                if ng < len(units): pos = sorted(pos + [4 * (G + 3) + dq + 1])
            elif OPT["dpos"] == 1:
                pos = [4 * (G + i) + q for i in range(4) for q in (1, 3)]
            elif OPT["dpos"] == 2:
                pos = [4 * G + x for x in (1, 3, 5, 9, 11, 13, 17, 21)]
            else:
                pos = [4 * G + x for x in (1, 3, 6+1, 9, 11, 15, 17, 19)]
            for u, p_ in zip(units, pos): place_units(gaps, p_, [u], (tagp, gs + 3), 1)

def xlane(op, v, t):
    for sw in ("v_permlane16_swap_b32", "v_permlane32_swap_b32"):
        a(f"v_mov_b32 v{t}, v{v}"); a("s_nop 1")
        a(f"{sw} v{v}, v{t}"); a("s_nop 1")
        a(f"{op} v{v}, v{v}, v{t}")
def xlane4(op, vs, ts):
    for sw in ("v_permlane16_swap_b32", "v_permlane32_swap_b32"):
        for v, t in zip(vs, ts): a(f"v_mov_b32 v{t}, v{v}")
        for v, t in zip(vs, ts): a(f"{sw} v{v}, v{t}")
        for v, t in zip(vs, ts): a(f"{op} v{v}, v{v}, v{t}")
def round_bf16(v, t):
    a(f"v_cvt_pk_bf16_f32 v{t}, v{v}, v{v}")
    a(f"v_lshlrev_b32 v{v}, 16, v{t}")

def dump_regs(name, kind, base, n):
    if OPT["dump"] != name: return
    a("s_nop 7"); a("s_nop 7"); a("s_waitcnt vmcnt(0) lgkmcnt(0)")
    a(f"s_lshl_b32 s{S_TMP}, s2, 2"); a(f"s_add_u32 s{S_TMP}, s{S_TMP}, s{S_W}")
    a(f"s_mul_i32 s{S_TMP}, s{S_TMP}, {n*256}")
    a(f"s_add_u32 s{S_TMP}, s{S_TMP}, {DUMP_OFF}")
    a(f"v_lshlrev_b32 v{V_T+7}, 2, v{V_LANE}")
    for i in range(n):
        if kind == "a":
            a(f"v_accvgpr_read_b32 v{V_T+6}, a{base+i}"); src = V_T + 6
        else: src = base + i
        a(f"buffer_store_dword v{src}, v{V_T+7}, s[{S_WS}:{S_WS+3}], s{S_TMP} offen")
        a(f"s_add_u32 s{S_TMP}, s{S_TMP}, 256")
        if kind == "a": a("s_waitcnt vmcnt(0)")
    a("s_waitcnt vmcnt(0)")
    a("s_endpgm")

a("s_cmp_ge_u32 s2, 256")
a("s_cbranch_scc1 L_end")
a("s_load_dwordx2 s[16:17], s[0:1], 0")
if OPT["stamps"]: a("s_memtime s[98:99]")
a(f"v_lshrrev_b32 v{V_T}, 6, v0")
a(f"v_and_b32 v{V_LANE}, 63, v0")
a(f"v_readfirstlane_b32 s{S_W}, v{V_T}")
VQ_, VG_ = V_T + 1, V_T + 2
a(f"v_and_b32 v{VQ_}, 15, v{V_LANE}")
a(f"v_lshrrev_b32 v{VG_}, 4, v{V_LANE}")
a(f"s_lshr_b32 s{S_T}, s2, 3")
a(f"v_mul_u32_u24 v{V_T+3}, 896, v{VQ_}")
a(f"s_lshl_b32 s{S_TMP}, s{S_T}, 2"); a(f"s_add_u32 s{S_TMP}, s{S_TMP}, s{S_W}")
a(f"v_lshl_add_u32 v{V_T+3}, v{VG_}, 4, v{V_T+3}")
a(f"s_mul_i32 s{S_TMP}, s{S_TMP}, {16*896}")
a(f"s_mov_b32 s{S_X+2}, 1835008"); a(f"s_mov_b32 s{S_X+3}, 0x20000")
a("s_waitcnt lgkmcnt(0)")
XR = 0
if OPT["xdma"]:
    a(f"s_lshl_b32 s{S_TMP+1}, s{S_W}, 10"); a(f"s_add_u32 s{S_TMP+1}, s{S_TMP+1}, {2*PS}")
    for ks in range(14):
        a(f"s_add_u32 m0, s{S_TMP+1}, {ks*4096 - 64*ks}")
        a("s_nop 0")
        vmem(f"buffer_load_dwordx4 v{V_T+3}, s[{S_X}:{S_X+3}], s{S_TMP} offen offset:{64*ks} lds", "x")
else:
    for ks in range(14):
        vmem(f"buffer_load_dwordx4 {vr(XR+4*ks,4)}, v{V_T+3}, s[{S_X}:{S_X+3}], s{S_TMP} offen offset:{64*ks}", "x")
a("s_load_dwordx16 s[68:83], s[0:1], 0")
a("s_load_dwordx2 s[84:85], s[0:1], 64")
a("s_load_dwordx2 s[4:5], s[0:1], 96")
a("s_load_dwordx4 s[92:95], s[0:1], 72")
a("s_load_dwordx2 s[96:97], s[0:1], 88")
if OPT["cpf"]:
    a("s_getpc_b64 s[6:7]")
    a.label("L_pc0")
    a(f"s_sub_u32 s6, s6, L_pc0-{NAME}_kernel"); a("s_subb_u32 s7, s7, 0")
    a(f"s_lshl_b32 s{S_TMP+1}, s{S_T}, 11")
    a(f"v_lshlrev_b32 v{V_T+4}, 9, v{V_T}")
    a(f"v_and_b32 v{V_T+5}, 3, v{V_LANE}"); a(f"v_lshl_add_u32 v{V_T+4}, v{V_T+5}, 7, v{V_T+4}")
    a(f"v_add_u32 v{V_T+4}, s{S_TMP+1}, v{V_T+4}")
    a(f"global_load_dword a{A_PF}, v{V_T+4}, s[6:7]")
    vm.issue("cpf")
    a(f"global_load_dword a{A_PF}, v{V_T+4}, s[6:7] offset:64")
    vm.issue("cpf")
a(f"s_and_b32 s{S_J}, s2, 7")
PX, PK, PV_, PWQ, PWO, PW1, PB1, PW2 = 68, 70, 72, 74, 76, 80, 82, 84
a("s_waitcnt lgkmcnt(0)")
a(f"s_cmp_lg_u32 s{S_W}, 0"); a("s_cbranch_scc1 L_nonce")
a("s_memrealtime s[6:7]")
a(f"s_mov_b32 s{S_B1}, s96"); a(f"s_mov_b32 s{S_B1+1}, s97"); a(f"s_mov_b32 s{S_B1+2}, 256"); a(f"s_mov_b32 s{S_B1+3}, 0x20000")
a(f"s_lshl_b32 s{S_X1}, s{S_T}, 2"); a(f"s_add_u32 s{S_X1}, s{S_X1}, 128")
a("s_waitcnt lgkmcnt(0)")
a(f"s_or_b32 s{S_NONCE}, s6, 1")
a("s_mov_b64 exec, 1")
a(f"v_mov_b32 v96, s{S_NONCE}"); a("v_mov_b32 v97, 0"); a("v_mov_b32 v98, 0")
a(f"buffer_atomic_cmpswap v[96:97], v98, s[{S_B1}:{S_B1+3}], s{S_X1} offen sc0")
a("s_mov_b64 exec, -1")
a.label("L_nonce")
a(f"s_lshl_b32 s{S_TMP}, s{S_J}, 20")
a(f"s_add_u32 s{S_K}, s{PK}, s{S_TMP}"); a(f"s_addc_u32 s{S_K+1}, s{PK+1}, 0")
a(f"s_mov_b32 s{S_K+2}, 0x100000"); a(f"s_mov_b32 s{S_K+3}, 0x20000")
a(f"s_add_u32 s{S_V}, s{PV_}, s{S_TMP}"); a(f"s_addc_u32 s{S_V+1}, s{PV_+1}, 0")
a(f"s_mov_b32 s{S_V+2}, 0x100000"); a(f"s_mov_b32 s{S_V+3}, 0x20000")
srd(S_WQ, PWQ, PWQ+1, 3670016)
srd(S_WO, PWO, PWO+1, 3670016)
srd(S_W1, PW1, PW1+1, 1605632)
srd(S_W2, PW2, PW2+1, 1605632)
srd(S_WS, S_WSP, S_WSP+1, WS_SIZE)
srd(S_B1, PB1, PB1+1, 3584)
stamp()
a(f"s_lshr_b32 s{S_A}, s{S_W}, 1"); a(f"s_and_b32 s{S_C}, s{S_W}, 1")
a(f"s_mul_i32 s{S_TMP}, s{S_A}, {BLK}"); a(f"s_mul_i32 s{S_TMP+1}, s{S_C}, {8*UNIT}")
a(f"s_add_u32 s{S_LDSW}, s{S_TMP}, s{S_TMP+1}")
for i in range(4): a(f"s_add_u32 s{S_M0+i}, s{S_LDSW}, {i*PS}")
a(f"s_lshl_b32 s{S_TMP}, s{S_A}, 14"); a(f"s_lshl_b32 s{S_TMP+1}, s{S_C}, 12")
a(f"s_add_u32 s{S_GKV}, s{S_TMP}, s{S_TMP+1}")
a(f"s_sub_u32 s{S_KOFF}, s{S_GKV}, 0x8000"); a(f"s_sub_u32 s{S_VOFF}, s{S_GKV}, 0x8000")
a(f"s_lshl_b32 s{S_TMP}, s{S_A}, 5"); a(f"s_lshl_b32 s{S_TMP+1}, s{S_C}, 4"); a(f"s_add_u32 s{S_TMP}, s{S_TMP}, s{S_TMP+1}")
a(f"s_mul_i32 s{S_BG1}, s{S_TMP}, 3584"); a(f"s_mul_i32 s{S_TMP+1}, s{S_J}, 448"); a(f"s_add_u32 s{S_BG1}, s{S_BG1}, s{S_TMP+1}")
a(f"s_lshl_b32 s{S_TMP}, s{S_C}, 17")
a(f"s_lshl_b32 s{S_TMP+1}, s{S_J}, 10"); a(f"s_add_u32 s{S_TMP}, s{S_TMP}, s{S_TMP+1}")
a(f"s_lshl_b32 s{S_TMP+1}, s{S_A}, 9"); a(f"s_add_u32 s{S_BQP}, s{S_TMP}, s{S_TMP+1}")
a(f"s_mul_i32 s{S_TMP}, s{S_J}, 224"); a(f"s_lshl_b32 s{S_TMP+1}, s{S_C}, 3"); a(f"s_add_u32 s{S_TMP}, s{S_TMP}, s{S_TMP+1}")
a(f"s_mul_i32 s{S_BG2}, s{S_TMP}, 896"); a(f"s_mul_i32 s{S_TMP+2}, s{S_A}, 448"); a(f"s_add_u32 s{S_BG2}, s{S_BG2}, s{S_TMP+2}")
a(f"s_lshl_b32 s{S_TMP}, s{S_J}, 9"); a(f"s_add_u32 s{S_TMP}, s{S_TMP}, s{S_TMP+1}")
a(f"s_mul_i32 s{S_BOP}, s{S_TMP}, 896"); a(f"s_add_u32 s{S_BOP}, s{S_BOP}, s{S_TMP+2}")
a(f"s_mov_b32 s{S_THR}, {OPT['thr']}")
def dma_voffsets(which):
    a(f"v_lshrrev_b32 v{V_T+4}, 5, v{V_LANE}")
    a(f"v_and_b32 v{V_T+5}, 31, v{V_LANE}")
    a(f"v_lshlrev_b32 v{V_T+5}, 4, v{V_T+5}")
    if "1" in which:
        a(f"v_mul_u32_u24 v{V_DW1}, {4*3584}, v{V_T+4}"); a(f"v_add_u32 v{V_DW1}, v{V_DW1}, v{V_T+5}")
    if "q" in which: a(f"v_lshl_add_u32 v{V_DWQ}, v{V_T+4}, 15, v{V_T+5}")
    if "o" in which: a(f"v_lshl_add_u32 v{V_DO}, v{V_T+4}, 13, v{V_T+5}")
    if "w" in which:
        a(f"v_mul_u32_u24 v{V_DWW}, {16*896}, v{V_T+4}"); a(f"v_add_u32 v{V_DWW}, v{V_DWW}, v{V_T+5}")
        a(f"v_cmp_lt_u32 vcc, {27*16}, v{V_T+5}")
        a(f"v_mov_b32 v{V_T+6}, 0x40000000")
        a("s_nop 1")
        a(f"v_cndmask_b32 v{V_DWW}, v{V_DWW}, v{V_T+6}, vcc")
dma_voffsets("1qow")
if OPT["pfpos"] < 3:
    emit_units(stage_dma(0), ("st", 0))
    emit_units(stage_dma(1), ("st", 1))
def rowp_cc():
    a(f"v_bfe_u32 v{V_ROWP}, v{V_LANE}, 2, 2")
    a(f"v_lshrrev_b32 v{V_CC}, 4, v{V_LANE}")
    a(f"v_lshl_add_u32 v{V_ROWP}, v{V_CC}, 2, v{V_ROWP}")
    a(f"v_mul_u32_u24 v{V_ROWP}, {UNIT}, v{V_ROWP}")
    a(f"v_and_b32 v{V_CC}, 3, v{V_LANE}")
rowp_cc()

PFD = OPT["pfd"]
def prefetch(kind, gran):
    dst = "v227" if kind == "wo" else f"a{A_PF}"
    sh = 6 if gran == 64 else 7
    a(f"s_lshl_b32 s{S_TMP}, s{S_T}, 2"); a(f"s_add_u32 s{S_TMP}, s{S_TMP}, s{S_W}")
    T0, T1 = V_T + 4, V_T + 5
    def masked(n):
        if n < 64:
            a(f"v_cmp_lt_u32 vcc, {n-1}, v{V_LANE}")
            a(f"v_mov_b32 v{T1}, 0x40000000")
            a("s_nop 1")
            a(f"v_cndmask_b32 v{T0}, v{T0}, v{T1}, vcc")
    if kind in ("w1", "wq"):
        rowb = 512 if kind == "w1" else 1024
        rs = 3584 if kind == "w1" else 8192
        if kind == "w1": rowb, per_row = 640, 8
        per_row = 8 if kind == "w1" else rowb // gran
        step = 64 if kind == "w1" else gran
        n = 448 * per_row // 128
        a(f"s_mul_i32 s{S_TMP}, s{S_TMP}, {n}")
        a(f"v_add_u32 v{T0}, s{S_TMP}, v{V_LANE}")
        lgp = per_row.bit_length() - 1
        a(f"v_lshrrev_b32 v{T1}, {lgp}, v{T0}")
        a(f"v_and_b32 v{T0}, {per_row-1}, v{T0}")
        a(f"v_mul_u32_u24 v{T0}, {step}, v{T0}")
        a(f"s_mov_b32 s{S_TMP+1}, {rs}")
        a(f"v_mad_u32_u24 v{T0}, v{T1}, s{S_TMP+1}, v{T0}")
        masked(n)
        a(f"s_mul_i32 s{S_TMP+1}, s{S_J}, {448 if kind == 'w1' else 1024}")
        sr_ = S_W1 if kind == "w1" else S_WQ
        vmem(f"buffer_load_dword a{A_PF}, v{T0}, s[{sr_}:{sr_+3}], s{S_TMP+1} offen", "pf")
    else:
        size = {"w2": 200704, "wo": 458752, "k": 1 << 20, "v": 1 << 20, "k0": PFD * 32768, "v0": PFD * 32768}[kind]
        sr_ = {"w2": S_W2, "wo": S_WO, "k": S_K, "v": S_V, "k0": S_K, "v0": S_V}[kind]
        n = (size // gran + 127) // 128
        a(f"s_mul_i32 s{S_TMP}, s{S_TMP}, {n*gran}")
        if kind in ("w2", "wo"):
            a(f"s_mul_i32 s{S_TMP+1}, s{S_J}, {size}"); a(f"s_add_u32 s{S_TMP}, s{S_TMP}, s{S_TMP+1}")
        a(f"v_lshlrev_b32 v{T0}, {sh}, v{V_LANE}")
        masked(n)
        for i in range((n + 63) // 64):
            vmem(f"buffer_load_dword {dst}, v{T0}, s[{sr_}:{sr_+3}], s{S_TMP} offen", "pf")
            if i + 1 < (n + 63) // 64: a(f"s_add_u32 s{S_TMP}, s{S_TMP}, {64*gran}")
GR = OPT["gran"]
def early_pf(which):
    if not OPT["prefetch"]: return
    for kind in which: prefetch(kind, GR)
if OPT["pfpos"] == 0:
    early_pf(("w1", "wq", "w2", "k0", "v0"))
if OPT["pfpos"] == 4: early_pf(("w1", "wq", "w2"))
if OPT["pfpos"] in (0, 1, 4):
    a(f"v_lshlrev_b32 v{V_T+6}, 3, v{VG_}")
    a(f"s_mul_i32 s{S_TMP}, s{S_J}, 448"); a(f"s_lshl_b32 s{S_TMP+1}, s{S_W}, 7"); a(f"s_add_u32 s{S_TMP}, s{S_TMP}, s{S_TMP+1}")
    for fb in range(4):
        vmem(f"buffer_load_dwordx2 {ar(A_BIAS+2*fb,2)}, v{V_T+6}, s[{S_B1}:{S_B1+3}], s{S_TMP} offen offset:{32*fb}", "b1")
if OPT["pfpos"] == 1: early_pf(("w1",))

vm.wait("x")
if OPT["xdma"]:
    a(f"v_lshlrev_b32 v{V_T+6}, 4, v{V_LANE}")
    a(f"s_lshl_b32 s{S_TMP}, s{S_W}, 10"); a(f"s_add_u32 s{S_TMP}, s{S_TMP}, {2*PS}")
    a(f"v_add_u32 v{V_T+6}, s{S_TMP}, v{V_T+6}")
    for ks in range(14): lds(f"ds_read_b128 {vr(XR+4*ks,4)}, v{V_T+6} offset:{ks*4096}", "xr")
    lg.wait_all()
stamp()
XF = 112
for i in range(56):
    a(f"v_lshlrev_b32 v{XF+2*i}, 16, v{XR+i}")
    a(f"v_and_b32 v{XF+2*i+1}, 0xffff0000, v{XR+i}")
ACC = 56
fstamp()
if OPT["pfpos"] in (3, 4): emit_units(stage_dma(0), ("st", 0))
fstamp()
for c in range(4): a(f"v_pk_add_f32 {vr(ACC+2*c,2)}, {vr(XF+4*c,2)}, {vr(XF+4*c+2,2)}")
for n_, i in enumerate(range(8, 56)):
    c = n_ % 4
    a(f"v_pk_add_f32 {vr(ACC+2*c,2)}, {vr(ACC+2*c,2)}, {vr(XF+2*i,2)}")
a(f"v_pk_add_f32 {vr(ACC,2)}, {vr(ACC,2)}, {vr(ACC+2,2)}")
a(f"v_pk_add_f32 {vr(ACC+4,2)}, {vr(ACC+4,2)}, {vr(ACC+6,2)}")
a(f"v_pk_add_f32 {vr(ACC,2)}, {vr(ACC,2)}, {vr(ACC+4,2)}")
a(f"v_add_f32 v{ACC}, v{ACC}, v{ACC+1}")
xlane("v_add_f32", ACC, ACC+1)
VMEAN, VMB = ACC + 2, ACC + 4
a(f"v_mul_f32 v{VMEAN}, {f32(1.0/448)}, v{ACC}")
a(f"v_mov_b32 v{VMB}, v{VMEAN}")
round_bf16(VMB, ACC+1)
a(f"v_mov_b32 v{VMB+1}, v{VMB}")
VAR = 64
XCL = 2 * PS
if OPT["pfpos"] == 1: early_pf(("wq", "w2"))
fstamp()
if OPT["pfpos"] in (3, 4): emit_units(stage_dma(1), ("st", 1))
fstamp()
if OPT["pfpos"] == 2:
    a(f"v_lshlrev_b32 v{V_T+4}, 3, v{VG_}")
    a(f"s_mul_i32 s{S_TMP}, s{S_J}, 448"); a(f"s_lshl_b32 s{S_TMP+1}, s{S_W}, 7"); a(f"s_add_u32 s{S_TMP}, s{S_TMP}, s{S_TMP+1}")
    for fb in range(4):
        vmem(f"buffer_load_dwordx2 {ar(A_BIAS+2*fb,2)}, v{V_T+4}, s[{S_B1}:{S_B1+3}], s{S_TMP} offen offset:{32*fb}", "b1")
    early_pf(("w1", "wq", "w2"))

a(f"v_lshlrev_b32 v{V_T+6}, 4, v{V_LANE}")
a(f"s_lshl_b32 s{S_TMP}, s{S_W}, 10"); a(f"s_add_u32 s{S_TMP}, s{S_TMP}, {XCL}")
a(f"v_add_u32 v{V_T+6}, s{S_TMP}, v{V_T+6}")
for ks in range(14):
    for i in range(4*ks, 4*ks+4):
        a(f"v_pk_add_f32 {vr(XF+2*i,2)}, {vr(XF+2*i,2)}, {vr(VMB,2)} neg_lo:[0,1] neg_hi:[0,1]")
    for i in range(4*ks, 4*ks+4):
        c = i % 4
        if i < 4: a(f"v_pk_mul_f32 {vr(VAR+2*c,2)}, {vr(XF+2*i,2)}, {vr(XF+2*i,2)}")
        else: a(f"v_pk_fma_f32 {vr(VAR+2*c,2)}, {vr(XF+2*i,2)}, {vr(XF+2*i,2)}, {vr(VAR+2*c,2)}")
if OPT["pfpos"] == 3:
    a(f"v_lshlrev_b32 v{V_T+4}, 3, v{VG_}")
    a(f"s_mul_i32 s{S_TMP}, s{S_J}, 448"); a(f"s_lshl_b32 s{S_TMP+1}, s{S_W}, 7"); a(f"s_add_u32 s{S_TMP}, s{S_TMP}, s{S_TMP+1}")
    for fb in range(4):
        vmem(f"buffer_load_dwordx2 {ar(A_BIAS+2*fb,2)}, v{V_T+4}, s[{S_B1}:{S_B1+3}], s{S_TMP} offen offset:{32*fb}", "b1")
    early_pf(("w1", "wq", "w2"))

fstamp()
a(f"v_pk_add_f32 {vr(VAR,2)}, {vr(VAR,2)}, {vr(VAR+2,2)}")
a(f"v_pk_add_f32 {vr(VAR+4,2)}, {vr(VAR+4,2)}, {vr(VAR+6,2)}")
a(f"v_pk_add_f32 {vr(VAR,2)}, {vr(VAR,2)}, {vr(VAR+4,2)}")
a(f"v_add_f32 v{VAR}, v{VAR}, v{VAR+1}")
xlane("v_add_f32", VAR, VAR+1)
a(f"v_sub_f32 v{VAR+2}, v{VMEAN}, v{VMB}")
a(f"v_mul_f32 v{VAR+2}, v{VAR+2}, v{VAR+2}")
a(f"v_mov_b32 v{VAR+3}, {f32(1.0/448)}")
a(f"v_fma_f32 v{VAR}, v{VAR}, v{VAR+3}, -v{VAR+2}")
a(f"v_max_f32 v{VAR}, 0, v{VAR}")
a(f"v_mov_b32 v{VAR+4}, v{VAR}")
round_bf16(VAR+4, VAR+1)
a(f"v_add_f32 v{VAR+4}, {f32(1e-5)}, v{VAR+4}")
round_bf16(VAR+4, VAR+1)
a(f"v_sqrt_f32 v{VAR+4}, v{VAR+4}"); a("s_nop 0")
round_bf16(VAR+4, VAR+1)
a(f"v_rcp_f32 v{VAR+5}, v{VAR+4}"); a("s_nop 0")
fstamp()
CQ = math.log2(math.e) / 16
a(f"v_mul_f32 v{VAR+2}, {f32(CQ)}, v{VAR+5}")
a(f"v_mov_b32 v{VAR+3}, v{VAR+2}")
for ks in range(14):
    for i in range(4*ks, 4*ks+4):
        a(f"v_pk_mul_f32 {vr(XF+2*i,2)}, {vr(XF+2*i,2)}, {vr(VAR+2,2)}")
    for i in range(4*ks, 4*ks+4):
        a(f"v_cvt_pk_bf16_f32 v{XR+i}, v{XF+2*i}, v{XF+2*i+1}")
    lds(f"ds_write_b128 v{V_T+6}, {vr(XR+4*ks,4)} offset:{ks*4096}")
a(f"v_mul_f32 v{VAR+6}, v{VAR+5}, v{VAR+5}")
a(f"v_mul_f32 v{VAR+6}, v{VAR+6}, v{VAR}")
round_bf16(VAR+6, VAR+7)
a(f"v_add_f32 v{VAR+6}, {f32(1e-5)}, v{VAR+6}")
round_bf16(VAR+6, VAR+7)
a(f"v_sqrt_f32 v{VAR+6}, v{VAR+6}"); a("s_nop 0")
round_bf16(VAR+6, VAR+7)
a(f"v_rcp_f32 v{VAR+6}, v{VAR+6}"); a("s_nop 0")
a(f"v_mul_f32 v{VAR+6}, {f32(1.0/CQ)}, v{VAR+6}")
a(f"s_lshl_b32 s{S_TMP}, s{S_W}, 6"); a(f"s_add_u32 s{S_TMP}, s{S_TMP}, {STATS}")
a(f"v_lshlrev_b32 v{V_T+5}, 2, v{VQ_}"); a(f"v_add_u32 v{V_T+5}, s{S_TMP}, v{V_T+5}")
lds(f"ds_write_b32 v{V_T+5}, v{VAR+6}")
a(f"v_lshlrev_b32 v{V_T+6}, 4, v{V_LANE}"); a(f"v_add_u32 v{V_T+6}, {XCL}, v{V_T+6}")
a(f"v_lshlrev_b32 v{V_T+7}, 2, v{VQ_}"); a(f"v_add_u32 v{V_T+7}, {STATS}, v{V_T+7}")
a(f"s_lshl_b32 s{S_TMP}, s{S_W}, 7")
a(f"v_lshl_add_u32 v{V_AA[0]}, v{V_CC}, 3, v{V_ROWP}")
a(f"v_add_u32 v{V_AA[0]}, s{S_TMP}, v{V_AA[0]}")
a(f"v_add_u32 v{V_AA[1]}, {2*PS}, v{V_AA[0]}")
a(f"s_cmp_lg_u32 s{S_W}, 0"); a("s_cbranch_scc1 L_nonce2")
a("s_waitcnt vmcnt(0)") if False else None
vm_n = vm.count(("st", 0))
a(f"s_waitcnt vmcnt({min(63, len(vm.ops) - [i for i, t in enumerate(vm.ops) if t == ('st', 0)][0])})")
a(f"v_readfirstlane_b32 s{S_TMP}, v96")
a(f"s_cmp_eq_u32 s{S_TMP}, 0"); a(f"s_cselect_b32 s{S_NONCE}, s{S_NONCE}, s{S_TMP}")
a(f"v_mov_b32 v97, s{S_NONCE}"); a(f"v_mov_b32 v98, {STATS + 512}")
a("ds_write_b32 v98, v97")
a.label("L_nonce2")
fstamp()
lg.wait_all()
a("s_barrier")
fstamp()
a(f"v_mov_b32 v98, {STATS + 512}")
lds("ds_read_b32 v97, v98", "nn")
for f in range(56):
    lds(f"ds_read_b128 {ar(4*f,4)}, v{V_T+6} offset:{f*1024}", "xc")
    if f % 12 == 11: a("s_waitcnt lgkmcnt(4)"); lg.ops = lg.ops[-4:]
for qb in range(4): lds(f"ds_read_b32 v{V_SC+2*qb+1}, v{V_T+7} offset:{qb*64}", "sc")
lg.wait_all()
a(f"v_readfirstlane_b32 s{S_NONCE}, v97")
fstamp()
vm.wait(("st", 1))
fstamp()
a("s_barrier")
dump_regs("xc", "a", 0, 224)
stamp(OPT["fine"] not in (2, 3))
emit_units(stage_dma(2), ("st", 2))
emit_units(stage_dma(3), ("st", 3))
if OPT["pfpos"] in (1, 2, 3, 4): early_pf(("k0", "v0"))

RING_A = ("a", 236); RING_V = ("v", V_F)
xcf = lambda ks, qb: ar((ks * 4 + qb) * 4, 4)
H1 = 0; HP = 64; QA = 96; GA = 112
h1acc = lambda fb, qb: vr(H1 + (fb * 4 + qb) * 4, 4)
qacc = lambda db, qb: vr(QA + (db * 4 + qb) * 4, 4)
hfrag = lambda ks, qb: ar((ks * 4 + qb) * 4, 4)
g2acc = lambda nb, qb: ar(GA + (nb * 4 + qb) * 4, 4)
VQA = [V_DW1 - 0, 0]
VQA = [V_KA, V_VA]
a(f"s_mul_i32 s{S_TMP}, s{S_A}, {BLK}"); a(f"s_lshl_b32 s{S_TMP+1}, s{S_C}, 8"); a(f"s_add_u32 s{S_TMP}, s{S_TMP}, s{S_TMP+1}")
a(f"v_lshl_add_u32 v{VQA[0]}, v{V_CC}, {4 if not OPT['x_nat'] else 3}, v{V_ROWP}")
a(f"v_add_u32 v{VQA[0]}, s{S_TMP}, v{VQA[0]}")
a(f"v_add_u32 v{VQA[1]}, {2*PS}, v{VQA[0]}")

def att_reads(p, f):
    if f < 16:
        kb, x = f // 8, f % 8
        return [f"ds_read_b128 {{r}}, v{V_KA if x < 4 else V_KA2} offset:{((p + 1) % 2) * PS + kb*512 + x*64}"]
    return trd(V_VA, (p % 2) * PS + (f - 16) * 32)
g1 = gemm_groups("G1", 7, 0, h1acc, xcf, RING_A, V_AA, "st", first_top=False)
qp = gemm_groups("QP", 14, 7, qacc, xcf, RING_A, VQA, "st")
g2 = gemm_groups("G2", 7, 21, g2acc, hfrag, RING_A, V_AA, "st")
allg = g1 + qp + g2
POSTA = [(att_reads(-1, i), RING_V) for i in range(LA)]
allgaps = prep_groups(allg, post=POSTA)
gemm_dma(allg, allgaps, stage_dma, "st", skip=(3,))
fq = allgaps[4*56:4*168]; fg = allgaps[4*168:]

C1 = 2 * math.sqrt(2 / math.pi) * math.log2(math.e); C2 = C1 * 0.044715
def gelu_stream():
    st = [f"s_mov_b32 s{S_X1}, {f32(-C2)}", f"v_mov_b32 v{V_T+7}, {f32(-C1)}", I_wvm("b1")]
    for fb in range(4):
        st += [f"v_accvgpr_read_b32 v{V_T}, a{A_BIAS+2*fb}", f"v_accvgpr_read_b32 v{V_T+1}, a{A_BIAS+2*fb+1}", "s_nop 0",
               f"v_lshlrev_b32 v{V_B4}, 16, v{V_T}", f"v_and_b32 v{V_B4+1}, 0xffff0000, v{V_T}",
               f"v_lshlrev_b32 v{V_B4+2}, 16, v{V_T+1}", f"v_and_b32 v{V_B4+3}, 0xffff0000, v{V_T+1}"]
        for qb in range(4):
            base = H1 + (fb * 4 + qb) * 4
            st += [f"v_fma_f32 v{base+r}, v{base+r}, v{V_SC+2*qb+1}, v{V_B4+r}" for r in range(4)]
            st += [f"v_mul_f32 v{V_T+r}, v{base+r}, v{base+r}" for r in range(4)]
            st += [f"v_fma_f32 v{V_T+r}, v{V_T+r}, s{S_X1}, v{V_T+7}" for r in range(4)]
            st += [f"v_mul_f32 v{V_T+r}, v{V_T+r}, v{base+r}" for r in range(4)]
            st += [f"v_exp_f32 v{V_T+r}, v{V_T+r}" for r in range(4)]
            st += [f"v_add_f32 v{V_T+r}, 1.0, v{V_T+r}" for r in range(4)]
            st += [f"v_rcp_f32 v{V_T+r}, v{V_T+r}" for r in range(4)]
            st += [f"v_mul_f32 v{base+r}, v{base+r}, v{V_T+r}" for r in range(4)]
            hp = HP + ((fb // 2) * 4 + qb) * 4 + (fb % 2) * 2
            st += [f"v_cvt_pk_bf16_f32 v{hp}, v{base}, v{base+1}", f"v_cvt_pk_bf16_f32 v{hp+1}, v{base+2}, v{base+3}"]
    st += [f"s_lshl_b32 s{S_X1}, s{S_W}, 1", f"s_add_u32 s{S_X2}, s{S_X1}, 1", f"s_min_u32 s{S_X2}, s{S_X2}, 6",
           f"s_lshl_b32 s{S_X1}, s{S_X1}, 12", f"s_lshl_b32 s{S_X2}, s{S_X2}, 12",
           f"v_lshlrev_b32 v{V_T+6}, 4, v{V_LANE}", f"v_add_u32 v{V_T+6}, {HL}, v{V_T+6}",
           f"v_add_u32 v{V_T+5}, s{S_X2}, v{V_T+6}", f"v_add_u32 v{V_T+4}, s{S_X1}, v{V_T+6}"]
    st += [I_lds(f"ds_write_b128 v{V_T+5}, {vr(HP+16+4*qb,4)} offset:{qb*1024}", "hw") for qb in range(4)]
    st += [I_lds(f"ds_write_b128 v{V_T+4}, {vr(HP+4*qb,4)} offset:{qb*1024}", "hw") for qb in range(4)]
    st += [I_wlg("hw")]
    return st
GE = OPT["gelu_end"]
_gs = gelu_stream()
if OPT["x_g"] == 1: _gs = [x for x in _gs if not (isinstance(x, str) and x.startswith(("v_fma", "v_mul", "v_exp", "v_add_f32", "v_rcp", "v_cvt")))]
if OPT["x_g"] == 2: _gs = [x.replace("v_exp_f32", "v_mov_b32").replace("v_rcp_f32", "v_mov_b32") if isinstance(x, str) else x for x in _gs]
if OPT["x_g"] == 3: _gs = [x for x in _gs if not (isinstance(x, str) and x.startswith(("v_exp", "v_rcp")))]
place_stream(fq, _gs, 4*2, 4*(8*GE) - 1)
st = [f"s_mul_i32 s{S_X1}, s{S_A}, {BLK}", f"s_mul_i32 s{S_X2}, s{S_C}, 224", f"s_add_u32 s{S_X1}, s{S_X1}, s{S_X2}",
      f"v_lshl_add_u32 v{V_AA[0]}, v{V_CC}, 3, v{V_ROWP}", f"v_add_u32 v{V_AA[0]}, s{S_X1}, v{V_AA[0]}", f"v_add_u32 v{V_AA[1]}, {2*PS}, v{V_AA[0]}"]
st += [I_lds(f"ds_read_b128 {ar(4*f,4)}, v{V_T+6} offset:{f*1024}", "hr") for f in range(28)] + [I_wlg("hr")]
place_stream(fq, st, 4*(8*(GE+1)), 4*(8*14) - 5)

def q_frag(f):
    x, qb = f // 4, f % 4
    b0 = QA + ((2 * x) * 4 + qb) * 4; b1_ = QA + ((2 * x + 1) * 4 + qb) * 4
    st = []
    t = 4 * f
    st += [f"v_cvt_pk_bf16_f32 v{t}, v{b0}, v{b0+1}", f"v_cvt_pk_bf16_f32 v{t+1}, v{b0+2}, v{b0+3}",
           f"v_cvt_pk_bf16_f32 v{t+2}, v{b1_}, v{b1_+1}", f"v_cvt_pk_bf16_f32 v{t+3}, v{b1_+2}, v{b1_+3}"]
    return st
UQW, UQR = V_T + 5, V_T + 4
def q_write(fs, tag): return [I_lds(f"ds_write_b128 v{UQW}, {vr(4*f,4)} offset:{(f - fs[0])*1024}", tag) for f in fs] + [I_wlg(tag)]
def q_read(fs, tag): return [I_lds(f"ds_read_b128 {vr(64+4*f,4)}, v{UQR} offset:{(f - fs[0])*1024}", tag) for f in fs] + [I_wlg(tag)]
R1, R2, R3 = list(range(0, 7)), list(range(7, 14)), [14, 15]
SG = lambda s: 4 * 7 * (s - 21)
st = [f"s_mul_i32 s{S_X1}, s{S_W}, 7168", f"s_xor_b32 s{S_X2}, s{S_W}, 1", f"s_mul_i32 s{S_X2}, s{S_X2}, 7168",
      f"v_lshlrev_b32 v{V_T+6}, 4, v{V_LANE}", f"v_add_u32 v{V_T+6}, {XREG}, v{V_T+6}",
      f"v_add_u32 v{UQW}, s{S_X1}, v{V_T+6}", f"v_add_u32 v{UQR}, s{S_X2}, v{V_T+6}"]
for f in R1: st += q_frag(f)
st += q_write(R1, "qw1")
place_stream(fg, st, SG(21) + 6, SG(22) - 1)
st = q_read(R1, "qr1")
for f in R2[:4]: st += q_frag(f)
place_stream(fg, st, SG(22) + 1, SG(23) - 1)
st = []
for f in R2[4:]: st += q_frag(f)
st += q_write(R2, "qw2")
place_stream(fg, st, SG(23) + 1, SG(24) - 1)
st = q_read(R2, "qr2")
for f in R3: st += q_frag(f)
place_stream(fg, st, SG(24) + 1, SG(25) - 1)
place_stream(fg, q_write(R3, "qw3"), SG(25) + 1, SG(26) - 1)
place_stream(fg, q_read(R3, "qr3"), SG(26) + 1, SG(26) + 12)
st = [f"v_and_b32 v{V_T}, 15, v{V_LANE}", f"v_lshrrev_b32 v{V_T+1}, 4, v{V_LANE}",
      f"s_mul_i32 s{S_X1}, s{S_C}, {BLK}", f"s_lshl_b32 s{S_X2}, s{S_C}, 8",
      f"v_mul_u32_u24 v{V_KA}, {UNIT}, v{V_T}", f"v_lshl_add_u32 v{V_KA}, v{V_T+1}, 4, v{V_KA}",
      f"v_add_u32 v{V_KA}, s{S_X1}, v{V_KA}",
      f"v_subrev_u32 v{V_KA2}, s{S_X2}, v{V_KA}", f"v_add_u32 v{V_KA}, s{S_X2}, v{V_KA}",
      f"v_lshl_add_u32 v{V_VA}, v{V_CC}, 3, v{V_ROWP}", f"v_add_u32 v{V_VA}, s{S_X1}, v{V_VA}", f"v_add_u32 v{V_VA}, {2*PS}, v{V_VA}"]
st += [f"v_mov_b32 v{V_NEG+i}, 0" for i in range(16)]
def _pfs():
    a(f"s_cmp_eq_u32 s{S_C}, 0")
    a(f"s_cselect_b32 s{S_B1}, s{S_K}, s{S_V}"); a(f"s_cselect_b32 s{S_B1+1}, s{S_K+1}, s{S_V+1}")
    a(f"s_mov_b32 s{S_B1+2}, 0x100000")
    a(f"s_mov_b32 s{S_TMP+3}, {(PFD-1)*0x8000}")
    a(f"s_mov_b32 s{S_W2}, s96"); a(f"s_mov_b32 s{S_W2+1}, s97"); a(f"s_mov_b32 s{S_W2+2}, 256")
    a(f"s_lshl_b32 s{S_X1}, s{S_T}, 10"); a(f"s_lshl_b32 s{S_X2}, s{S_A}, 9"); a(f"s_add_u32 s{S_X1}, s{S_X1}, s{S_X2}")
    a(f"v_lshlrev_b32 v226, 7, v{V_LANE}"); a(f"v_add_u32 v226, s{S_X1}, v226")
    a(f"v_cmp_lt_u32 vcc, 3, v{V_LANE}"); a(f"v_mov_b32 v227, 0x40000000"); a("s_nop 1")
    a(f"v_cndmask_b32 v226, v226, v227, vcc")
st += [It(8, _pfs, "v")]
place_stream(fg, st, SG(26) + 13, SG(28) - 1)

emit_groups(allg[:56], post=[(g["reads"], g["ring"]) for g in allg[56:59]])
stamp()
emit_groups(allg[56:168], pre_issued=LA, post=[(g["reads"], g["ring"]) for g in allg[168:171]])
dump_regs("hp", "v", HP, 32)
stamp()
if OPT["prefetch"] and OPT["kvpf"] == 2:
    for kind in ("k", "v"): prefetch(kind, GR)
emit_groups(allg[168:], pre_issued=LA, post=POSTA)
stamp()

def att_mf(p, f, czero=False):
    out = []
    for qb in range(4):
        if f < 16:
            kb, x = f // 8, f % 8
            S = V_S + (kb * 4 + qb) * 4
            out.append(mf16(vr(S, 4), vr(V_Q + (x * 4 + qb) * 4, 4), vr(V_NEG + 4 * qb, 4) if x == 0 else vr(S, 4)))
        else:
            o = ar(((f - 16) * 4 + qb) * 4, 4)
            out.append(mf16(o, vr(V_P + (p % 2) * 16 + 4 * qb, 4), "0" if czero else o))
    return out
def sm_stream(p, kb):
    st = []
    Pb = V_P + ((p + 1) % 2) * 16
    lo = V_L + (p % 2) * 4; ln = V_L + ((p + 1) % 2) * 4
    items = [(qb, r) for qb in range(4) for r in range(4)]
    n = len(items)
    T = lambda k: V_T + (k % 8)
    for k in range(n + 3):
        if k < n:
            qb, r = items[k]
            st.append(f"v_exp_f32 v{T(k)}, v{V_S + (kb*4+qb)*4 + r}")
        if 1 <= k <= n:
            qb, r = items[k - 1]
            src = lo + qb if (kb == 0 and r == 0) else ln + qb
            st.append(f"v_add_f32 v{ln + qb}, v{T(k-1)}, v{src}")
        if k >= 3 and (k - 3) % 2 == 0 and (k - 2) < n:
            j = k - 3
            qb, r = items[j]
            st.append(f"v_cvt_pk_bf16_f32 v{Pb + qb*4 + kb*2 + r//2}, v{T(j)}, v{T(j+1)}")
    return st
def rescale(p, first):
    lo = V_L + (p % 2) * 4
    a("s_nop 7"); a("s_nop 3")
    MX = V_T
    for qb in range(4):
        b0 = V_S + qb * 4; b1_ = V_S + (4 + qb) * 4
        a(f"v_max3_f32 v{MX+qb}, v{b0}, v{b0+1}, v{b0+2}")
    for qb in range(4):
        b0 = V_S + qb * 4; b1_ = V_S + (4 + qb) * 4
        a(f"v_max3_f32 v{MX+qb}, v{MX+qb}, v{b0+3}, v{b1_}")
    for qb in range(4):
        b0 = V_S + qb * 4; b1_ = V_S + (4 + qb) * 4
        a(f"v_max3_f32 v{MX+qb}, v{MX+qb}, v{b1_+1}, v{b1_+2}")
    for qb in range(4):
        b1_ = V_S + (4 + qb) * 4
        a(f"v_max_f32 v{MX+qb}, v{MX+qb}, v{b1_+3}")
    a("s_nop 0")
    xlane4("v_max_f32", [MX + q for q in range(4)], [V_T + 4 + q for q in range(4)])
    if not first:
        for qb in range(4): a(f"v_max_f32 v{MX+qb}, 0, v{MX+qb}")
    for qb in range(4):
        for kb in range(2):
            for r in range(4):
                a(f"v_sub_f32 v{V_S+(kb*4+qb)*4+r}, v{V_S+(kb*4+qb)*4+r}, v{MX+qb}")
        for r in range(4):
            a(f"v_sub_f32 v{V_NEG+qb*4+r}, v{V_NEG+qb*4+r}, v{MX+qb}")
    if not first:
        for qb in range(4): a(f"v_exp_f32 v{MX+qb}, -v{MX+qb}")
        a("s_nop 0")
        for qb in range(4): a(f"v_mul_f32 v{lo+qb}, v{lo+qb}, v{MX+qb}")
        for d in range(16):
            for qb in range(4):
                for r in range(4): a(f"v_accvgpr_read_b32 v{V_T+4+r}, a{(d*4+qb)*4+r}")
                a("s_nop 0")
                for r in range(4): a(f"v_mul_f32 v{V_T+4+r}, v{V_T+4+r}, v{MX+qb}")
                for r in range(4): a(f"v_accvgpr_write_b32 a{(d*4+qb)*4+r}, v{V_T+4+r}")
    for kb in range(2):
        st = sm_stream(p, kb)
        for i, x in enumerate(st):
            a(x)
            if x.startswith("v_exp") and i + 1 < len(st) and not st[i+1].startswith("v_exp"):
                dst = x.split()[1].rstrip(",")
                if dst in st[i+1]: a("s_nop 0")
    a("s_nop 1")
slow = []
V_PFO, V_PFD = 226, 227
S_PFS = S_B1; S_PFO = S_TMP + 3
def sm_place(gaps, p, g_s0, g_s1, g_end):
    Pb = V_P + ((p + 1) % 2) * 16
    lo = V_L + (p % 2) * 4; ln = V_L + ((p + 1) % 2) * 4
    items = [(kb, qb, r) for kb in range(2) for qb in range(4) for r in range(4)]
    NT = 8
    T = lambda k: V_T + (k % NT)
    E = [f"v_exp_f32 v{T(k)}, v{V_S + (kb*4+qb)*4 + r}" for k, (kb, qb, r) in enumerate(items)]
    A = []
    for k, (kb, qb, r) in enumerate(items):
        src = lo + qb if (kb == 0 and r == 0) else ln + qb
        A.append(f"v_add_f32 v{ln + qb}, v{T(k)}, v{src}")
    C = [f"v_cvt_pk_bf16_f32 v{Pb + items[2*j][1]*4 + items[2*j][0]*2 + items[2*j][2]//2}, v{T(2*j)}, v{T(2*j+1)}" for j in range(16)]
    e = a_ = c = 0
    egap = {}
    for g in range(g_s0, g_end + 1):
        G = gaps[g]
        while G.cap >= 4:
            ra = a_ < 32 and a_ < e and egap[a_] < g
            rc = c < 16 and 2*c + 1 < e and egap[2*c+1] < g
            can_e = e < 32 and G.cap >= 8 and not G.v and (e < 16 or g >= g_s1) and (e < NT or (a_ > e - NT and c > (e - NT) // 2))
            pending = (e - a_) + (e // 2 - c)
            remaining_gaps = g_end - g
            if can_e and (pending < 5 or not (ra or rc)):
                G.add(E[e]); egap[e] = g; e += 1; break
            elif rc and (c <= a_ // 2 or not ra):
                G.add(C[c]); c += 1
            elif ra:
                G.add(A[a_]); a_ += 1
            elif rc:
                G.add(C[c]); c += 1
            else: break
    assert e == 32 and a_ == 32 and c == 16, (e, a_, c)

def period(p, qk=True, pv=True, sm=True, dK=None, dV=None, wait30="s_waitcnt vmcnt(1)", post=None, lab="", pre_issued=LA,
           czero=False, extra=None, top0=None, dtag=None, pf=False, nobar=False, midbar=None, postbar=None):
    fl = [f for f in range(32) if (f < 16 and qk) or (f >= 16 and pv)]
    n = len(fl)
    groups = [dict(reads=att_reads(p, f), mf=att_mf(p, f, czero), top=[], ring=RING_V) for f in fl]
    if top0: groups[0]["top"] = top0
    delay = {}
    inloop = lab in ("A", "B")
    if not nobar:
        groups[n - 2]["top"] = [wait30, "s_waitcnt lgkmcnt(0)", lambda: lg.ops.clear(), "s_barrier"]
        if inloop and OPT["x_nobar"] == 1: groups[n - 2]["top"] = ["s_waitcnt lgkmcnt(0)", lambda: lg.ops.clear()]
        if inloop and OPT["x_nobar"] == 2: groups[n - 2]["top"] = ["s_waitcnt lgkmcnt(0)", lambda: lg.ops.clear(), "s_barrier"]
        if postbar: groups[n - 2]["top"] = groups[n - 2]["top"] + [postbar]
        delay = {n: n - 2}
    if inloop and OPT["x_nodma"]: dK = dV = None
    if inloop and OPT["x_nopf"]: pf = False
    if inloop and OPT["x_nosm"]: sm = False
    if midbar is not None: groups[midbar]["top"] = groups[midbar]["top"] + ["s_barrier"]
    gaps = prep_groups(groups, pre_issued, post, delay)
    units = (dK or []) + (dV or [])
    if units: place_units(gaps, OPT["d0"], units, dtag, min(OPT["dstep"], (4 * n - 12) // len(units)))
    if pf:
        ins = f"buffer_load_dword v{V_PFD}, v{V_PFO}, s[{S_PFS}:{S_PFS+3}], s{S_PFO} offen"
        pos = min(4 * (n - 4), OPT["d0"] + 16 * OPT["dstep"] + 2)
        place_units(gaps, pos, [([f"s_add_u32 s{S_PFO}, s{S_PFO}, 0x8000"], ins)], "pf" if dtag else None, 1)
    if sm:
        sm_place(gaps, p, OPT["sm0a"], OPT["sm1a"], OPT["smend"])
        ln = V_L + ((p + 1) % 2) * 4
        tail = [f"v_max3_f32 v{V_T}, v{ln}, v{ln+1}, v{ln+2}", f"v_max_f32 v{V_T}, v{V_T}, v{ln+3}", f"v_cmp_lt_f32 vcc, s{S_THR}, v{V_T}"]
        for k, x in enumerate(tail): gaps[OPT["smend"] + 1 + k].add(x)
    if extra:
        for st, f0, f1 in extra: place_stream(gaps, st, f0, f1)
    emit_groups(groups, pre_issued=pre_issued, post=post, delay=delay)
    if sm:
        a(f"s_cbranch_vccnz L_slow{lab}")
        a.label(f"L_ret{lab}")
        slow.append((p, lab))
PR = lambda p, base=0: [(att_reads(p, base + i), RING_V) for i in range(LA)]

def store_stream(accreg, is_agpr, wsoff, tag, sreg, flags=""):
    st = [f"v_lshlrev_b32 v{V_T+6}, 4, v{V_LANE}",
          f"s_lshl_b32 s{sreg}, s{S_J}, 5", f"s_add_u32 s{sreg}, s{sreg}, s{S_T}",
          f"s_lshl_b32 s{sreg}, s{sreg}, 2", f"s_add_u32 s{sreg}, s{sreg}, s{S_W}",
          f"s_mul_i32 s{sreg}, s{sreg}, 14336", f"s_add_u32 s{sreg}, s{sreg}, {wsoff}"]
    return st
def store_body(accreg, is_agpr, tag, sreg, stage_regs, tmp, flags=""):
    st = []
    for s in range(14):
        nb, qp_ = s // 2, s % 2
        t = stage_regs + 4 * (s % 2)
        for hh in range(2):
            base = accreg + (nb * 4 + 2 * qp_ + hh) * 4
            if is_agpr:
                st += [f"v_accvgpr_read_b32 v{tmp+r}, a{base+r}" for r in range(4)] + ["s_nop 0"]
                src = tmp
            else: src = base
            st += [f"v_cvt_pk_bf16_f32 v{t+2*hh}, v{src}, v{src+1}", f"v_cvt_pk_bf16_f32 v{t+2*hh+1}, v{src+2}, v{src+3}"]
        st += [I_vm(f"buffer_store_dwordx4 {vr(t,4)}, v{V_T+6}, s[{S_WS}:{S_WS+3}], s{sreg} offen{flags}", tag), f"s_add_u32 s{sreg}, s{sreg}, 1024"]
    return st

top0 = [lambda: vm.wait(("st", 29)), "s_barrier"]
period(-1, qk=True, pv=False, sm=False, wait30=(lambda: vm.wait(("st", 30))), post=PR(0), top0=top0, dtag="kk")
for i in range(8): a(f"v_mov_b32 v{V_L+i}, 0")
n0 = len(a.lines)
rescale(-1, True)
rs = [l.strip() for l in a.lines[n0:]]; del a.lines[n0:]
def mp_items():
    VA = 252; TM = 228; sreg = S_X1
    st = [f"v_lshlrev_b32 v{VA}, 4, v{V_LANE}",
          f"s_lshl_b32 s{sreg}, s{S_J}, 5", f"s_add_u32 s{sreg}, s{sreg}, s{S_T}",
          f"s_lshl_b32 s{sreg}, s{sreg}, 2", f"s_add_u32 s{sreg}, s{sreg}, s{S_W}",
          f"s_mul_i32 s{sreg}, s{sreg}, 14336", f"s_add_u32 s{sreg}, s{sreg}, {MP_OFF}"]
    fl = ["", " sc1", " nt", " sc0 sc1"][OPT["mpf"]]
    for s_ in range(14):
        nb, qp_ = s_ // 2, s_ % 2
        t = V_P + 16 + 4 * (s_ % 2)
        for hh in range(2):
            base = GA + (nb * 4 + 2 * qp_ + hh) * 4
            st += [f"v_accvgpr_read_b32 v{TM+r}, a{base+r}" for r in range(4)]
            st += [f"v_cvt_pk_bf16_f32 v{t+2*hh}, v{TM}, v{TM+1}", f"v_cvt_pk_bf16_f32 v{t+2*hh+1}, v{TM+2}, v{TM+3}"]
        if OPT["x_b"] == 1: st += ["s_nop 3"]
        st += [I_vm(f"buffer_store_dwordx4 {vr(t,4)}, v{VA}, s[{S_WS}:{S_WS+3}], s{sreg} offen{fl}", "mp"), f"s_add_u32 s{sreg}, s{sreg}, 1024"]
        if OPT["x_b"] == 2: st += ["s_nop 3"]
    return st
mp = mp_items()
units = dma_kv("K", 0) + dma_kv("V", 3)
per = max(1, len(rs) // 17)
ui = 0
for k, x in enumerate(rs):
    if k % per == per - 1 and ui < len(units) and not x.startswith("s_nop"):
        sal, d = units[ui]; ui += 1
        for y in sal: a(y)
        a(x); vmem(d, "kv0")
    else:
        a(x)
while ui < len(units):
    sal, d = units[ui]; ui += 1
    for y in sal: a(y)
    a("s_nop 0"); vmem(d, "kv0")
for x in mp: do(x)
if OPT["x_b"] == 3: a("s_waitcnt vmcnt(0)")
if OPT["prefetch"]: prefetch("wo", GR)
dump_regs("q", "v", V_Q, 128)
stamp()
PFL = OPT["kvpf"] == 3
W30 = "s_waitcnt vmcnt(1)" if PFL else "s_waitcnt vmcnt(0)"
S_DBG = S_W2
def mp_signal():
    a(f"s_cmp_lg_u32 s{S_W}, 0"); a("s_cbranch_scc1 L_mpsig")
    a(f"s_lshl_b32 s{S_X1}, s{S_T}, 8"); a(f"s_lshl_b32 s{S_X2}, s{S_J}, 2"); a(f"s_add_u32 s{S_X1}, s{S_X1}, s{S_X2}"); a(f"s_add_u32 s{S_X1}, s{S_X1}, {FLG_OFF}")
    a("s_mov_b64 exec, 1")
    a(f"v_mov_b32 v228, s{S_NONCE}"); a("v_mov_b32 v229, 0")
    a(f"buffer_store_dword v228, v229, s[{S_WS}:{S_WS+3}], s{S_X1} offen sc1")
    a("s_mov_b64 exec, -1")
    a.label("L_mpsig")
period(0, post=PR(1), lab="Z", czero=True, wait30=(lambda: vm.wait("kv0")), pf=PFL, dtag="pf0")
vm.ops = []
a(f"s_mov_b32 s{S_CNT}, 14")
a(".p2align 6")
a.label("L_loop")
sv = list(lg.ops)
period(1, dK=dma_kv("K", 1), dV=dma_kv("V", 2), post=PR(2), lab="A", pf=PFL, wait30=W30)
period(2, dK=dma_kv("K", 0), dV=dma_kv("V", 3), post=PR(3), lab="B", pf=PFL, wait30=W30)
assert len(lg.ops) == len(sv), (lg.ops, sv)
a(f"s_sub_u32 s{S_CNT}, s{S_CNT}, 1")
a(f"s_cmp_lg_u32 s{S_CNT}, 0")
a("s_cbranch_scc1 L_loop")
stamp()
mp_signal()
V_DWW = V_SC + 1
dma_voffsets("w")
op_dma = lambda s: dma_stage("OP", s, s % 4) if s < 16 else None
period(1, dK=dma_kv("K", 1), dV=dma_kv("V", 2), post=PR(2), lab="C", wait30="s_waitcnt vmcnt(0)")
period(2, dK=op_dma(0), dV=dma_kv("V", 3), post=PR(3, 16), lab="D", wait30="s_waitcnt vmcnt(0)")
vm.ops = []
LF = V_L + 4 * ((30 + 1) % 2)
SCL = 16; SCP = 24
VA1, VA2, VMGW, VMGR, VL16 = 28, 29, 30, 31, 228
def stats_a():
    st = []
    vs = [LF + q for q in range(4)]; ts = [q for q in range(4)]
    for sw in ("v_permlane16_swap_b32", "v_permlane32_swap_b32"):
        st += [f"v_mov_b32 v{t}, v{v}" for v, t in zip(vs, ts)]
        st += [f"{sw} v{v}, v{t}" for v, t in zip(vs, ts)]
        st += [f"v_add_f32 v{v}, v{v}, v{t}" for v, t in zip(vs, ts)]
    for qb in range(4):
        st += [f"v_sub_f32 v{2*qb}, 0, v{V_NEG+4*qb}", f"v_mov_b32 v{2*qb+1}, v{LF+qb}"]
    st += [f"v_and_b32 v{VA2}, 15, v{V_LANE}", f"v_lshlrev_b32 v{VA2}, 3, v{VA2}",
           f"s_lshl_b32 s{S_X1}, s{S_W}, 9", f"s_add_u32 s{S_X1}, s{S_X1}, {ML}", f"v_add_u32 v{VA1}, s{S_X1}, v{VA2}",
           f"s_xor_b32 s{S_X1}, s{S_X1}, 512", f"v_add_u32 v{VA2}, s{S_X1}, v{VA2}"]
    st += [I_lds(f"ds_write_b64 v{VA1}, {vr(2*qb,2)} offset:{qb*128}", "mlw") for qb in range(4)]
    st += [I_wlg("mlw")]
    return st
def stats_b():
    st = [I_lds(f"ds_read_b64 {vr(8+2*qb,2)}, v{VA2} offset:{qb*128}", "mlr") for qb in range(4)]
    st += [f"v_lshlrev_b32 v{VL16}, 4, v{V_LANE}",
           f"s_lshl_b32 s{S_X1}, s{S_W}, 14", f"s_add_u32 s{S_X1}, s{S_X1}, {2*PS}", f"v_add_u32 v{VMGW}, s{S_X1}, v{VL16}",
           f"s_xor_b32 s{S_X2}, s{S_W}, 1", f"s_lshl_b32 s{S_X2}, s{S_X2}, 14", f"s_add_u32 s{S_X2}, s{S_X2}, {2*PS}", f"v_add_u32 v{VMGR}, s{S_X2}, v{VL16}"]
    st += [I_wlg("mlr")]
    st += [f"v_max_f32 v{20+qb}, v{2*qb}, v{8+2*qb}" for qb in range(4)]
    for qb in range(4): st += [f"v_sub_f32 v{2*qb}, v{2*qb}, v{20+qb}", f"v_sub_f32 v{8+2*qb}, v{8+2*qb}, v{20+qb}"]
    for qb in range(4): st += [f"v_exp_f32 v{2*qb}, v{2*qb}", f"v_exp_f32 v{8+2*qb}, v{8+2*qb}"]
    st += [f"v_mul_f32 v{2*qb+1}, v{2*qb+1}, v{2*qb}" for qb in range(4)]
    st += [f"v_fma_f32 v{2*qb+1}, v{9+2*qb}, v{8+2*qb}, v{2*qb+1}" for qb in range(4)]
    st += [f"v_rcp_f32 v{2*qb+1}, v{2*qb+1}" for qb in range(4)]
    st += [f"v_mul_f32 v{SCL+qb}, v{2*qb}, v{2*qb+1}" for qb in range(4)]
    st += [f"v_mul_f32 v{SCP+qb}, v{8+2*qb}, v{2*qb+1}" for qb in range(4)]
    return st
assert ML % 1024 == 0
period(1, qk=False, pv=True, sm=False, dK=op_dma(1), dtag=("s3", 1), nobar=True,
       extra=[(stats_a(), 1, 27), (stats_b(), 29, 63)], midbar=7)
stamp()

gstamp()
a("s_nop 7"); a("s_nop 3")
a("s_barrier")
gstamp()
OFR = 32
TS = 96
TK = 160
def bsel(reg):
    if reg % 2 == 0: return vr(reg, 2), "op_sel_hi:[1,0]", "op_sel_hi:[1,0,1]"
    return vr(reg - 1, 2), "op_sel:[0,1]", "op_sel:[0,1,0]"
def merge_variant(c):
    send0 = 8 * (1 - c); keep0 = 8 * c
    for rho in range(2):
        blocks = [(dl, qb) for dl in range(4) for qb in range(4)]
        for k, (dl, qb) in enumerate(blocks):
            sb = ((send0 + 4*rho + dl) * 4 + qb) * 4
            lds(f"ds_write_b128 v{VMGW}, {ar(sb,4)} offset:{k*1024}")
            kb_ = ((keep0 + 4*rho + dl) * 4 + qb) * 4
            t = TS + 4 * k
            for r in range(4): a(f"v_accvgpr_read_b32 v{t+r}, a{kb_+r}")
            pr, s2, s3 = bsel(SCL + qb)
            for r in (0, 2): a(f"v_pk_mul_f32 {vr(t+r,2)}, {vr(t+r,2)}, {pr} {s2}")
        if c == 0: gstamp()
        lg.wait_all()
        a("s_barrier")
        if c == 0: gstamp()
        for k in range(16): lds(f"ds_read_b128 {vr(TK+4*k,4)}, v{VMGR} offset:{k*1024}", ("mr", k // 2))
        for k2 in range(8):
            lg.wait(("mr", k2))
            for k in (2*k2, 2*k2+1):
                dl, qb = blocks[k]
                t = TS + 4 * k; u = TK + 4 * k
                pr, s2, s3 = bsel(SCP + qb)
                for r in (0, 2): a(f"v_pk_fma_f32 {vr(t+r,2)}, {vr(u+r,2)}, {pr}, {vr(t+r,2)} {s3}")
            for k in (2*k2, 2*k2+1):
                dl, qb = blocks[k]
                t = TS + 4 * k
                d = 4 * rho + dl
                o = OFR + ((d // 2) * 4 + qb) * 4 + (d % 2) * 2
                a(f"v_cvt_pk_bf16_f32 v{o}, v{t}, v{t+1}"); a(f"v_cvt_pk_bf16_f32 v{o+1}, v{t+2}, v{t+3}")
        if c == 0: gstamp()
        a("s_barrier")
sv = list(lg.ops)
a(f"s_cmp_eq_u32 s{S_C}, 0")
a("s_cbranch_scc0 L_mv1")
merge_variant(0)
a("s_branch L_mvd")
a.label("L_mv1")
lg.ops = list(sv)
merge_variant(1)
a.label("L_mvd")
for f in range(16): lds(f"ds_write_b128 v{VMGW}, {vr(OFR+4*f,4)} offset:{f*1024}")
a(f"v_add_u32 v{VL16}, {2*PS}, v{VL16}")
rowp_cc()
a(f"v_lshl_add_u32 v{V_AA[0]}, v{V_CC}, 3, v{V_ROWP}")
a(f"s_mul_i32 s{S_TMP}, s{S_A}, {BLK}"); a(f"s_mul_i32 s{S_TMP+1}, s{S_C}, 224"); a(f"s_add_u32 s{S_TMP}, s{S_TMP}, s{S_TMP+1}")
a(f"v_add_u32 v{V_AA[0]}, s{S_TMP}, v{V_AA[0]}")
a(f"v_add_u32 v{V_AA[1]}, {2*PS}, v{V_AA[0]}")
lg.wait_all()
gstamp()
a("s_barrier")
gstamp()
for f in range(64):
    lds(f"ds_read_b128 {ar(4*f,4)}, v{VL16} offset:{f*1024}")
    if f % 12 == 11: a("s_waitcnt lgkmcnt(4)"); lg.ops = lg.ops[-4:]
lg.wait_all()
vm.wait(("s3", 1))
a("s_barrier")
dump_regs("o", "a", 0, 256)
stamp(OPT["fine"] in (0, 2, 3))
emit_units(op_dma(2), ("s3", 2))
emit_units(op_dma(3), ("s3", 3))

ofrag = lambda ks, qb: ar((ks * 4 + qb) * 4, 4)
OA = 0
opacc = lambda nb, qb: vr(OA + (nb * 4 + qb) * 4, 4)
S_OUT = S_W1; S_B2 = S_WQ; S_FL = 8
S_MPOK = S_CNT; S_SH = S_KOFF; S_MASK = S_VOFF
S_PO = [S_BG1, S_BQP]; S_RO = [S_BG2, S_GKV]; S_BO = [S_LDSW, S_PFO]
VMP = 112; VG_G = 176; VXR = 192; VB2 = 200; VLN = 204; VXO = 205; VBO = 206
JS = 32 * PART
uid = [0]
def share_scalars(sh):
    for b in range(2):
        t0, t1, t2 = S_TMP, S_TMP + 1, S_TMP + 2
        a(f"s_mul_i32 s{t0}, s{sh}, 7"); a(f"s_add_u32 s{t0}, s{t0}, s{S_W}")
        if b: a(f"s_add_u32 s{t0}, s{t0}, 4")
        a(f"s_mul_i32 s{S_PO[b]}, s{S_T}, {PART}"); a(f"s_lshl_b32 s{t1}, s{t0}, 10"); a(f"s_add_u32 s{S_PO[b]}, s{S_PO[b]}, s{t1}")
        a(f"s_mul_hi_u32 s{t1}, s{t0}, 0x12492493")
        a(f"s_mul_i32 s{t2}, s{t1}, 14"); a(f"s_sub_u32 s{t2}, s{t0}, s{t2}")
        a(f"s_mul_i32 s{t1}, s{t1}, 112"); a(f"s_lshr_b32 s{t0}, s{t2}, 1"); a(f"s_lshl_b32 s{t0}, s{t0}, 4"); a(f"s_add_u32 s{t1}, s{t1}, s{t0}")
        a(f"s_lshl_b32 s{S_BO[b]}, s{t1}, 1")
        a(f"s_and_b32 s{t2}, s{t2}, 1"); a(f"s_lshl_b32 s{t2}, s{t2}, 5"); a(f"s_lshl_b32 s{t0}, s{S_T}, 6"); a(f"s_add_u32 s{t2}, s{t2}, s{t0}")
        a(f"s_mul_i32 s{t2}, s{t2}, 896"); a(f"s_add_u32 s{S_RO[b]}, s{t2}, s{S_BO[b]}")
        if b:
            a(f"s_cmp_lt_u32 s{S_W}, 3")
            for r_ in (S_PO[b], S_RO[b], S_BO[b]): a(f"s_cselect_b32 s{r_}, s{r_}, 0x40000000")
def load_mp(tag):
    for b in range(2):
        for jj in range(8):
            a(f"s_add_u32 s{S_SO}, s{S_PO[b]}, {MP_OFF + jj*JS}")
            vmem(f"buffer_load_dwordx4 {vr(VMP + (b*8+jj)*4,4)}, v{VLN}, s[{S_WS}:{S_WS+3}], s{S_SO} offen sc1", tag)
    for b in range(2):
        vmem(f"buffer_load_dwordx2 {vr(VXR+4*b,2)}, v{VXO}, s[{S_X}:{S_X+3}], s{S_RO[b]} offen", tag)
        a(f"s_add_u32 s{S_SO}, s{S_RO[b]}, 14336")
        vmem(f"buffer_load_dwordx2 {vr(VXR+4*b+2,2)}, v{VXO}, s[{S_X}:{S_X+3}], s{S_SO} offen", tag)
        vmem(f"buffer_load_dwordx2 {vr(VB2+2*b,2)}, v{VBO}, s[{S_B2}:{S_B2+3}], s{S_BO[b]} offen", tag)
def sum8(dst, src0, T0):
    for jj in range(8):
        for i in range(4):
            r = src0 + 4*jj + i
            if jj == 0:
                a(f"v_lshlrev_b32 v{dst+2*i}, 16, v{r}"); a(f"v_and_b32 v{dst+2*i+1}, 0xffff0000, v{r}")
            else:
                a(f"v_lshlrev_b32 v{T0}, 16, v{r}"); a(f"v_and_b32 v{T0+1}, 0xffff0000, v{r}")
                a(f"v_pk_add_f32 {vr(dst+2*i,2)}, {vr(dst+2*i,2)}, {vr(T0,2)}")
def calc_g():
    a(f"s_mov_b32 s{S_SO}, {f32(-math.log2(math.e))}")
    for b in range(2):
        g = VG_G + 8*b
        sum8(g, VMP + b*32, V_T)
        for i in range(2):
            a(f"v_lshlrev_b32 v{V_T+2+2*i}, 16, v{VB2+2*b+i}"); a(f"v_and_b32 v{V_T+3+2*i}, 0xffff0000, v{VB2+2*b+i}")
        for e in range(8): a(f"v_add_f32 v{g+e}, v{g+e}, v{V_T+2+e%4}")
        E = V_F + 8*b
        for e in range(8): a(f"v_mul_f32 v{E+e}, s{S_SO}, v{g+e}")
        for e in range(8): a(f"v_exp_f32 v{E+e}, v{E+e}")
        for e in range(8): a(f"v_add_f32 v{E+e}, 1.0, v{E+e}")
        for e in range(8): a(f"v_rcp_f32 v{E+e}, v{E+e}")
        a("s_nop 0")
        for e in range(8): a(f"v_mul_f32 v{g+e}, v{g+e}, v{E+e}")
def fin():
    VSP = 0
    for b in range(2):
        for jj in range(8):
            a(f"s_add_u32 s{S_SO}, s{S_PO[b]}, {SP_OFF + jj*JS}")
            a(f"buffer_load_dwordx4 {vr(VSP + (b*8+jj)*4,4)}, v{VLN}, s[{S_WS}:{S_WS+3}], s{S_SO} offen sc1")
    for b in range(2):
        a(f"s_waitcnt vmcnt({8 if b == 0 else 0})")
        sm_ = 64 + 8*b
        sum8(sm_, VSP + b*32, V_T)
        for hh in range(2):
            for i in range(2):
                a(f"v_lshlrev_b32 v{V_T+2}, 16, v{VXR+4*b+2*hh+i}"); a(f"v_and_b32 v{V_T+3}, 0xffff0000, v{VXR+4*b+2*hh+i}")
                e = 4*hh + 2*i
                a(f"v_fma_f32 v{sm_+e}, v{sm_+e}, v{VG_G+8*b+e}, v{V_T+2}"); a(f"v_fma_f32 v{sm_+e+1}, v{sm_+e+1}, v{VG_G+8*b+e+1}, v{V_T+3}")
        o = 80 + 4*b
        for hh in range(2):
            a(f"v_cvt_pk_bf16_f32 v{o+2*hh}, v{sm_+4*hh}, v{sm_+4*hh+1}"); a(f"v_cvt_pk_bf16_f32 v{o+2*hh+1}, v{sm_+4*hh+2}, v{sm_+4*hh+3}")
        a(f"buffer_store_dwordx2 {vr(o,2)}, v{VXO}, s[{S_OUT}:{S_OUT+3}], s{S_RO[b]} offen")
        a(f"s_add_u32 s{S_SO}, s{S_RO[b]}, 14336")
        a(f"buffer_store_dwordx2 {vr(o+2,2)}, v{VXO}, s[{S_OUT}:{S_OUT+3}], s{S_SO} offen")

op = gemm_groups("OP", 16, 0, opacc, ofrag, RING_V, V_AA, "s3", first_top=False)
def op_pre():
    srd(S_OUT, 94, 95, 1835008); srd(S_B2, 92, 93, 896)
    a(f"v_lshlrev_b32 v{VLN}, 4, v{V_LANE}")
    a(f"v_and_b32 v{V_T}, 15, v{V_LANE}"); a(f"v_lshrrev_b32 v{V_T+1}, 4, v{V_LANE}")
    a(f"v_mul_u32_u24 v{VXO}, 896, v{V_T}"); a(f"v_lshl_add_u32 v{VXO}, v{V_T+1}, 3, v{VXO}")
    a(f"v_lshlrev_b32 v{VBO}, 3, v{V_T+1}")
    a(f"s_lshl_b32 s{S_X1}, s{S_T}, 8"); a(f"s_add_u32 s{S_X1}, s{S_X1}, {FLG_OFF}")
    a(f"s_load_dwordx8 s[{S_FL}:{S_FL+7}], s[{S_WSP}:{S_WSP+1}], s{S_X1}")
def op_flag():
    a("s_waitcnt lgkmcnt(0)"); lg.ops.clear()
    a(f"s_mov_b32 s{S_X2}, 0")
    for k in range(8):
        a(f"s_xor_b32 s{S_FL+k}, s{S_FL+k}, s{S_NONCE}"); a(f"s_or_b32 s{S_X2}, s{S_X2}, s{S_FL+k}")
    a(f"s_cmp_eq_u32 s{S_X2}, {0 if not OPT['noearly'] else 99}")
    a(f"s_cselect_b32 s{S_MPOK}, 1, 0")
    share_scalars_x(S_J)
def share_scalars_x(sh):
    share_scalars(sh)
op[7 * 9]["top"].append(op_pre)
op[7 * 12]["top"].append(op_flag)
opgaps = prep_groups(op)
gemm_dma(op, opgaps, op_dma, "s3", skip=(3,))
st = []
for b in range(2):
    for jj in range(8):
        st += [f"s_add_u32 s{S_X2}, s{S_PO[b]}, {MP_OFF + jj*JS}",
               I_vm(f"buffer_load_dwordx4 {vr(VMP + (b*8+jj)*4,4)}, v{VLN}, s[{S_WS}:{S_WS+3}], s{S_X2} offen sc1", "mpl")]
for b in range(2):
    st += [I_vm(f"buffer_load_dwordx2 {vr(VXR+4*b,2)}, v{VXO}, s[{S_X}:{S_X+3}], s{S_RO[b]} offen", "mpl"),
           f"s_add_u32 s{S_X2}, s{S_RO[b]}, 14336",
           I_vm(f"buffer_load_dwordx2 {vr(VXR+4*b+2,2)}, v{VXO}, s[{S_X}:{S_X+3}], s{S_X2} offen", "mpl"),
           I_vm(f"buffer_load_dwordx2 {vr(VB2+2*b,2)}, v{VBO}, s[{S_B2}:{S_B2+3}], s{S_BO[b]} offen", "mpl")]
if OPT["mpin"]: place_stream(opgaps, st, 4 * 7 * 13 + 1, 4 * 7 * 16 - 1)
emit_groups(op)
stamp(); hstamp()
a("s_nop 7"); a("s_nop 1")
for x in store_stream(OA, False, SP_OFF, "sp", S_X1) + store_body(OA, False, "sp", S_X1, V_F, V_T + 4, " sc1"): do(x)
hstamp()
vm.wait("sp")
hstamp()
a("s_barrier")
hstamp()
a(f"s_cmp_lg_u32 s{S_W}, 0"); a("s_cbranch_scc1 L_posted")
a(f"s_lshl_b32 s{S_X1}, s{S_T}, 2")
a(f"s_lshl_b32 s{S_X2}, s{S_T}, 8"); a(f"s_add_u32 s{S_X2}, s{S_X2}, {FLG_OFF + 128}")
a("s_mov_b64 exec, 1")
a(f"s_lshl_b32 s{S_TMP}, s{S_J}, 2"); a(f"v_mov_b32 v2, s{S_TMP}"); a(f"v_mov_b32 v4, s{S_NONCE}")
a(f"buffer_store_dword v4, v2, s[{S_WS}:{S_WS+3}], s{S_X2} offen sc1")
a("v_mov_b32 v0, 1"); a("v_mov_b32 v1, 0")
a(f"buffer_atomic_add v0, v1, s[{S_DBG}:{S_DBG+3}], s{S_X1} offen sc0")
a("s_mov_b64 exec, -1")
a.label("L_posted")
if not OPT["mpin"]:
    load_mp("mpl")
    a("s_waitcnt vmcnt(0)")
calc_g()
hstamp()
a(f"s_cmp_lg_u32 s{S_W}, 0"); a("s_cbranch_scc1 L_sync_done")
a(f"v_lshlrev_b32 v3, 2, v{V_LANE}")
a(f"s_lshl_b32 s{S_MASK}, 1, s{S_J}")
a(f"s_mov_b32 s{S_TMP+2}, {OPT['polls']}")
a("s_mov_b64 exec, 0xff")
a.label("L_poll")
a(f"s_cmp_eq_u32 s{S_TMP+2}, 0"); a("s_cbranch_scc1 L_abandon")
a(f"buffer_load_dword v5, v3, s[{S_WS}:{S_WS+3}], s{S_X2} offen sc1")
a("s_waitcnt vmcnt(0)")
a(f"v_cmp_eq_u32 vcc, s{S_NONCE}, v5")
a("s_nop 4")
a("s_cmp_eq_u64 vcc, 0xff"); a("s_cbranch_scc1 L_polled")
a(f"s_sub_u32 s{S_TMP+2}, s{S_TMP+2}, 1")
a(f"s_sleep {OPT['slp']}")
a("s_branch L_poll")
a.label("L_abandon")
a("s_mov_b64 exec, 1")
a("s_waitcnt vmcnt(0)")
a(f"v_readfirstlane_b32 s{S_TMP}, v0")
a(f"s_and_b32 s{S_TMP}, s{S_TMP}, 0xff")
a(f"s_cmp_eq_u32 s{S_TMP}, 7"); a("s_cbranch_scc1 L_polled")
a(f"s_add_u32 s{S_TMP+1}, s{S_J}, 8"); a(f"s_lshl_b32 s{S_TMP+1}, 1, s{S_TMP+1}")
a(f"v_mov_b32 v6, s{S_TMP+1}")
a(f"buffer_atomic_or v6, v1, s[{S_DBG}:{S_DBG+3}], s{S_X1} offen sc0")
a("s_waitcnt vmcnt(0)")
a(f"v_readfirstlane_b32 s{S_TMP}, v6")
a(f"s_and_b32 s{S_TMP}, s{S_TMP}, 0xff")
a(f"s_cmp_eq_u32 s{S_TMP}, 8")
a(f"s_cselect_b32 s{S_MASK}, s{S_MASK}, 0")
a("s_branch L_decided")
a.label("L_polled")
a("s_mov_b64 exec, 1")
a(f"v_readfirstlane_b32 s{S_TMP}, v0")
a(f"s_and_b32 s{S_TMP+1}, s{S_TMP}, 0xff")
a(f"s_cmp_eq_u32 s{S_TMP+1}, 7"); a("s_cbranch_scc0 L_decided")
a(f"s_bfe_u32 s{S_TMP+1}, s{S_TMP}, 0x80008"); a(f"s_or_b32 s{S_MASK}, s{S_MASK}, s{S_TMP+1}")
a.label("L_decided")
a(f"v_mov_b32 v0, s{S_MASK}"); a(f"v_mov_b32 v1, {XREG}")
a("ds_write_b32 v1, v0")
a("s_waitcnt lgkmcnt(0)")
a("s_mov_b64 exec, -1")
a.label("L_sync_done")
a("s_barrier")
a(f"v_mov_b32 v1, {XREG}")
a("ds_read_b32 v0, v1")
a("s_waitcnt lgkmcnt(0)")
a(f"v_readfirstlane_b32 s{S_MASK}, v0")
hstamp()
a.label("L_shares")
a(f"s_cmp_eq_u32 s{S_MASK}, 0"); a("s_cbranch_scc1 L_fin_done")
a(f"s_ff1_i32_b32 s{S_SH}, s{S_MASK}")
a(f"s_bitset0_b32 s{S_MASK}, s{S_SH}")
a(f"s_cmp_eq_u32 s{S_SH}, s{S_J}"); a(f"s_cselect_b32 s{S_X1}, s{S_MPOK}, 0")
a(f"s_cmp_eq_u32 s{S_X1}, 1"); a("s_cbranch_scc1 L_haveg")
share_scalars(S_SH)
load_mp("mpl2")
a("s_waitcnt vmcnt(0)")
calc_g()
a(f"s_mov_b32 s{S_MPOK}, 0")
a.label("L_haveg")
fin()
a("s_branch L_shares")
a.label("L_fin_done")
hstamp()
vm.ops = []
if OPT["stamps"]:
    a("s_waitcnt vmcnt(0) lgkmcnt(0)")
    stamp(True)
    a("s_waitcnt lgkmcnt(0)")
    a(f"s_cmp_lg_u32 s{S_W}, {OPT['swave']}"); a("s_cbranch_scc1 L_end")
    a(f"s_lshl_b32 s{S_TMP}, s2, 7"); a(f"s_add_u32 s{S_TMP}, s{S_TMP}, {STAMP_OFF}")
    a("v_mov_b32 v20, 0")
    a("v_mov_b32 v0, s98")
    for i in range(15): a(f"v_mov_b32 v{i+1}, s{S_ST+2*min(i, nstamp[0]-1)}")
    for q in range(4): a(f"buffer_store_dwordx4 {vr(4*q,4)}, v20, s[{S_WS}:{S_WS+3}], s{S_TMP} offen offset:{16*q}")
a.label("L_end")
a("s_endpgm")
for p, lab in slow:
    a.label(f"L_slow{lab}")
    rescale(p, False)
    a(f"s_branch L_ret{lab}")
main_text = a.text()

KMAIN = NAME + "_kernel"
src = HEADER_COMMENT
src += f"; @launch grid=(256,1,1) block=(256,1,1) lds={LDS_TOTAL}\n"
src += '.amdgcn_target "amdgcn-amd-amdhsa--gfx950"\n.text\n'
src += kernel_begin(KMAIN) + main_text
src += kernel_desc(KMAIN, 512, 102, 256)
open(sys.argv[1], "w").write(src)
```

```python
import sys, math, struct
from asmlib import Asm, NAME, HEADER_COMMENT, kernel_begin, kernel_desc, vr, ar

OPT = dict(g1f=0, mp0=0, x_b=0, x_nat=0, ew=1, dpos=0, x_g=0, mpin=1, slp=4, polls=64, noearly=0, xdma=0, swave=0, fine=0, cpf=1, tlbw=0, pfpos=3, gcap=10, tt=1, xs=1, mpf=1, spf=1, x_nodma=0, x_nobar=0, x_nosm=0, x_nopf=0, x_nolg0=0, d0=2, sm1a=68, smend=123, W=2, dstep=4, pfd=6, qlsc=0, kvpf=3, gelu_end=12, gran=128, stamps=0, prefetch=1, thr=0x4f800000, dump="", sm0a=36, sm0b=76, sm1b=120, kstep=6, vstep=3)
for x in sys.argv[2:]:
    k, v = x.split("=")
    OPT[k] = int(v, 0) if k != "dump" else v

def f32(x):
    return "0x%08x" % struct.unpack("<I", struct.pack("<f", x))[0]

UNIT = 1056; BLK = 16 * UNIT; PS = 2 * BLK
XREG = 4 * PS
LDS_TOTAL = 163840
STATS = XREG
HL = XREG
ML = XREG
SP_OFF = 0
MP_OFF = 0x1000000
QX_OFF = 0x1E00000
QX_OFF = 0x2000000
FLG_OFF = 0x2000000
PART = 57344
DUMP_OFF = 0x3000000
STAMP_OFF = 0x7000000
WS_SIZE = 0x8000000

S_W = 3; S_WSP = 4
S_K, S_V, S_X, S_WQ, S_WO, S_W1, S_W2, S_WS, S_B1 = 8, 12, 16, 20, 24, 28, 32, 36, 40
S_J, S_T = 44, 45
S_LDSW = 46; S_GKV = 47
S_KOFF, S_VOFF = 48, 49
S_SO = 50; S_CNT = 51; S_THR = 52
S_A, S_C = 53, 54
S_TMP = 55
S_BG1, S_BQP, S_BG2, S_BOP = 60, 61, 62, 63
S_M0 = 64
S_ST = 68
S_X1 = 100; S_X2 = 101
S_NONCE = 59

V_Q = 0; V_S = 128; V_P = 160; V_NEG = 192; V_F = 208; V_SC = 224; V_T = 232; V_L = 240
V_KA2 = 246 + 0
V_KA2 = 224
V_KA = 248; V_VA = 249; V_DO = 250; V_LANE = 251
V_AA = [252, 253]; V_DW1 = 254; V_DWQ = 255; V_DWW = 247
V_B4 = 240
V_ROWP, V_CC = 244, 245
A_PF = 255
A_BIAS = 224

a = Asm()

class Tracker:
    def __init__(self, name, maxc): self.ops = []; self.name = name; self.maxc = maxc
    def issue(self, tag): self.ops.append(tag)
    def count(self, tag):
        idx = max([i for i, t in enumerate(self.ops) if t == tag], default=None)
        return None if idx is None else len(self.ops) - 1 - idx
    def wait(self, tag):
        n = self.count(tag)
        if n is None: return
        a(f"s_waitcnt {self.name}({min(n, self.maxc)})")
        n = min(n, self.maxc)
        self.ops = self.ops[len(self.ops) - n:] if n > 0 else []
    def wait_all(self):
        a(f"s_waitcnt {self.name}(0)"); self.ops = []
vm = Tracker("vmcnt", 63)
lg = Tracker("lgkmcnt", 15)
def vmem(ins, tag): a(ins); vm.issue(tag)
def lds(ins, tag="x"): a(ins); lg.issue(tag)

class It:
    def __init__(self, cost, fn, kind="m"): self.cost = cost; self.fn = fn; self.kind = kind
def kind_of(x):
    if isinstance(x, It): return x.kind
    op = x.split()[0]
    if op.startswith("s_"): return "s"
    if op.startswith(("ds_", "buffer_", "global_")): return "m"
    return "v"
def cost(x):
    if isinstance(x, It): return x.cost
    op = x.split()[0]
    if op.startswith("s_"): return 0
    if op.startswith(("v_exp", "v_log", "v_rcp", "v_rsq", "v_sqrt")): return 8
    if op.startswith("buffer_"): return 8
    return 4
def do(x):
    if isinstance(x, It): x.fn()
    elif callable(x): x()
    else: a(x)
def I_vm(ins, tag): return It(8, lambda: vmem(ins, tag), "m")
def I_lds(ins, tag="x"): return It(8 if "write" in ins else 4, lambda: lds(ins, tag), "m")
def I_wvm(tag): return It(0, lambda: vm.wait(tag), "s")
def I_wlg(tag): return It(0, lambda: lg.wait(tag), "s")

class Gap:
    def __init__(self): self.s = []; self.m = []; self.v = []; self.cap = 8
    def add(self, x, force=False):
        k = kind_of(x); c = cost(x)
        if k == "s":
            if self.v: self.v.append(x)
            elif self.m and getattr(self, "strict", False): self.m.append(x)
            else: self.s.append(x)
        elif k == "m":
            if self.v: self.v.append(x)
            else: self.m.append(x)
        else: self.v.append(x)
        self.cap -= c
    def items(self): return self.s + self.m + self.v

def place_stream(gaps, stream, first, last):
    idxs = list(range(first, last + 1))
    free = sum(max(gaps[g].cap, 0) for g in idxs)
    need = sum(cost(x) for x in stream)
    ratio = min(1.0, need / max(free, 1))
    k = 0; used = 0.0; budget = 0.0
    for j, g in enumerate(idxs):
        G = gaps[g]; G.strict = True
        budget += max(G.cap, 0) * ratio + 1e-9
        lastg = j == len(idxs) - 1
        while k < len(stream):
            x = stream[k]; c = cost(x)
            if lastg or c == 0 or (c <= G.cap and used + c <= budget + 4):
                if kind_of(x) == "m" and G.v and not lastg: break
                G.add(x); used += c; k += 1
            else: break
    assert k == len(stream), (k, len(stream))

KMAIN = "fused_main_kernel"; KFIN = "fused_final_kernel"
nstamp = [0]
def fstamp():
    if OPT["fine"] == 1: stamp(True)
def gstamp():
    if OPT["fine"] == 2: stamp(True)
def qstamp():
    if OPT["fine"] == 4: stamp(True)
def hstamp():
    if OPT["fine"] == 3: stamp(True)
def stamp(force=False):
    if not OPT["stamps"]: return
    if OPT["fine"] == 1 and not force and nstamp[0] >= 3: return
    if OPT["fine"] == 1 and force and nstamp[0] >= 15: return
    if OPT["fine"] in (2, 3, 4) and not force: return
    i = nstamp[0]; nstamp[0] += 1
    assert i < 12, i
    a(f"s_memtime s[{S_ST+2*i}:{S_ST+2*i+1}]")
def srd(base, lo, hi, size):
    a(f"s_mov_b32 s{base}, s{lo}"); a(f"s_mov_b32 s{base+1}, s{hi}")
    a(f"s_mov_b32 s{base+2}, {size}"); a(f"s_mov_b32 s{base+3}, 0x20000")
def reg(spec, off, n):
    kind, base = spec
    return (vr if kind == "v" else ar)(base + off, n)

def dma_stage(kind, s, ps):
    out = []
    if kind in ("G1", "QP"):
        rs = 3584 if kind == "G1" else 8192
        sr_ = S_W1 if kind == "G1" else S_WQ
        base = S_BG1 if kind == "G1" else S_BQP
        vo = V_DW1 if kind == "G1" else V_DWQ
        for k in range(8):
            rho = 8 * (k >> 2) + (k & 3)
            rows = (64 * s if kind == "G1" else 32 * s) + rho
            out.append(([f"s_add_u32 s{S_SO}, s{base}, {rows * rs}", f"s_add_u32 m0, s{S_M0+ps}, {k*UNIT}"],
                        f"buffer_load_dwordx4 v{vo}, s[{sr_}:{sr_+3}], s{S_SO} offen lds"))
    else:
        sr_ = S_W2 if kind == "G2" else S_WO
        base = S_BG2 if kind == "G2" else S_BOP
        for k in range(8):
            sal = []
            if k % 4 == 0: sal.append(f"s_add_u32 s{S_SO}, s{base}, {(32 * s + k) * 896}")
            sal.append(f"s_add_u32 m0, s{S_M0+ps}, {k*UNIT - 896*(k%4)}")
            out.append((sal, f"buffer_load_dwordx4 v{V_DWW}, s[{sr_}:{sr_+3}], s{S_SO} offen offset:{896*(k%4)} lds"))
    return out
def dma_kv(which, ps):
    sr_ = S_K if which == "K" else S_V
    so = S_KOFF if which == "K" else S_VOFF
    out = []
    for k in range(8):
        sal = [f"s_add_u32 s{so}, s{so}, 0x8000", f"s_mov_b32 m0, s{S_M0+ps}"] if k == 0 else ["s_add_u32 m0, m0, 544"]
        out.append((sal, f"buffer_load_dwordx4 v{V_DO}, s[{sr_}:{sr_+3}], s{so} offen offset:{512*k} lds"))
    return out
def emit_units(units, tag):
    for sal, d in units:
        for x in sal: a(x)
        a("s_nop 0")
        vmem(d, tag)
def stage_dma(gs):
    if gs < 7: return dma_stage("G1", gs, gs % 4)
    if gs < 21: return dma_stage("QP", gs - 7, gs % 4)
    if gs < 28: return dma_stage("G2", gs - 21, gs % 4)
    if gs == 28: return dma_kv("K", 0)
    if gs == 29: return dma_kv("K", 1)
    if gs == 30: return dma_kv("V", 2)
    return None

LA = 3; R = 4
gctr = [0]
def read_sched(groups, post, delay, pre_issued):
    n = len(groups); post = post or []; delay = delay or {}
    sched = {}
    for i in range(pre_issued, n + LA):
        G = delay.get(i, i - LA)
        rs = groups[i]["reads"] if i < n else (post[i - n][0] if i - n < len(post) else [])
        for k in range(len(rs)): sched.setdefault(G, []).append((i, k))
    return sched
def rgap(g, j):
    if g.get("stage") is not None and OPT["tt"]: return min(j // 2, 3)
    return min(j, 3)
def prep_groups(groups, pre_issued=0, post=None, delay=None):
    sched = read_sched(groups, post, delay, pre_issued)
    for G, g in enumerate(groups):
        g["gaps"] = [Gap() for _ in range(4)]
        if g.get("stage") is not None:
            for gp in g["gaps"]: gp.cap = OPT["gcap"]
        for q, _ in enumerate(sched.get(G, [])): g["gaps"][rgap(g, q)].cap -= 4
    return [gp for g in groups for gp in g["gaps"]]
def emit_groups(groups, pre_issued=0, post=None, delay=None, W=None):
    n = len(groups)
    post = post or []
    W = W or OPT["W"]
    G0 = gctr[0]
    def info(i):
        if i < n: return groups[i]["reads"], groups[i]["ring"]
        return post[i - n] if i - n < len(post) else ([], None)
    def fmt(x, i, ring):
        o = 4 * ((G0 + i) % R)
        return x.format(r=reg(ring, o, 4), r0=reg(ring, o, 2), r1=reg(ring, o + 2, 2), A=reg(ring, o, 4))
    sched = read_sched(groups, post, delay, pre_issued)
    def issue(i, k):
        rs, ring = info(i)
        lds(fmt(rs[k], i, ring), ("f", G0 + i))
    for G in sorted(g for g in sched if g < 0):
        for (i, k) in sched[G]: issue(i, k)
    for i, g in enumerate(groups):
        for x in g.get("top", []): do(x)
        if W == 2 and (G0 + i) % 2 == 0 and i + 1 < n and lg.count(("f", G0 + i + 1)) is not None and not groups[i + 1].get("top"):
            lg.wait(("f", G0 + i + 1))
        lg.wait(("f", G0 + i))
        rl = sched.get(i, [])
        for q, m in enumerate(g["mf"]):
            a(fmt(m, i, g["ring"]))
            gp = g["gaps"][q]
            if q == 3 and OPT["ew"] and i + 1 < n and not groups[i + 1].get("top"):
                j = i + 1
                if W == 2 and (G0 + j) % 2 == 0 and j + 1 < n and lg.count(("f", G0 + j + 1)) is not None and not groups[j + 1].get("top"):
                    lg.wait(("f", G0 + j + 1))
                lg.wait(("f", G0 + j))
            for x in gp.s: do(x)
            for j, (ii, k) in enumerate(rl):
                if rgap(g, j) == q: issue(ii, k)
            for x in gp.m + gp.v: do(x)
    gctr[0] += n

def place_units(gaps, pos, units, tag, step):
    for sal, d in units:
        while gaps[pos].cap < 8: pos += 1
        tgt = gaps[pos - 1]
        assert not tgt.v
        for x in sal: (tgt.m if tgt.m else tgt.s).append(x)
        gaps[pos].add(I_vm(d, tag) if tag is not None else d)
        pos += step
def trd(aa, off):
    return [f"ds_read_b64_tr_b16 {{r0}}, v{aa} offset:{off}", f"ds_read_b64_tr_b16 {{r1}}, v{aa} offset:{off+512}"]
def mf16(d, b, c): return f"v_mfma_f32_16x16x32_bf16 {d}, {{A}}, {b}, {c}"

def gemm_groups(kind, nstage, gs0, accf, bf, ring, aa, tagp, first_top=True):
    groups = []
    for s in range(nstage):
        gs = gs0 + s; ps = gs % 4
        av = aa[ps // 2]; pso = (ps % 2) * PS
        first = len(groups)
        if kind == "G1": items = [(pso + blk * BLK + fb * 32, fb, 2 * s + blk) for blk in range(2) for fb in range(4)]
        elif kind == "QP": items = [(pso + ((db // 2) * 64 + (db % 2) * 8 if not OPT["x_nat"] else db * 32), db, s) for db in range(8)]
        else: items = [(pso + nb * 32, nb, s) for nb in range(7)]
        for off, blk, ks in items:
            groups.append(dict(reads=trd(av, off), ring=ring, stage=gs, first=(len(groups) == first),
                               mf=[mf16(accf(blk, qb), bf(ks, qb), accf(blk, qb) if ks > 0 else "0") for qb in range(4)], top=[]))
        if s > 0 or first_top:
            groups[first]["top"] = [lambda gs=gs: vm.wait((tagp, gs + 1)), "s_barrier"]
    return groups
def gemm_dma(groups, gaps, dmaf, tagp, skip=()):
    for G, g in enumerate(groups):
        if g.get("first"):
            gs = g["stage"]
            if (gs + 3) in skip: continue
            units = dmaf(gs + 3)
            if not units: continue
            ng = sum(1 for x in groups if x["stage"] == gs)
            dq = 1 if OPT["tt"] else 2
            if OPT["dpos"] == 0:
                pos = [4 * (G + i) + dq for i in range(ng)]
                if ng < len(units): pos = sorted(pos + [4 * (G + 3) + dq + 1])
            elif OPT["dpos"] == 1:
                pos = [4 * (G + i) + q for i in range(4) for q in (1, 3)]
            elif OPT["dpos"] == 2:
                pos = [4 * G + x for x in (1, 3, 5, 9, 11, 13, 17, 21)]
            else:
                pos = [4 * G + x for x in (1, 3, 6+1, 9, 11, 15, 17, 19)]
            for u, p_ in zip(units, pos): place_units(gaps, p_, [u], (tagp, gs + 3), 1)

def xlane(op, v, t):
    for sw in ("v_permlane16_swap_b32", "v_permlane32_swap_b32"):
        a(f"v_mov_b32 v{t}, v{v}"); a("s_nop 1")
        a(f"{sw} v{v}, v{t}"); a("s_nop 1")
        a(f"{op} v{v}, v{v}, v{t}")
def xlane4(op, vs, ts):
    for sw in ("v_permlane16_swap_b32", "v_permlane32_swap_b32"):
        for v, t in zip(vs, ts): a(f"v_mov_b32 v{t}, v{v}")
        for v, t in zip(vs, ts): a(f"{sw} v{v}, v{t}")
        for v, t in zip(vs, ts): a(f"{op} v{v}, v{v}, v{t}")
def round_bf16(v, t):
    a(f"v_cvt_pk_bf16_f32 v{t}, v{v}, v{v}")
    a(f"v_lshlrev_b32 v{v}, 16, v{t}")

def dump_regs(name, kind, base, n):
    if OPT["dump"] != name: return
    a("s_nop 7"); a("s_nop 7"); a("s_waitcnt vmcnt(0) lgkmcnt(0)")
    a(f"s_lshl_b32 s{S_TMP}, s2, 2"); a(f"s_add_u32 s{S_TMP}, s{S_TMP}, s{S_W}")
    a(f"s_mul_i32 s{S_TMP}, s{S_TMP}, {n*256}")
    a(f"s_add_u32 s{S_TMP}, s{S_TMP}, {DUMP_OFF}")
    a(f"v_lshlrev_b32 v{V_T+7}, 2, v{V_LANE}")
    for i in range(n):
        if kind == "a":
            a(f"v_accvgpr_read_b32 v{V_T+6}, a{base+i}"); src = V_T + 6
        else: src = base + i
        a(f"buffer_store_dword v{src}, v{V_T+7}, s[{S_WS}:{S_WS+3}], s{S_TMP} offen")
        a(f"s_add_u32 s{S_TMP}, s{S_TMP}, 256")
        if kind == "a": a("s_waitcnt vmcnt(0)")
    a("s_waitcnt vmcnt(0)")
    a("s_endpgm")

a("s_cmp_ge_u32 s2, 256")
a("s_cbranch_scc1 L_end")
a("s_load_dwordx2 s[16:17], s[0:1], 0")
if OPT["stamps"]: a("s_memtime s[98:99]")
a(f"v_lshrrev_b32 v{V_T}, 6, v0")
a(f"v_and_b32 v{V_LANE}, 63, v0")
a(f"v_readfirstlane_b32 s{S_W}, v{V_T}")
VQ_, VG_ = V_T + 1, V_T + 2
a(f"v_and_b32 v{VQ_}, 15, v{V_LANE}")
a(f"v_lshrrev_b32 v{VG_}, 4, v{V_LANE}")
a(f"s_lshr_b32 s{S_T}, s2, 3")
a(f"v_mul_u32_u24 v{V_T+3}, 896, v{VQ_}")
a(f"s_lshl_b32 s{S_TMP}, s{S_T}, 2"); a(f"s_add_u32 s{S_TMP}, s{S_TMP}, s{S_W}")
a(f"v_lshl_add_u32 v{V_T+3}, v{VG_}, 4, v{V_T+3}")
a(f"s_mul_i32 s{S_TMP}, s{S_TMP}, {16*896}")
a(f"s_mov_b32 s{S_X+2}, 1835008"); a(f"s_mov_b32 s{S_X+3}, 0x20000")
a("s_waitcnt lgkmcnt(0)")
XR = 0
if OPT["xdma"]:
    a(f"s_lshl_b32 s{S_TMP+1}, s{S_W}, 10"); a(f"s_add_u32 s{S_TMP+1}, s{S_TMP+1}, {2*PS}")
    for ks in range(14):
        a(f"s_add_u32 m0, s{S_TMP+1}, {ks*4096 - 64*ks}")
        a("s_nop 0")
        vmem(f"buffer_load_dwordx4 v{V_T+3}, s[{S_X}:{S_X+3}], s{S_TMP} offen offset:{64*ks} lds", "x")
else:
    for ks in range(14):
        vmem(f"buffer_load_dwordx4 {vr(XR+4*ks,4)}, v{V_T+3}, s[{S_X}:{S_X+3}], s{S_TMP} offen offset:{64*ks}", "x")
a("s_load_dwordx16 s[68:83], s[0:1], 0")
a("s_load_dwordx2 s[84:85], s[0:1], 64")
a("s_load_dwordx2 s[4:5], s[0:1], 96")
a("s_load_dwordx4 s[92:95], s[0:1], 72")
a("s_load_dwordx2 s[96:97], s[0:1], 88")
if OPT["cpf"]:
    a("s_getpc_b64 s[6:7]")
    a.label("L_pc0")
    a(f"s_sub_u32 s6, s6, L_pc0-{NAME}_kernel"); a("s_subb_u32 s7, s7, 0")
    a(f"s_lshl_b32 s{S_TMP+1}, s{S_T}, 11")
    a(f"v_lshlrev_b32 v{V_T+4}, 9, v{V_T}")
    a(f"v_and_b32 v{V_T+5}, 3, v{V_LANE}"); a(f"v_lshl_add_u32 v{V_T+4}, v{V_T+5}, 7, v{V_T+4}")
    a(f"v_add_u32 v{V_T+4}, s{S_TMP+1}, v{V_T+4}")
    a(f"global_load_dword a{A_PF}, v{V_T+4}, s[6:7]")
    vm.issue("cpf")
    a(f"global_load_dword a{A_PF}, v{V_T+4}, s[6:7] offset:64")
    vm.issue("cpf")
a(f"s_and_b32 s{S_J}, s2, 7")
PX, PK, PV_, PWQ, PWO, PW1, PB1, PW2 = 68, 70, 72, 74, 76, 80, 82, 84
a("s_waitcnt lgkmcnt(0)")
a(f"s_cmp_lg_u32 s{S_W}, 0"); a("s_cbranch_scc1 L_nonce")
a("s_memrealtime s[6:7]")
a(f"s_mov_b32 s{S_B1}, s96"); a(f"s_mov_b32 s{S_B1+1}, s97"); a(f"s_mov_b32 s{S_B1+2}, 256"); a(f"s_mov_b32 s{S_B1+3}, 0x20000")
a(f"s_lshl_b32 s{S_X1}, s{S_T}, 2"); a(f"s_add_u32 s{S_X1}, s{S_X1}, 128")
a("s_waitcnt lgkmcnt(0)")
a(f"s_or_b32 s{S_NONCE}, s6, 1")
a("s_mov_b64 exec, 1")
a(f"v_mov_b32 v96, s{S_NONCE}"); a("v_mov_b32 v97, 0"); a("v_mov_b32 v98, 0")
a(f"buffer_atomic_cmpswap v[96:97], v98, s[{S_B1}:{S_B1+3}], s{S_X1} offen sc0")
a("s_mov_b64 exec, -1")
a.label("L_nonce")
a(f"s_lshl_b32 s{S_TMP}, s{S_J}, 20")
a(f"s_add_u32 s{S_K}, s{PK}, s{S_TMP}"); a(f"s_addc_u32 s{S_K+1}, s{PK+1}, 0")
a(f"s_mov_b32 s{S_K+2}, 0x100000"); a(f"s_mov_b32 s{S_K+3}, 0x20000")
a(f"s_add_u32 s{S_V}, s{PV_}, s{S_TMP}"); a(f"s_addc_u32 s{S_V+1}, s{PV_+1}, 0")
a(f"s_mov_b32 s{S_V+2}, 0x100000"); a(f"s_mov_b32 s{S_V+3}, 0x20000")
srd(S_WQ, PWQ, PWQ+1, 3670016)
srd(S_WO, PWO, PWO+1, 3670016)
srd(S_W1, PW1, PW1+1, 1605632)
srd(S_W2, PW2, PW2+1, 1605632)
srd(S_WS, S_WSP, S_WSP+1, WS_SIZE)
srd(S_B1, PB1, PB1+1, 3584)
stamp()
a(f"s_lshr_b32 s{S_A}, s{S_W}, 1"); a(f"s_and_b32 s{S_C}, s{S_W}, 1")
a(f"s_mul_i32 s{S_TMP}, s{S_A}, {BLK}"); a(f"s_mul_i32 s{S_TMP+1}, s{S_C}, {8*UNIT}")
a(f"s_add_u32 s{S_LDSW}, s{S_TMP}, s{S_TMP+1}")
for i in range(4): a(f"s_add_u32 s{S_M0+i}, s{S_LDSW}, {i*PS}")
a(f"s_lshl_b32 s{S_TMP}, s{S_A}, 14"); a(f"s_lshl_b32 s{S_TMP+1}, s{S_C}, 12")
a(f"s_add_u32 s{S_GKV}, s{S_TMP}, s{S_TMP+1}")
a(f"s_sub_u32 s{S_KOFF}, s{S_GKV}, 0x8000"); a(f"s_sub_u32 s{S_VOFF}, s{S_GKV}, 0x8000")
a(f"s_lshl_b32 s{S_TMP}, s{S_A}, 5"); a(f"s_lshl_b32 s{S_TMP+1}, s{S_C}, 4"); a(f"s_add_u32 s{S_TMP}, s{S_TMP}, s{S_TMP+1}")
a(f"s_mul_i32 s{S_BG1}, s{S_TMP}, 3584"); a(f"s_mul_i32 s{S_TMP+1}, s{S_J}, 448"); a(f"s_add_u32 s{S_BG1}, s{S_BG1}, s{S_TMP+1}")
a(f"s_lshl_b32 s{S_TMP}, s{S_C}, 17")
a(f"s_lshl_b32 s{S_TMP+1}, s{S_J}, 10"); a(f"s_add_u32 s{S_TMP}, s{S_TMP}, s{S_TMP+1}")
a(f"s_lshl_b32 s{S_TMP+1}, s{S_A}, 9"); a(f"s_add_u32 s{S_BQP}, s{S_TMP}, s{S_TMP+1}")
a(f"s_mul_i32 s{S_TMP}, s{S_J}, 224"); a(f"s_lshl_b32 s{S_TMP+1}, s{S_C}, 3"); a(f"s_add_u32 s{S_TMP}, s{S_TMP}, s{S_TMP+1}")
a(f"s_mul_i32 s{S_BG2}, s{S_TMP}, 896"); a(f"s_mul_i32 s{S_TMP+2}, s{S_A}, 448"); a(f"s_add_u32 s{S_BG2}, s{S_BG2}, s{S_TMP+2}")
a(f"s_lshl_b32 s{S_TMP}, s{S_J}, 9"); a(f"s_add_u32 s{S_TMP}, s{S_TMP}, s{S_TMP+1}")
a(f"s_mul_i32 s{S_BOP}, s{S_TMP}, 896"); a(f"s_add_u32 s{S_BOP}, s{S_BOP}, s{S_TMP+2}")
a(f"s_mov_b32 s{S_THR}, {OPT['thr']}")
def dma_voffsets(which):
    a(f"v_lshrrev_b32 v{V_T+4}, 5, v{V_LANE}")
    a(f"v_and_b32 v{V_T+5}, 31, v{V_LANE}")
    a(f"v_lshlrev_b32 v{V_T+5}, 4, v{V_T+5}")
    if "1" in which:
        a(f"v_mul_u32_u24 v{V_DW1}, {4*3584}, v{V_T+4}"); a(f"v_add_u32 v{V_DW1}, v{V_DW1}, v{V_T+5}")
    if "q" in which: a(f"v_lshl_add_u32 v{V_DWQ}, v{V_T+4}, 15, v{V_T+5}")
    if "o" in which: a(f"v_lshl_add_u32 v{V_DO}, v{V_T+4}, 13, v{V_T+5}")
    if "w" in which:
        a(f"v_mul_u32_u24 v{V_DWW}, {16*896}, v{V_T+4}"); a(f"v_add_u32 v{V_DWW}, v{V_DWW}, v{V_T+5}")
        a(f"v_cmp_lt_u32 vcc, {27*16}, v{V_T+5}")
        a(f"v_mov_b32 v{V_T+6}, 0x40000000")
        a("s_nop 1")
        a(f"v_cndmask_b32 v{V_DWW}, v{V_DWW}, v{V_T+6}, vcc")
dma_voffsets("1qow")
if OPT["pfpos"] < 3:
    emit_units(stage_dma(0), ("st", 0))
    emit_units(stage_dma(1), ("st", 1))
def rowp_cc():
    a(f"v_bfe_u32 v{V_ROWP}, v{V_LANE}, 2, 2")
    a(f"v_lshrrev_b32 v{V_CC}, 4, v{V_LANE}")
    a(f"v_lshl_add_u32 v{V_ROWP}, v{V_CC}, 2, v{V_ROWP}")
    a(f"v_mul_u32_u24 v{V_ROWP}, {UNIT}, v{V_ROWP}")
    a(f"v_and_b32 v{V_CC}, 3, v{V_LANE}")
rowp_cc()

PFD = OPT["pfd"]
def prefetch(kind, gran):
    dst = "v227" if kind == "wo" else f"a{A_PF}"
    sh = 6 if gran == 64 else 7
    a(f"s_lshl_b32 s{S_TMP}, s{S_T}, 2"); a(f"s_add_u32 s{S_TMP}, s{S_TMP}, s{S_W}")
    T0, T1 = V_T + 4, V_T + 5
    def masked(n):
        if n < 64:
            a(f"v_cmp_lt_u32 vcc, {n-1}, v{V_LANE}")
            a(f"v_mov_b32 v{T1}, 0x40000000")
            a("s_nop 1")
            a(f"v_cndmask_b32 v{T0}, v{T0}, v{T1}, vcc")
    if kind in ("w1", "wq"):
        rowb = 512 if kind == "w1" else 1024
        rs = 3584 if kind == "w1" else 8192
        if kind == "w1": rowb, per_row = 640, 8
        per_row = 8 if kind == "w1" else rowb // gran
        step = 64 if kind == "w1" else gran
        n = 448 * per_row // 128
        a(f"s_mul_i32 s{S_TMP}, s{S_TMP}, {n}")
        a(f"v_add_u32 v{T0}, s{S_TMP}, v{V_LANE}")
        lgp = per_row.bit_length() - 1
        a(f"v_lshrrev_b32 v{T1}, {lgp}, v{T0}")
        a(f"v_and_b32 v{T0}, {per_row-1}, v{T0}")
        a(f"v_mul_u32_u24 v{T0}, {step}, v{T0}")
        a(f"s_mov_b32 s{S_TMP+1}, {rs}")
        a(f"v_mad_u32_u24 v{T0}, v{T1}, s{S_TMP+1}, v{T0}")
        masked(n)
        a(f"s_mul_i32 s{S_TMP+1}, s{S_J}, {448 if kind == 'w1' else 1024}")
        sr_ = S_W1 if kind == "w1" else S_WQ
        vmem(f"buffer_load_dword a{A_PF}, v{T0}, s[{sr_}:{sr_+3}], s{S_TMP+1} offen", "pf")
    else:
        size = {"w2": 200704, "wo": 458752, "k": 1 << 20, "v": 1 << 20, "k0": PFD * 32768, "v0": PFD * 32768}[kind]
        sr_ = {"w2": S_W2, "wo": S_WO, "k": S_K, "v": S_V, "k0": S_K, "v0": S_V}[kind]
        n = (size // gran + 127) // 128
        a(f"s_mul_i32 s{S_TMP}, s{S_TMP}, {n*gran}")
        if kind in ("w2", "wo"):
            a(f"s_mul_i32 s{S_TMP+1}, s{S_J}, {size}"); a(f"s_add_u32 s{S_TMP}, s{S_TMP}, s{S_TMP+1}")
        a(f"v_lshlrev_b32 v{T0}, {sh}, v{V_LANE}")
        masked(n)
        for i in range((n + 63) // 64):
            vmem(f"buffer_load_dword {dst}, v{T0}, s[{sr_}:{sr_+3}], s{S_TMP} offen", "pf")
            if i + 1 < (n + 63) // 64: a(f"s_add_u32 s{S_TMP}, s{S_TMP}, {64*gran}")
GR = OPT["gran"]
def early_pf(which):
    if not OPT["prefetch"]: return
    for kind in which: prefetch(kind, GR)
if OPT["pfpos"] == 0:
    early_pf(("w1", "wq", "w2", "k0", "v0"))
if OPT["pfpos"] == 4: early_pf(("w1", "wq", "w2"))
if OPT["pfpos"] in (0, 1, 4):
    a(f"v_lshlrev_b32 v{V_T+6}, 3, v{VG_}")
    a(f"s_mul_i32 s{S_TMP}, s{S_J}, 448"); a(f"s_lshl_b32 s{S_TMP+1}, s{S_W}, 7"); a(f"s_add_u32 s{S_TMP}, s{S_TMP}, s{S_TMP+1}")
    for fb in range(4):
        vmem(f"buffer_load_dwordx2 {ar(A_BIAS+2*fb,2)}, v{V_T+6}, s[{S_B1}:{S_B1+3}], s{S_TMP} offen offset:{32*fb}", "b1")
if OPT["pfpos"] == 1: early_pf(("w1",))

vm.wait("x")
if OPT["xdma"]:
    a(f"v_lshlrev_b32 v{V_T+6}, 4, v{V_LANE}")
    a(f"s_lshl_b32 s{S_TMP}, s{S_W}, 10"); a(f"s_add_u32 s{S_TMP}, s{S_TMP}, {2*PS}")
    a(f"v_add_u32 v{V_T+6}, s{S_TMP}, v{V_T+6}")
    for ks in range(14): lds(f"ds_read_b128 {vr(XR+4*ks,4)}, v{V_T+6} offset:{ks*4096}", "xr")
    lg.wait_all()
stamp()
XF = 112
for i in range(56):
    a(f"v_lshlrev_b32 v{XF+2*i}, 16, v{XR+i}")
    a(f"v_and_b32 v{XF+2*i+1}, 0xffff0000, v{XR+i}")
ACC = 56
fstamp()
if OPT["pfpos"] in (3, 4): emit_units(stage_dma(0), ("st", 0))
fstamp()
for c in range(4): a(f"v_pk_add_f32 {vr(ACC+2*c,2)}, {vr(XF+4*c,2)}, {vr(XF+4*c+2,2)}")
for n_, i in enumerate(range(8, 56)):
    c = n_ % 4
    a(f"v_pk_add_f32 {vr(ACC+2*c,2)}, {vr(ACC+2*c,2)}, {vr(XF+2*i,2)}")
a(f"v_pk_add_f32 {vr(ACC,2)}, {vr(ACC,2)}, {vr(ACC+2,2)}")
a(f"v_pk_add_f32 {vr(ACC+4,2)}, {vr(ACC+4,2)}, {vr(ACC+6,2)}")
a(f"v_pk_add_f32 {vr(ACC,2)}, {vr(ACC,2)}, {vr(ACC+4,2)}")
a(f"v_add_f32 v{ACC}, v{ACC}, v{ACC+1}")
xlane("v_add_f32", ACC, ACC+1)
VMEAN, VMB = ACC + 2, ACC + 4
a(f"v_mul_f32 v{VMB}, {f32(1.0/448)}, v{ACC}")
a(f"v_mov_b32 v{VMB+1}, v{VMB}")
VAR = 64
XCL = 2 * PS
if OPT["pfpos"] == 1: early_pf(("wq", "w2"))
fstamp()
if OPT["pfpos"] in (3, 4): emit_units(stage_dma(1), ("st", 1))
fstamp()
if OPT["pfpos"] == 2:
    a(f"v_lshlrev_b32 v{V_T+4}, 3, v{VG_}")
    a(f"s_mul_i32 s{S_TMP}, s{S_J}, 448"); a(f"s_lshl_b32 s{S_TMP+1}, s{S_W}, 7"); a(f"s_add_u32 s{S_TMP}, s{S_TMP}, s{S_TMP+1}")
    for fb in range(4):
        vmem(f"buffer_load_dwordx2 {ar(A_BIAS+2*fb,2)}, v{V_T+4}, s[{S_B1}:{S_B1+3}], s{S_TMP} offen offset:{32*fb}", "b1")
    early_pf(("w1", "wq", "w2"))

a(f"v_lshlrev_b32 v{V_T+6}, 4, v{V_LANE}")
a(f"s_lshl_b32 s{S_TMP}, s{S_W}, 10"); a(f"s_add_u32 s{S_TMP}, s{S_TMP}, {XCL}")
a(f"v_add_u32 v{V_T+6}, s{S_TMP}, v{V_T+6}")
for ks in range(14):
    for i in range(4*ks, 4*ks+4):
        a(f"v_pk_add_f32 {vr(XF+2*i,2)}, {vr(XF+2*i,2)}, {vr(VMB,2)} neg_lo:[0,1] neg_hi:[0,1]")
    for i in range(4*ks, 4*ks+4):
        c = i % 4
        if i < 4: a(f"v_pk_mul_f32 {vr(VAR+2*c,2)}, {vr(XF+2*i,2)}, {vr(XF+2*i,2)}")
        else: a(f"v_pk_fma_f32 {vr(VAR+2*c,2)}, {vr(XF+2*i,2)}, {vr(XF+2*i,2)}, {vr(VAR+2*c,2)}")
if OPT["pfpos"] == 3:
    a(f"v_lshlrev_b32 v{V_T+4}, 3, v{VG_}")
    a(f"s_mul_i32 s{S_TMP}, s{S_J}, 448"); a(f"s_lshl_b32 s{S_TMP+1}, s{S_W}, 7"); a(f"s_add_u32 s{S_TMP}, s{S_TMP}, s{S_TMP+1}")
    for fb in range(4):
        vmem(f"buffer_load_dwordx2 {ar(A_BIAS+2*fb,2)}, v{V_T+4}, s[{S_B1}:{S_B1+3}], s{S_TMP} offen offset:{32*fb}", "b1")
    early_pf(("w1", "wq", "w2"))

fstamp()
a(f"v_pk_add_f32 {vr(VAR,2)}, {vr(VAR,2)}, {vr(VAR+2,2)}")
a(f"v_pk_add_f32 {vr(VAR+4,2)}, {vr(VAR+4,2)}, {vr(VAR+6,2)}")
a(f"v_pk_add_f32 {vr(VAR,2)}, {vr(VAR,2)}, {vr(VAR+4,2)}")
a(f"v_add_f32 v{VAR}, v{VAR}, v{VAR+1}")
xlane("v_add_f32", VAR, VAR+1)
a(f"v_mul_f32 v{VAR}, {f32(1.0/448)}, v{VAR}")
a(f"v_mov_b32 v{VAR+4}, v{VAR}")
round_bf16(VAR+4, VAR+1)
a(f"v_add_f32 v{VAR+4}, {f32(1e-5)}, v{VAR+4}")
round_bf16(VAR+4, VAR+1)
a(f"v_sqrt_f32 v{VAR+4}, v{VAR+4}"); a("s_nop 0")
round_bf16(VAR+4, VAR+1)
a(f"v_rcp_f32 v{VAR+5}, v{VAR+4}"); a("s_nop 0")
fstamp()
CQ = math.log2(math.e) / 16
a(f"v_mul_f32 v{VAR+2}, {f32(CQ)}, v{VAR+5}")
a(f"v_mov_b32 v{VAR+3}, v{VAR+2}")
for ks in range(14):
    for i in range(4*ks, 4*ks+4):
        a(f"v_pk_mul_f32 {vr(XF+2*i,2)}, {vr(XF+2*i,2)}, {vr(VAR+2,2)}")
    for i in range(4*ks, 4*ks+4):
        a(f"v_cvt_pk_bf16_f32 v{XR+i}, v{XF+2*i}, v{XF+2*i+1}")
    lds(f"ds_write_b128 v{V_T+6}, {vr(XR+4*ks,4)} offset:{ks*4096}")
a(f"v_mul_f32 v{VAR+6}, v{VAR+5}, v{VAR+5}")
a(f"v_mul_f32 v{VAR+6}, v{VAR+6}, v{VAR}")
round_bf16(VAR+6, VAR+7)
a(f"v_add_f32 v{VAR+6}, {f32(1e-5)}, v{VAR+6}")
round_bf16(VAR+6, VAR+7)
a(f"v_sqrt_f32 v{VAR+6}, v{VAR+6}"); a("s_nop 0")
round_bf16(VAR+6, VAR+7)
a(f"v_rcp_f32 v{VAR+6}, v{VAR+6}"); a("s_nop 0")
a(f"v_mul_f32 v{VAR+6}, {f32(1.0/CQ)}, v{VAR+6}")
a(f"s_lshl_b32 s{S_TMP}, s{S_W}, 6"); a(f"s_add_u32 s{S_TMP}, s{S_TMP}, {STATS}")
a(f"v_lshlrev_b32 v{V_T+5}, 2, v{VQ_}"); a(f"v_add_u32 v{V_T+5}, s{S_TMP}, v{V_T+5}")
lds(f"ds_write_b32 v{V_T+5}, v{VAR+6}")
a(f"v_lshlrev_b32 v{V_T+6}, 4, v{V_LANE}"); a(f"v_add_u32 v{V_T+6}, {XCL}, v{V_T+6}")
a(f"v_lshlrev_b32 v{V_T+7}, 2, v{VQ_}"); a(f"v_add_u32 v{V_T+7}, {STATS}, v{V_T+7}")
a(f"s_lshl_b32 s{S_TMP}, s{S_W}, 7")
a(f"v_lshl_add_u32 v{V_AA[0]}, v{V_CC}, 3, v{V_ROWP}")
a(f"v_add_u32 v{V_AA[0]}, s{S_TMP}, v{V_AA[0]}")
a(f"v_add_u32 v{V_AA[1]}, {2*PS}, v{V_AA[0]}")
a(f"s_cmp_lg_u32 s{S_W}, 0"); a("s_cbranch_scc1 L_nonce2")
a("s_waitcnt vmcnt(0)") if False else None
vm_n = vm.count(("st", 0))
a(f"s_waitcnt vmcnt({min(63, len(vm.ops) - [i for i, t in enumerate(vm.ops) if t == ('st', 0)][0])})")
a(f"v_readfirstlane_b32 s{S_TMP}, v96")
a(f"s_cmp_eq_u32 s{S_TMP}, 0"); a(f"s_cselect_b32 s{S_NONCE}, s{S_NONCE}, s{S_TMP}")
a(f"v_mov_b32 v97, s{S_NONCE}"); a(f"v_mov_b32 v98, {STATS + 512}")
a("ds_write_b32 v98, v97")
a.label("L_nonce2")
fstamp()
lg.wait_all()
a("s_barrier")
fstamp()
a(f"v_mov_b32 v98, {STATS + 512}")
lds("ds_read_b32 v97, v98", "nn")
for f in range(56):
    lds(f"ds_read_b128 {ar(4*f,4)}, v{V_T+6} offset:{f*1024}", "xc")
    if f % 12 == 11: a("s_waitcnt lgkmcnt(4)"); lg.ops = lg.ops[-4:]
for qb in range(4): lds(f"ds_read_b32 v{V_SC+2*qb+1}, v{V_T+7} offset:{qb*64}", "sc")
lg.wait_all()
a(f"v_readfirstlane_b32 s{S_NONCE}, v97")
fstamp()
vm.wait(("st", 1))
fstamp()
a("s_barrier")
dump_regs("xc", "a", 0, 224)
stamp(OPT["fine"] not in (2, 3, 4))
if not OPT["g1f"]:
    emit_units(stage_dma(2), ("st", 2))
    emit_units(stage_dma(3), ("st", 3))
if OPT["pfpos"] in (1, 2, 3, 4): early_pf(("k0", "v0"))

RING_A = ("a", 236); RING_V = ("v", V_F)
xcf = lambda ks, qb: ar((ks * 4 + qb) * 4, 4)
H1 = 0; HP = 64; QA = 96; GA = 112
h1acc = lambda fb, qb: vr(H1 + (fb * 4 + qb) * 4, 4)
qacc = lambda db, qb: vr(QA + (db * 4 + qb) * 4, 4)
hfrag = lambda ks, qb: ar((ks * 4 + qb) * 4, 4)
g2acc = lambda nb, qb: ar(GA + (nb * 4 + qb) * 4, 4)
VQA = [V_DW1 - 0, 0]
VQA = [V_KA, V_VA]
a(f"s_mul_i32 s{S_TMP}, s{S_A}, {BLK}"); a(f"s_lshl_b32 s{S_TMP+1}, s{S_C}, 8"); a(f"s_add_u32 s{S_TMP}, s{S_TMP}, s{S_TMP+1}")
a(f"v_lshl_add_u32 v{VQA[0]}, v{V_CC}, {4 if not OPT['x_nat'] else 3}, v{V_ROWP}")
a(f"v_add_u32 v{VQA[0]}, s{S_TMP}, v{VQA[0]}")
a(f"v_add_u32 v{VQA[1]}, {2*PS}, v{VQA[0]}")

def att_reads(p, f):
    if f < 16:
        kb, x = f // 8, f % 8
        return [f"ds_read_b128 {{r}}, v{V_KA if x < 4 else V_KA2} offset:{((p + 1) % 2) * PS + kb*512 + x*64}"]
    return trd(V_VA, (p % 2) * PS + (f - 16) * 32)
g1 = gemm_groups("G1", 7, 0, h1acc, xcf, RING_A, V_AA, "st", first_top=False)
qp = gemm_groups("QP", 14, 7, qacc, xcf, RING_A, VQA, "st")
g2 = gemm_groups("G2", 7, 21, g2acc, hfrag, RING_A, V_AA, "st")
allg = g1 + qp + g2
POSTA = [(att_reads(-1, i), RING_V) for i in range(LA)]
if OPT["fine"] == 4:
    for g in allg:
        if g.get("first") and g["stage"] in (1, 4, 7, 9, 11, 13, 15, 17, 19, 21, 24):
            g["top"] = g["top"] + [qstamp]
allgaps = prep_groups(allg, post=POSTA)
if OPT["g1f"]:
    for u, p_ in zip(stage_dma(2), [4 * (i // 2) + 1 + 2 * (i % 2) for i in range(8)]): place_units(allgaps, p_, [u], ("st", 2), 1)
    for u, p_ in zip(stage_dma(3), [16 + 4 * (i // 2) + 1 + 2 * (i % 2) for i in range(8)]): place_units(allgaps, p_, [u], ("st", 3), 1)
gemm_dma(allg, allgaps, stage_dma, "st", skip=(3,))
fq = allgaps[4*56:4*168]; fg = allgaps[4*168:]

C1 = 2 * math.sqrt(2 / math.pi) * math.log2(math.e); C2 = C1 * 0.044715
def gelu_stream():
    st = [f"s_mov_b32 s{S_X1}, {f32(-C2)}", f"v_mov_b32 v{V_T+7}, {f32(-C1)}", I_wvm("b1")]
    for fb in range(4):
        st += [f"v_accvgpr_read_b32 v{V_T}, a{A_BIAS+2*fb}", f"v_accvgpr_read_b32 v{V_T+1}, a{A_BIAS+2*fb+1}", "s_nop 0",
               f"v_lshlrev_b32 v{V_B4}, 16, v{V_T}", f"v_and_b32 v{V_B4+1}, 0xffff0000, v{V_T}",
               f"v_lshlrev_b32 v{V_B4+2}, 16, v{V_T+1}", f"v_and_b32 v{V_B4+3}, 0xffff0000, v{V_T+1}"]
        for qb in range(4):
            base = H1 + (fb * 4 + qb) * 4
            st += [f"v_fma_f32 v{base+r}, v{base+r}, v{V_SC+2*qb+1}, v{V_B4+r}" for r in range(4)]
            st += [f"v_mul_f32 v{V_T+r}, v{base+r}, v{base+r}" for r in range(4)]
            st += [f"v_fma_f32 v{V_T+r}, v{V_T+r}, s{S_X1}, v{V_T+7}" for r in range(4)]
            st += [f"v_mul_f32 v{V_T+r}, v{V_T+r}, v{base+r}" for r in range(4)]
            st += [f"v_exp_f32 v{V_T+r}, v{V_T+r}" for r in range(4)]
            st += [f"v_add_f32 v{V_T+r}, 1.0, v{V_T+r}" for r in range(4)]
            st += [f"v_rcp_f32 v{V_T+r}, v{V_T+r}" for r in range(4)]
            st += [f"v_mul_f32 v{base+r}, v{base+r}, v{V_T+r}" for r in range(4)]
            hp = HP + ((fb // 2) * 4 + qb) * 4 + (fb % 2) * 2
            st += [f"v_cvt_pk_bf16_f32 v{hp}, v{base}, v{base+1}", f"v_cvt_pk_bf16_f32 v{hp+1}, v{base+2}, v{base+3}"]
    st += [f"s_lshl_b32 s{S_X1}, s{S_W}, 1", f"s_add_u32 s{S_X2}, s{S_X1}, 1", f"s_min_u32 s{S_X2}, s{S_X2}, 6",
           f"s_lshl_b32 s{S_X1}, s{S_X1}, 12", f"s_lshl_b32 s{S_X2}, s{S_X2}, 12",
           f"v_lshlrev_b32 v{V_T+6}, 4, v{V_LANE}", f"v_add_u32 v{V_T+6}, {HL}, v{V_T+6}",
           f"v_add_u32 v{V_T+5}, s{S_X2}, v{V_T+6}", f"v_add_u32 v{V_T+4}, s{S_X1}, v{V_T+6}"]
    st += [I_lds(f"ds_write_b128 v{V_T+5}, {vr(HP+16+4*qb,4)} offset:{qb*1024}", "hw") for qb in range(4)]
    st += [I_lds(f"ds_write_b128 v{V_T+4}, {vr(HP+4*qb,4)} offset:{qb*1024}", "hw") for qb in range(4)]
    st += [I_wlg("hw")]
    return st
GE = OPT["gelu_end"]
_gs = gelu_stream()
if OPT["x_g"] == 1: _gs = [x for x in _gs if not (isinstance(x, str) and x.startswith(("v_fma", "v_mul", "v_exp", "v_add_f32", "v_rcp", "v_cvt")))]
if OPT["x_g"] == 2: _gs = [x.replace("v_exp_f32", "v_mov_b32").replace("v_rcp_f32", "v_mov_b32") if isinstance(x, str) else x for x in _gs]
if OPT["x_g"] == 3: _gs = [x for x in _gs if not (isinstance(x, str) and x.startswith(("v_exp", "v_rcp")))]
place_stream(fq, _gs, 4*2, 4*(8*GE) - 1)
st = [f"s_mul_i32 s{S_X1}, s{S_A}, {BLK}", f"s_mul_i32 s{S_X2}, s{S_C}, 224", f"s_add_u32 s{S_X1}, s{S_X1}, s{S_X2}",
      f"v_lshl_add_u32 v{V_AA[0]}, v{V_CC}, 3, v{V_ROWP}", f"v_add_u32 v{V_AA[0]}, s{S_X1}, v{V_AA[0]}", f"v_add_u32 v{V_AA[1]}, {2*PS}, v{V_AA[0]}"]
st += [I_lds(f"ds_read_b128 {ar(4*f,4)}, v{V_T+6} offset:{f*1024}", "hr") for f in range(28)] + [I_wlg("hr")]
place_stream(fq, st, 4*(8*GE) + 1, 4*(8*14) - 5)

def q_frag(f):
    x, qb = f // 4, f % 4
    b0 = QA + ((2 * x) * 4 + qb) * 4; b1_ = QA + ((2 * x + 1) * 4 + qb) * 4
    st = []
    t = 4 * f
    st += [f"v_cvt_pk_bf16_f32 v{t}, v{b0}, v{b0+1}", f"v_cvt_pk_bf16_f32 v{t+1}, v{b0+2}, v{b0+3}",
           f"v_cvt_pk_bf16_f32 v{t+2}, v{b1_}, v{b1_+1}", f"v_cvt_pk_bf16_f32 v{t+3}, v{b1_+2}, v{b1_+3}"]
    return st
UQW, UQR = V_T + 5, V_T + 4
def q_write(fs, tag): return [I_lds(f"ds_write_b128 v{UQW}, {vr(4*f,4)} offset:{(f - fs[0])*1024}", tag) for f in fs] + [I_wlg(tag)]
def q_read(fs, tag): return [I_lds(f"ds_read_b128 {vr(64+4*f,4)}, v{UQR} offset:{(f - fs[0])*1024}", tag) for f in fs] + [I_wlg(tag)]
R1, R2, R3 = list(range(0, 7)), list(range(7, 14)), [14, 15]
SG = lambda s: 4 * 7 * (s - 21)
st = [f"s_mul_i32 s{S_X1}, s{S_W}, 7168", f"s_xor_b32 s{S_X2}, s{S_W}, 1", f"s_mul_i32 s{S_X2}, s{S_X2}, 7168",
      f"v_lshlrev_b32 v{V_T+6}, 4, v{V_LANE}", f"v_add_u32 v{V_T+6}, {XREG}, v{V_T+6}",
      f"v_add_u32 v{UQW}, s{S_X1}, v{V_T+6}", f"v_add_u32 v{UQR}, s{S_X2}, v{V_T+6}"]
for f in R1: st += q_frag(f)
st += q_write(R1, "qw1")
place_stream(fg, st, SG(21) + 6, SG(22) - 1)
st = q_read(R1, "qr1")
for f in R2[:4]: st += q_frag(f)
place_stream(fg, st, SG(22) + 1, SG(23) - 1)
st = []
for f in R2[4:]: st += q_frag(f)
st += q_write(R2, "qw2")
place_stream(fg, st, SG(23) + 1, SG(24) - 1)
st = q_read(R2, "qr2")
for f in R3: st += q_frag(f)
place_stream(fg, st, SG(24) + 1, SG(25) - 1)
place_stream(fg, q_write(R3, "qw3"), SG(25) + 1, SG(26) - 1)
place_stream(fg, q_read(R3, "qr3"), SG(26) + 1, SG(26) + 12)
st = [f"v_and_b32 v{V_T}, 15, v{V_LANE}", f"v_lshrrev_b32 v{V_T+1}, 4, v{V_LANE}",
      f"s_mul_i32 s{S_X1}, s{S_C}, {BLK}", f"s_lshl_b32 s{S_X2}, s{S_C}, 8",
      f"v_mul_u32_u24 v{V_KA}, {UNIT}, v{V_T}", f"v_lshl_add_u32 v{V_KA}, v{V_T+1}, 4, v{V_KA}",
      f"v_add_u32 v{V_KA}, s{S_X1}, v{V_KA}",
      f"v_subrev_u32 v{V_KA2}, s{S_X2}, v{V_KA}", f"v_add_u32 v{V_KA}, s{S_X2}, v{V_KA}",
      f"v_lshl_add_u32 v{V_VA}, v{V_CC}, 3, v{V_ROWP}", f"v_add_u32 v{V_VA}, s{S_X1}, v{V_VA}", f"v_add_u32 v{V_VA}, {2*PS}, v{V_VA}"]
st += [f"v_mov_b32 v{V_NEG+i}, 0" for i in range(16)]
def _pfs():
    a(f"s_cmp_eq_u32 s{S_C}, 0")
    a(f"s_cselect_b32 s{S_B1}, s{S_K}, s{S_V}"); a(f"s_cselect_b32 s{S_B1+1}, s{S_K+1}, s{S_V+1}")
    a(f"s_mov_b32 s{S_B1+2}, 0x100000")
    a(f"s_mov_b32 s{S_TMP+3}, {(PFD-1)*0x8000}")
    a(f"s_mov_b32 s{S_W2}, s96"); a(f"s_mov_b32 s{S_W2+1}, s97"); a(f"s_mov_b32 s{S_W2+2}, 256")
    a(f"s_lshl_b32 s{S_X1}, s{S_T}, 10"); a(f"s_lshl_b32 s{S_X2}, s{S_A}, 9"); a(f"s_add_u32 s{S_X1}, s{S_X1}, s{S_X2}")
    a(f"v_lshlrev_b32 v226, 7, v{V_LANE}"); a(f"v_add_u32 v226, s{S_X1}, v226")
    a(f"v_cmp_lt_u32 vcc, 3, v{V_LANE}"); a(f"v_mov_b32 v227, 0x40000000"); a("s_nop 1")
    a(f"v_cndmask_b32 v226, v226, v227, vcc")
st += [It(8, _pfs, "v")]
place_stream(fg, st, SG(26) + 13, SG(28) - 1)

emit_groups(allg[:56], post=[(g["reads"], g["ring"]) for g in allg[56:59]])
stamp()
emit_groups(allg[56:168], pre_issued=LA, post=[(g["reads"], g["ring"]) for g in allg[168:171]])
dump_regs("hp", "v", HP, 32)
stamp()
if OPT["prefetch"] and OPT["kvpf"] == 2:
    for kind in ("k", "v"): prefetch(kind, GR)
emit_groups(allg[168:], pre_issued=LA, post=POSTA)
stamp()

def att_mf(p, f, czero=False):
    out = []
    for qb in range(4):
        if f < 16:
            kb, x = f // 8, f % 8
            S = V_S + (kb * 4 + qb) * 4
            out.append(mf16(vr(S, 4), vr(V_Q + (x * 4 + qb) * 4, 4), vr(V_NEG + 4 * qb, 4) if x == 0 else vr(S, 4)))
        else:
            o = ar(((f - 16) * 4 + qb) * 4, 4)
            out.append(mf16(o, vr(V_P + (p % 2) * 16 + 4 * qb, 4), "0" if czero else o))
    return out
def sm_stream(p, kb):
    st = []
    Pb = V_P + ((p + 1) % 2) * 16
    lo = V_L + (p % 2) * 4; ln = V_L + ((p + 1) % 2) * 4
    items = [(qb, r) for qb in range(4) for r in range(4)]
    n = len(items)
    T = lambda k: V_T + (k % 8)
    for k in range(n + 3):
        if k < n:
            qb, r = items[k]
            st.append(f"v_exp_f32 v{T(k)}, v{V_S + (kb*4+qb)*4 + r}")
        if 1 <= k <= n:
            qb, r = items[k - 1]
            src = lo + qb if (kb == 0 and r == 0) else ln + qb
            st.append(f"v_add_f32 v{ln + qb}, v{T(k-1)}, v{src}")
        if k >= 3 and (k - 3) % 2 == 0 and (k - 2) < n:
            j = k - 3
            qb, r = items[j]
            st.append(f"v_cvt_pk_bf16_f32 v{Pb + qb*4 + kb*2 + r//2}, v{T(j)}, v{T(j+1)}")
    return st
def rescale(p, first):
    lo = V_L + (p % 2) * 4
    a("s_nop 7"); a("s_nop 3")
    MX = V_T
    for qb in range(4):
        b0 = V_S + qb * 4; b1_ = V_S + (4 + qb) * 4
        a(f"v_max3_f32 v{MX+qb}, v{b0}, v{b0+1}, v{b0+2}")
    for qb in range(4):
        b0 = V_S + qb * 4; b1_ = V_S + (4 + qb) * 4
        a(f"v_max3_f32 v{MX+qb}, v{MX+qb}, v{b0+3}, v{b1_}")
    for qb in range(4):
        b0 = V_S + qb * 4; b1_ = V_S + (4 + qb) * 4
        a(f"v_max3_f32 v{MX+qb}, v{MX+qb}, v{b1_+1}, v{b1_+2}")
    for qb in range(4):
        b1_ = V_S + (4 + qb) * 4
        a(f"v_max_f32 v{MX+qb}, v{MX+qb}, v{b1_+3}")
    a("s_nop 0")
    xlane4("v_max_f32", [MX + q for q in range(4)], [V_T + 4 + q for q in range(4)])
    if not first:
        for qb in range(4): a(f"v_max_f32 v{MX+qb}, 0, v{MX+qb}")
    for qb in range(4):
        for kb in range(2):
            for r in range(4):
                a(f"v_sub_f32 v{V_S+(kb*4+qb)*4+r}, v{V_S+(kb*4+qb)*4+r}, v{MX+qb}")
        for r in range(4):
            a(f"v_sub_f32 v{V_NEG+qb*4+r}, v{V_NEG+qb*4+r}, v{MX+qb}")
    if not first:
        for qb in range(4): a(f"v_exp_f32 v{MX+qb}, -v{MX+qb}")
        a("s_nop 0")
        for qb in range(4): a(f"v_mul_f32 v{lo+qb}, v{lo+qb}, v{MX+qb}")
        for d in range(16):
            for qb in range(4):
                for r in range(4): a(f"v_accvgpr_read_b32 v{V_T+4+r}, a{(d*4+qb)*4+r}")
                a("s_nop 0")
                for r in range(4): a(f"v_mul_f32 v{V_T+4+r}, v{V_T+4+r}, v{MX+qb}")
                for r in range(4): a(f"v_accvgpr_write_b32 a{(d*4+qb)*4+r}, v{V_T+4+r}")
    for kb in range(2):
        st = sm_stream(p, kb)
        for i, x in enumerate(st):
            a(x)
            if x.startswith("v_exp") and i + 1 < len(st) and not st[i+1].startswith("v_exp"):
                dst = x.split()[1].rstrip(",")
                if dst in st[i+1]: a("s_nop 0")
    a("s_nop 1")
slow = []
V_PFO, V_PFD = 226, 227
S_PFS = S_B1; S_PFO = S_TMP + 3
def sm_place(gaps, p, g_s0, g_s1, g_end):
    Pb = V_P + ((p + 1) % 2) * 16
    lo = V_L + (p % 2) * 4; ln = V_L + ((p + 1) % 2) * 4
    items = [(kb, qb, r) for kb in range(2) for qb in range(4) for r in range(4)]
    NT = 8
    T = lambda k: V_T + (k % NT)
    E = [f"v_exp_f32 v{T(k)}, v{V_S + (kb*4+qb)*4 + r}" for k, (kb, qb, r) in enumerate(items)]
    A = []
    for k, (kb, qb, r) in enumerate(items):
        src = lo + qb if (kb == 0 and r == 0) else ln + qb
        A.append(f"v_add_f32 v{ln + qb}, v{T(k)}, v{src}")
    C = [f"v_cvt_pk_bf16_f32 v{Pb + items[2*j][1]*4 + items[2*j][0]*2 + items[2*j][2]//2}, v{T(2*j)}, v{T(2*j+1)}" for j in range(16)]
    e = a_ = c = 0
    egap = {}
    for g in range(g_s0, g_end + 1):
        G = gaps[g]
        while G.cap >= 4:
            ra = a_ < 32 and a_ < e and egap[a_] < g
            rc = c < 16 and 2*c + 1 < e and egap[2*c+1] < g
            can_e = e < 32 and G.cap >= 8 and not G.v and (e < 16 or g >= g_s1) and (e < NT or (a_ > e - NT and c > (e - NT) // 2))
            pending = (e - a_) + (e // 2 - c)
            remaining_gaps = g_end - g
            if can_e and (pending < 5 or not (ra or rc)):
                G.add(E[e]); egap[e] = g; e += 1; break
            elif rc and (c <= a_ // 2 or not ra):
                G.add(C[c]); c += 1
            elif ra:
                G.add(A[a_]); a_ += 1
            elif rc:
                G.add(C[c]); c += 1
            else: break
    G = gaps[g_end]
    while e < 32 or a_ < 32 or c < 16:
        if e < 32 and (e < NT or (a_ > e - NT and c > (e - NT) // 2)):
            G.add(E[e]); G.add("s_nop 0"); e += 1
        elif a_ < e: G.add(A[a_]); a_ += 1
        elif c < 16 and 2 * c + 1 < e: G.add(C[c]); c += 1
        else: raise AssertionError((e, a_, c))

def period(p, qk=True, pv=True, sm=True, dK=None, dV=None, wait30="s_waitcnt vmcnt(1)", post=None, lab="", pre_issued=LA,
           czero=False, extra=None, top0=None, dtag=None, pf=False, nobar=False, midbar=None, postbar=None, pre=None):
    fl = [f for f in range(32) if (f < 16 and qk) or (f >= 16 and pv)]
    n = len(fl)
    groups = [dict(reads=att_reads(p, f), mf=att_mf(p, f, czero), top=[], ring=RING_V) for f in fl]
    if top0: groups[0]["top"] = top0
    delay = {}
    inloop = lab in ("A", "B")
    if not nobar:
        groups[n - 2]["top"] = [wait30, "s_waitcnt lgkmcnt(0)", lambda: lg.ops.clear(), "s_barrier"]
        if inloop and OPT["x_nobar"] == 1: groups[n - 2]["top"] = ["s_waitcnt lgkmcnt(0)", lambda: lg.ops.clear()]
        if inloop and OPT["x_nobar"] == 2: groups[n - 2]["top"] = ["s_waitcnt lgkmcnt(0)", lambda: lg.ops.clear(), "s_barrier"]
        if postbar: groups[n - 2]["top"] = groups[n - 2]["top"] + [postbar]
        delay = {n: n - 2}
    if inloop and OPT["x_nodma"]: dK = dV = None
    if inloop and OPT["x_nopf"]: pf = False
    if inloop and OPT["x_nosm"]: sm = False
    if midbar is not None: groups[midbar]["top"] = groups[midbar]["top"] + ["s_barrier"]
    gaps = prep_groups(groups, pre_issued, post, delay)
    units = (dK or []) + (dV or [])
    if units: place_units(gaps, OPT["d0"], units, dtag, min(OPT["dstep"], (4 * n - 12) // len(units)))
    if pf:
        ins = f"buffer_load_dword v{V_PFD}, v{V_PFO}, s[{S_PFS}:{S_PFS+3}], s{S_PFO} offen"
        pos = min(4 * (n - 4), OPT["d0"] + 16 * OPT["dstep"] + 2)
        place_units(gaps, pos, [([f"s_add_u32 s{S_PFO}, s{S_PFO}, 0x8000"], ins)], "pf" if dtag else None, 1)
    if pre:
        for st, f0, f1 in pre: place_stream(gaps, st, f0, f1)
    if sm:
        sm_place(gaps, p, OPT["sm0a"], OPT["sm1a"], OPT["smend"])
        ln = V_L + ((p + 1) % 2) * 4
        tail = [f"v_max3_f32 v{V_T}, v{ln}, v{ln+1}, v{ln+2}", f"v_max_f32 v{V_T}, v{V_T}, v{ln+3}", f"v_cmp_lt_f32 vcc, s{S_THR}, v{V_T}"]
        for k, x in enumerate(tail): gaps[OPT["smend"] + 1 + k].add(x)
    if extra:
        for st, f0, f1 in extra: place_stream(gaps, st, f0, f1)
    emit_groups(groups, pre_issued=pre_issued, post=post, delay=delay)
    if sm:
        a(f"s_cbranch_vccnz L_slow{lab}")
        a.label(f"L_ret{lab}")
        slow.append((p, lab))
PR = lambda p, base=0: [(att_reads(p, base + i), RING_V) for i in range(LA)]

def store_stream(accreg, is_agpr, wsoff, tag, sreg, flags=""):
    st = [f"v_lshlrev_b32 v{V_T+6}, 4, v{V_LANE}",
          f"s_lshl_b32 s{sreg}, s{S_J}, 5", f"s_add_u32 s{sreg}, s{sreg}, s{S_T}",
          f"s_lshl_b32 s{sreg}, s{sreg}, 2", f"s_add_u32 s{sreg}, s{sreg}, s{S_W}",
          f"s_mul_i32 s{sreg}, s{sreg}, 14336", f"s_add_u32 s{sreg}, s{sreg}, {wsoff}"]
    return st
def store_body(accreg, is_agpr, tag, sreg, stage_regs, tmp, flags=""):
    st = []
    for s in range(14):
        nb, qp_ = s // 2, s % 2
        t = stage_regs + 4 * (s % 2)
        for hh in range(2):
            base = accreg + (nb * 4 + 2 * qp_ + hh) * 4
            if is_agpr:
                st += [f"v_accvgpr_read_b32 v{tmp+r}, a{base+r}" for r in range(4)] + ["s_nop 0"]
                src = tmp
            else: src = base
            st += [f"v_cvt_pk_bf16_f32 v{t+2*hh}, v{src}, v{src+1}", f"v_cvt_pk_bf16_f32 v{t+2*hh+1}, v{src+2}, v{src+3}"]
        st += [I_vm(f"buffer_store_dwordx4 {vr(t,4)}, v{V_T+6}, s[{S_WS}:{S_WS+3}], s{sreg} offen{flags}", tag), f"s_add_u32 s{sreg}, s{sreg}, 1024"]
    return st

top0 = [lambda: vm.wait(("st", 29)), "s_barrier"]
period(-1, qk=True, pv=False, sm=False, wait30=(lambda: vm.wait(("st", 30))), post=PR(0), top0=top0, dtag="kk")
for i in range(8): a(f"v_mov_b32 v{V_L+i}, 0")
n0 = len(a.lines)
rescale(-1, True)
rs = [l.strip() for l in a.lines[n0:]]; del a.lines[n0:]
def mp_items():
    VA = 225 if OPT['mp0'] else 252; TM = 228; sreg = S_X1
    st = [f"v_lshlrev_b32 v{VA}, 4, v{V_LANE}",
          f"s_lshl_b32 s{sreg}, s{S_J}, 5", f"s_add_u32 s{sreg}, s{sreg}, s{S_T}",
          f"s_lshl_b32 s{sreg}, s{sreg}, 2", f"s_add_u32 s{sreg}, s{sreg}, s{S_W}",
          f"s_mul_i32 s{sreg}, s{sreg}, 14336", f"s_add_u32 s{sreg}, s{sreg}, {MP_OFF}"]
    fl = ["", " sc1", " nt", " sc0 sc1"][OPT["mpf"]]
    for s_ in range(14):
        nb, qp_ = s_ // 2, s_ % 2
        t = 252 if OPT['mp0'] else V_P + 16 + 4 * (s_ % 2)
        for hh in range(2):
            base = GA + (nb * 4 + 2 * qp_ + hh) * 4
            st += [f"v_accvgpr_read_b32 v{TM+r}, a{base+r}" for r in range(4)]
            st += [f"v_cvt_pk_bf16_f32 v{t+2*hh}, v{TM}, v{TM+1}", f"v_cvt_pk_bf16_f32 v{t+2*hh+1}, v{TM+2}, v{TM+3}"]
        if OPT["x_b"] == 1: st += ["s_nop 3"]
        st += [I_vm(f"buffer_store_dwordx4 {vr(t,4)}, v{VA}, s[{S_WS}:{S_WS+3}], s{sreg} offen{fl}", "mp"), f"s_add_u32 s{sreg}, s{sreg}, 1024"]
        if OPT["x_b"] == 2: st += ["s_nop 3"]
    return st
mp = mp_items()
units = dma_kv("K", 0) + dma_kv("V", 3)
per = max(1, len(rs) // 17)
ui = 0
for k, x in enumerate(rs):
    if k % per == per - 1 and ui < len(units) and not x.startswith("s_nop"):
        sal, d = units[ui]; ui += 1
        for y in sal: a(y)
        a(x); vmem(d, "kv0")
    else:
        a(x)
while ui < len(units):
    sal, d = units[ui]; ui += 1
    for y in sal: a(y)
    a("s_nop 0"); vmem(d, "kv0")
if not OPT["mp0"]:
    for x in mp: do(x)
if OPT["prefetch"]: prefetch("wo", GR)
dump_regs("q", "v", V_Q, 128)
stamp()
PFL = OPT["kvpf"] == 3
W30 = "s_waitcnt vmcnt(1)" if PFL else "s_waitcnt vmcnt(0)"
S_DBG = S_W2
def mp_signal():
    a(f"s_cmp_lg_u32 s{S_W}, 0"); a("s_cbranch_scc1 L_mpsig")
    a(f"s_lshl_b32 s{S_X1}, s{S_T}, 8"); a(f"s_lshl_b32 s{S_X2}, s{S_J}, 2"); a(f"s_add_u32 s{S_X1}, s{S_X1}, s{S_X2}"); a(f"s_add_u32 s{S_X1}, s{S_X1}, {FLG_OFF}")
    a("s_mov_b64 exec, 1")
    a(f"v_mov_b32 v228, s{S_NONCE}"); a("v_mov_b32 v229, 0")
    a(f"buffer_store_dword v228, v229, s[{S_WS}:{S_WS+3}], s{S_X1} offen sc1")
    a("s_mov_b64 exec, -1")
    a.label("L_mpsig")
period(0, post=PR(1), lab="Z", czero=True, wait30=(lambda: vm.wait("kv0")), pf=PFL, dtag="pf0", pre=([(mp, 1, OPT["mp0"])] if OPT["mp0"] else None))
vm.ops = []
a(f"s_mov_b32 s{S_CNT}, 15")
a(".p2align 6")
a.label("L_loop")
sv = list(lg.ops)
period(1, dK=dma_kv("K", 1), dV=dma_kv("V", 2), post=PR(2), lab="A", pf=PFL, wait30=W30)
period(2, dK=dma_kv("K", 0), dV=dma_kv("V", 3), post=PR(3), lab="B", pf=PFL, wait30=W30)
assert len(lg.ops) == len(sv), (lg.ops, sv)
a(f"s_sub_u32 s{S_CNT}, s{S_CNT}, 1")
a(f"s_cmp_lg_u32 s{S_CNT}, 0")
a("s_cbranch_scc1 L_loop")
stamp()
mp_signal()
V_DWW = V_SC + 1
dma_voffsets("w")
op_dma = lambda s: dma_stage("OP", s, s % 4) if s < 16 else None
vm.ops = []
LF = V_L + 4 * ((30 + 1) % 2)
SCL = 16; SCP = 24
VA1, VA2, VMGW, VMGR, VL16 = 28, 29, 30, 31, 228
def stats_a():
    st = []
    vs = [LF + q for q in range(4)]; ts = [q for q in range(4)]
    for sw in ("v_permlane16_swap_b32", "v_permlane32_swap_b32"):
        st += [f"v_mov_b32 v{t}, v{v}" for v, t in zip(vs, ts)]
        st += [f"{sw} v{v}, v{t}" for v, t in zip(vs, ts)]
        st += [f"v_add_f32 v{v}, v{v}, v{t}" for v, t in zip(vs, ts)]
    for qb in range(4):
        st += [f"v_sub_f32 v{2*qb}, 0, v{V_NEG+4*qb}", f"v_mov_b32 v{2*qb+1}, v{LF+qb}"]
    st += [f"v_and_b32 v{VA2}, 15, v{V_LANE}", f"v_lshlrev_b32 v{VA2}, 3, v{VA2}",
           f"s_lshl_b32 s{S_X1}, s{S_W}, 9", f"s_add_u32 s{S_X1}, s{S_X1}, {ML}", f"v_add_u32 v{VA1}, s{S_X1}, v{VA2}",
           f"s_xor_b32 s{S_X1}, s{S_X1}, 512", f"v_add_u32 v{VA2}, s{S_X1}, v{VA2}"]
    st += [I_lds(f"ds_write_b64 v{VA1}, {vr(2*qb,2)} offset:{qb*128}", "mlw") for qb in range(4)]
    st += [I_wlg("mlw")]
    return st
def stats_b():
    st = [I_lds(f"ds_read_b64 {vr(8+2*qb,2)}, v{VA2} offset:{qb*128}", "mlr") for qb in range(4)]
    st += [f"v_lshlrev_b32 v{VL16}, 4, v{V_LANE}",
           f"s_lshl_b32 s{S_X1}, s{S_W}, 14", f"s_add_u32 s{S_X1}, s{S_X1}, {2*PS}", f"v_add_u32 v{VMGW}, s{S_X1}, v{VL16}",
           f"s_xor_b32 s{S_X2}, s{S_W}, 1", f"s_lshl_b32 s{S_X2}, s{S_X2}, 14", f"s_add_u32 s{S_X2}, s{S_X2}, {2*PS}", f"v_add_u32 v{VMGR}, s{S_X2}, v{VL16}"]
    st += [I_wlg("mlr")]
    st += [f"v_max_f32 v{20+qb}, v{2*qb}, v{8+2*qb}" for qb in range(4)]
    for qb in range(4): st += [f"v_sub_f32 v{2*qb}, v{2*qb}, v{20+qb}", f"v_sub_f32 v{8+2*qb}, v{8+2*qb}, v{20+qb}"]
    for qb in range(4): st += [f"v_exp_f32 v{2*qb}, v{2*qb}", f"v_exp_f32 v{8+2*qb}, v{8+2*qb}"]
    st += [f"v_mul_f32 v{2*qb+1}, v{2*qb+1}, v{2*qb}" for qb in range(4)]
    st += [f"v_fma_f32 v{2*qb+1}, v{9+2*qb}, v{8+2*qb}, v{2*qb+1}" for qb in range(4)]
    st += [f"v_rcp_f32 v{2*qb+1}, v{2*qb+1}" for qb in range(4)]
    st += [f"v_mul_f32 v{SCL+qb}, v{2*qb}, v{2*qb+1}" for qb in range(4)]
    st += [f"v_mul_f32 v{SCP+qb}, v{8+2*qb}, v{2*qb+1}" for qb in range(4)]
    return st
assert ML % 1024 == 0
period(1, qk=False, pv=True, sm=False, dK=op_dma(0), dV=op_dma(1), dtag=("s3", 1), nobar=True, pre_issued=0,
       extra=[(stats_a(), 1, 27), (stats_b(), 29, 63)], midbar=7)
stamp()

gstamp()
a("s_nop 7"); a("s_nop 3")
a("s_barrier")
gstamp()
OFR = 32
TS = 96
TK = 160
def bsel(reg):
    if reg % 2 == 0: return vr(reg, 2), "op_sel_hi:[1,0]", "op_sel_hi:[1,0,1]"
    return vr(reg - 1, 2), "op_sel:[0,1]", "op_sel:[0,1,0]"
def merge_variant(c):
    send0 = 8 * (1 - c); keep0 = 8 * c
    for rho in range(2):
        blocks = [(dl, qb) for dl in range(4) for qb in range(4)]
        for k, (dl, qb) in enumerate(blocks):
            sb = ((send0 + 4*rho + dl) * 4 + qb) * 4
            lds(f"ds_write_b128 v{VMGW}, {ar(sb,4)} offset:{k*1024}")
            kb_ = ((keep0 + 4*rho + dl) * 4 + qb) * 4
            t = TS + 4 * k
            for r in range(4): a(f"v_accvgpr_read_b32 v{t+r}, a{kb_+r}")
            pr, s2, s3 = bsel(SCL + qb)
            for r in (0, 2): a(f"v_pk_mul_f32 {vr(t+r,2)}, {vr(t+r,2)}, {pr} {s2}")
        if c == 0: gstamp()
        lg.wait_all()
        a("s_barrier")
        if c == 0: gstamp()
        for k in range(16): lds(f"ds_read_b128 {vr(TK+4*k,4)}, v{VMGR} offset:{k*1024}", ("mr", k // 2))
        for k2 in range(8):
            lg.wait(("mr", k2))
            for k in (2*k2, 2*k2+1):
                dl, qb = blocks[k]
                t = TS + 4 * k; u = TK + 4 * k
                pr, s2, s3 = bsel(SCP + qb)
                for r in (0, 2): a(f"v_pk_fma_f32 {vr(t+r,2)}, {vr(u+r,2)}, {pr}, {vr(t+r,2)} {s3}")
            for k in (2*k2, 2*k2+1):
                dl, qb = blocks[k]
                t = TS + 4 * k
                d = 4 * rho + dl
                o = OFR + ((d // 2) * 4 + qb) * 4 + (d % 2) * 2
                a(f"v_cvt_pk_bf16_f32 v{o}, v{t}, v{t+1}"); a(f"v_cvt_pk_bf16_f32 v{o+1}, v{t+2}, v{t+3}")
        if c == 0: gstamp()
        a("s_barrier")
sv = list(lg.ops)
a(f"s_cmp_eq_u32 s{S_C}, 0")
a("s_cbranch_scc0 L_mv1")
merge_variant(0)
a("s_branch L_mvd")
a.label("L_mv1")
lg.ops = list(sv)
merge_variant(1)
a.label("L_mvd")
for f in range(16): lds(f"ds_write_b128 v{VMGW}, {vr(OFR+4*f,4)} offset:{f*1024}")
a(f"v_add_u32 v{VL16}, {2*PS}, v{VL16}")
rowp_cc()
a(f"v_lshl_add_u32 v{V_AA[0]}, v{V_CC}, 3, v{V_ROWP}")
a(f"s_mul_i32 s{S_TMP}, s{S_A}, {BLK}"); a(f"s_mul_i32 s{S_TMP+1}, s{S_C}, 224"); a(f"s_add_u32 s{S_TMP}, s{S_TMP}, s{S_TMP+1}")
a(f"v_add_u32 v{V_AA[0]}, s{S_TMP}, v{V_AA[0]}")
a(f"v_add_u32 v{V_AA[1]}, {2*PS}, v{V_AA[0]}")
lg.wait_all()
gstamp()
a("s_barrier")
gstamp()
for f in range(64):
    lds(f"ds_read_b128 {ar(4*f,4)}, v{VL16} offset:{f*1024}")
    if f % 12 == 11: a("s_waitcnt lgkmcnt(4)"); lg.ops = lg.ops[-4:]
lg.wait_all()
vm.wait(("s3", 1))
a("s_barrier")
dump_regs("o", "a", 0, 256)
stamp(OPT["fine"] in (0, 2, 3))
emit_units(op_dma(2), ("s3", 2))
emit_units(op_dma(3), ("s3", 3))

ofrag = lambda ks, qb: ar((ks * 4 + qb) * 4, 4)
OA = 0
opacc = lambda nb, qb: vr(OA + (nb * 4 + qb) * 4, 4)
S_OUT = S_W1; S_B2 = S_WQ; S_FL = 8
S_MPOK = S_CNT; S_SH = S_KOFF; S_MASK = S_VOFF
S_PO = [S_BG1, S_BQP]; S_RO = [S_BG2, S_GKV]; S_BO = [S_LDSW, S_PFO]
VMP = 112; VG_G = 176; VXR = 192; VB2 = 200; VLN = 204; VXO = 205; VBO = 206
JS = 32 * PART
uid = [0]
def share_scalars(sh):
    for b in range(2):
        t0, t1, t2 = S_TMP, S_TMP + 1, S_TMP + 2
        a(f"s_mul_i32 s{t0}, s{sh}, 7"); a(f"s_add_u32 s{t0}, s{t0}, s{S_W}")
        if b: a(f"s_add_u32 s{t0}, s{t0}, 4")
        a(f"s_mul_i32 s{S_PO[b]}, s{S_T}, {PART}"); a(f"s_lshl_b32 s{t1}, s{t0}, 10"); a(f"s_add_u32 s{S_PO[b]}, s{S_PO[b]}, s{t1}")
        a(f"s_mul_hi_u32 s{t1}, s{t0}, 0x12492493")
        a(f"s_mul_i32 s{t2}, s{t1}, 14"); a(f"s_sub_u32 s{t2}, s{t0}, s{t2}")
        a(f"s_mul_i32 s{t1}, s{t1}, 112"); a(f"s_lshr_b32 s{t0}, s{t2}, 1"); a(f"s_lshl_b32 s{t0}, s{t0}, 4"); a(f"s_add_u32 s{t1}, s{t1}, s{t0}")
        a(f"s_lshl_b32 s{S_BO[b]}, s{t1}, 1")
        a(f"s_and_b32 s{t2}, s{t2}, 1"); a(f"s_lshl_b32 s{t2}, s{t2}, 5"); a(f"s_lshl_b32 s{t0}, s{S_T}, 6"); a(f"s_add_u32 s{t2}, s{t2}, s{t0}")
        a(f"s_mul_i32 s{t2}, s{t2}, 896"); a(f"s_add_u32 s{S_RO[b]}, s{t2}, s{S_BO[b]}")
        if b:
            a(f"s_cmp_lt_u32 s{S_W}, 3")
            for r_ in (S_PO[b], S_RO[b], S_BO[b]): a(f"s_cselect_b32 s{r_}, s{r_}, 0x40000000")
def load_mp(tag):
    for b in range(2):
        for jj in range(8):
            a(f"s_add_u32 s{S_SO}, s{S_PO[b]}, {MP_OFF + jj*JS}")
            vmem(f"buffer_load_dwordx4 {vr(VMP + (b*8+jj)*4,4)}, v{VLN}, s[{S_WS}:{S_WS+3}], s{S_SO} offen sc1", tag)
    for b in range(2):
        vmem(f"buffer_load_dwordx2 {vr(VXR+4*b,2)}, v{VXO}, s[{S_X}:{S_X+3}], s{S_RO[b]} offen", tag)
        a(f"s_add_u32 s{S_SO}, s{S_RO[b]}, 14336")
        vmem(f"buffer_load_dwordx2 {vr(VXR+4*b+2,2)}, v{VXO}, s[{S_X}:{S_X+3}], s{S_SO} offen", tag)
        vmem(f"buffer_load_dwordx2 {vr(VB2+2*b,2)}, v{VBO}, s[{S_B2}:{S_B2+3}], s{S_BO[b]} offen", tag)
def sum8(dst, src0, T0):
    for jj in range(8):
        for i in range(4):
            r = src0 + 4*jj + i
            if jj == 0:
                a(f"v_lshlrev_b32 v{dst+2*i}, 16, v{r}"); a(f"v_and_b32 v{dst+2*i+1}, 0xffff0000, v{r}")
            else:
                a(f"v_lshlrev_b32 v{T0}, 16, v{r}"); a(f"v_and_b32 v{T0+1}, 0xffff0000, v{r}")
                a(f"v_pk_add_f32 {vr(dst+2*i,2)}, {vr(dst+2*i,2)}, {vr(T0,2)}")
def calc_g():
    a(f"s_mov_b32 s{S_SO}, {f32(-math.log2(math.e))}")
    for b in range(2):
        g = VG_G + 8*b
        sum8(g, VMP + b*32, V_T)
        for i in range(2):
            a(f"v_lshlrev_b32 v{V_T+2+2*i}, 16, v{VB2+2*b+i}"); a(f"v_and_b32 v{V_T+3+2*i}, 0xffff0000, v{VB2+2*b+i}")
        for e in range(8): a(f"v_add_f32 v{g+e}, v{g+e}, v{V_T+2+e%4}")
        E = V_F + 8*b
        for e in range(8): a(f"v_mul_f32 v{E+e}, s{S_SO}, v{g+e}")
        for e in range(8): a(f"v_exp_f32 v{E+e}, v{E+e}")
        for e in range(8): a(f"v_add_f32 v{E+e}, 1.0, v{E+e}")
        for e in range(8): a(f"v_rcp_f32 v{E+e}, v{E+e}")
        a("s_nop 0")
        for e in range(8): a(f"v_mul_f32 v{g+e}, v{g+e}, v{E+e}")
def fin():
    VSP = 0
    for b in range(2):
        for jj in range(8):
            a(f"s_add_u32 s{S_SO}, s{S_PO[b]}, {SP_OFF + jj*JS}")
            a(f"buffer_load_dwordx4 {vr(VSP + (b*8+jj)*4,4)}, v{VLN}, s[{S_WS}:{S_WS+3}], s{S_SO} offen sc1")
    for b in range(2):
        a(f"s_waitcnt vmcnt({8 if b == 0 else 0})")
        sm_ = 64 + 8*b
        sum8(sm_, VSP + b*32, V_T)
        for hh in range(2):
            for i in range(2):
                a(f"v_lshlrev_b32 v{V_T+2}, 16, v{VXR+4*b+2*hh+i}"); a(f"v_and_b32 v{V_T+3}, 0xffff0000, v{VXR+4*b+2*hh+i}")
                e = 4*hh + 2*i
                a(f"v_fma_f32 v{sm_+e}, v{sm_+e}, v{VG_G+8*b+e}, v{V_T+2}"); a(f"v_fma_f32 v{sm_+e+1}, v{sm_+e+1}, v{VG_G+8*b+e+1}, v{V_T+3}")
        o = 80 + 4*b
        for hh in range(2):
            a(f"v_cvt_pk_bf16_f32 v{o+2*hh}, v{sm_+4*hh}, v{sm_+4*hh+1}"); a(f"v_cvt_pk_bf16_f32 v{o+2*hh+1}, v{sm_+4*hh+2}, v{sm_+4*hh+3}")
        a(f"buffer_store_dwordx2 {vr(o,2)}, v{VXO}, s[{S_OUT}:{S_OUT+3}], s{S_RO[b]} offen")
        a(f"s_add_u32 s{S_SO}, s{S_RO[b]}, 14336")
        a(f"buffer_store_dwordx2 {vr(o+2,2)}, v{VXO}, s[{S_OUT}:{S_OUT+3}], s{S_SO} offen")

op = gemm_groups("OP", 16, 0, opacc, ofrag, RING_V, V_AA, "s3", first_top=False)
def op_pre():
    srd(S_OUT, 94, 95, 1835008); srd(S_B2, 92, 93, 896)
    a(f"v_lshlrev_b32 v{VLN}, 4, v{V_LANE}")
    a(f"v_and_b32 v{V_T}, 15, v{V_LANE}"); a(f"v_lshrrev_b32 v{V_T+1}, 4, v{V_LANE}")
    a(f"v_mul_u32_u24 v{VXO}, 896, v{V_T}"); a(f"v_lshl_add_u32 v{VXO}, v{V_T+1}, 3, v{VXO}")
    a(f"v_lshlrev_b32 v{VBO}, 3, v{V_T+1}")
    a(f"s_lshl_b32 s{S_X1}, s{S_T}, 8"); a(f"s_add_u32 s{S_X1}, s{S_X1}, {FLG_OFF}")
    a(f"s_load_dwordx8 s[{S_FL}:{S_FL+7}], s[{S_WSP}:{S_WSP+1}], s{S_X1}")
def op_flag():
    a("s_waitcnt lgkmcnt(0)"); lg.ops.clear()
    a(f"s_mov_b32 s{S_X2}, 0")
    for k in range(8):
        a(f"s_xor_b32 s{S_FL+k}, s{S_FL+k}, s{S_NONCE}"); a(f"s_or_b32 s{S_X2}, s{S_X2}, s{S_FL+k}")
    a(f"s_cmp_eq_u32 s{S_X2}, {0 if not OPT['noearly'] else 99}")
    a(f"s_cselect_b32 s{S_MPOK}, 1, 0")
    share_scalars_x(S_J)
def share_scalars_x(sh):
    share_scalars(sh)
op[7 * 9]["top"].append(op_pre)
op[7 * 12]["top"].append(op_flag)
opgaps = prep_groups(op)
gemm_dma(op, opgaps, op_dma, "s3", skip=(3,))
st = []
for b in range(2):
    for jj in range(8):
        st += [f"s_add_u32 s{S_X2}, s{S_PO[b]}, {MP_OFF + jj*JS}",
               I_vm(f"buffer_load_dwordx4 {vr(VMP + (b*8+jj)*4,4)}, v{VLN}, s[{S_WS}:{S_WS+3}], s{S_X2} offen sc1", "mpl")]
for b in range(2):
    st += [I_vm(f"buffer_load_dwordx2 {vr(VXR+4*b,2)}, v{VXO}, s[{S_X}:{S_X+3}], s{S_RO[b]} offen", "mpl"),
           f"s_add_u32 s{S_X2}, s{S_RO[b]}, 14336",
           I_vm(f"buffer_load_dwordx2 {vr(VXR+4*b+2,2)}, v{VXO}, s[{S_X}:{S_X+3}], s{S_X2} offen", "mpl"),
           I_vm(f"buffer_load_dwordx2 {vr(VB2+2*b,2)}, v{VBO}, s[{S_B2}:{S_B2+3}], s{S_BO[b]} offen", "mpl")]
if OPT["mpin"]: place_stream(opgaps, st, 4 * 7 * 13 + 1, 4 * 7 * 16 - 1)
emit_groups(op)
stamp(); hstamp()
a("s_nop 7"); a("s_nop 1")
for x in store_stream(OA, False, SP_OFF, "sp", S_X1) + store_body(OA, False, "sp", S_X1, V_F, V_T + 4, " sc1"): do(x)
hstamp()
vm.wait("sp")
hstamp()
a("s_barrier")
hstamp()
a(f"s_cmp_lg_u32 s{S_W}, 0"); a("s_cbranch_scc1 L_posted")
a(f"s_lshl_b32 s{S_X1}, s{S_T}, 2")
a(f"s_lshl_b32 s{S_X2}, s{S_T}, 8"); a(f"s_add_u32 s{S_X2}, s{S_X2}, {FLG_OFF + 128}")
a("s_mov_b64 exec, 1")
a(f"s_lshl_b32 s{S_TMP}, s{S_J}, 2"); a(f"v_mov_b32 v2, s{S_TMP}"); a(f"v_mov_b32 v4, s{S_NONCE}")
a(f"buffer_store_dword v4, v2, s[{S_WS}:{S_WS+3}], s{S_X2} offen sc1")
a("v_mov_b32 v0, 1"); a("v_mov_b32 v1, 0")
a(f"buffer_atomic_add v0, v1, s[{S_DBG}:{S_DBG+3}], s{S_X1} offen sc0")
a("s_mov_b64 exec, -1")
a.label("L_posted")
if not OPT["mpin"]:
    load_mp("mpl")
    a("s_waitcnt vmcnt(0)")
calc_g()
hstamp()
a(f"s_cmp_lg_u32 s{S_W}, 0"); a("s_cbranch_scc1 L_sync_done")
a(f"v_lshlrev_b32 v3, 2, v{V_LANE}")
a(f"s_lshl_b32 s{S_MASK}, 1, s{S_J}")
a(f"s_mov_b32 s{S_TMP+2}, {OPT['polls']}")
a("s_mov_b64 exec, 0xff")
a.label("L_poll")
a(f"s_cmp_eq_u32 s{S_TMP+2}, 0"); a("s_cbranch_scc1 L_abandon")
a(f"buffer_load_dword v5, v3, s[{S_WS}:{S_WS+3}], s{S_X2} offen sc1")
a("s_waitcnt vmcnt(0)")
a(f"v_cmp_eq_u32 vcc, s{S_NONCE}, v5")
a("s_nop 4")
a("s_cmp_eq_u64 vcc, 0xff"); a("s_cbranch_scc1 L_polled")
a(f"s_sub_u32 s{S_TMP+2}, s{S_TMP+2}, 1")
a(f"s_sleep {OPT['slp']}")
a("s_branch L_poll")
a.label("L_abandon")
a("s_mov_b64 exec, 1")
a("s_waitcnt vmcnt(0)")
a(f"v_readfirstlane_b32 s{S_TMP}, v0")
a(f"s_and_b32 s{S_TMP}, s{S_TMP}, 0xff")
a(f"s_cmp_eq_u32 s{S_TMP}, 7"); a("s_cbranch_scc1 L_polled")
a(f"s_add_u32 s{S_TMP+1}, s{S_J}, 8"); a(f"s_lshl_b32 s{S_TMP+1}, 1, s{S_TMP+1}")
a(f"v_mov_b32 v6, s{S_TMP+1}")
a(f"buffer_atomic_or v6, v1, s[{S_DBG}:{S_DBG+3}], s{S_X1} offen sc0")
a("s_waitcnt vmcnt(0)")
a(f"v_readfirstlane_b32 s{S_TMP}, v6")
a(f"s_and_b32 s{S_TMP}, s{S_TMP}, 0xff")
a(f"s_cmp_eq_u32 s{S_TMP}, 8")
a(f"s_cselect_b32 s{S_MASK}, s{S_MASK}, 0")
a("s_branch L_decided")
a.label("L_polled")
a("s_mov_b64 exec, 1")
a(f"v_readfirstlane_b32 s{S_TMP}, v0")
a(f"s_and_b32 s{S_TMP+1}, s{S_TMP}, 0xff")
a(f"s_cmp_eq_u32 s{S_TMP+1}, 7"); a("s_cbranch_scc0 L_decided")
a(f"s_bfe_u32 s{S_TMP+1}, s{S_TMP}, 0x80008"); a(f"s_or_b32 s{S_MASK}, s{S_MASK}, s{S_TMP+1}")
a.label("L_decided")
a(f"v_mov_b32 v0, s{S_MASK}"); a(f"v_mov_b32 v1, {XREG}")
a("ds_write_b32 v1, v0")
a("s_waitcnt lgkmcnt(0)")
a("s_mov_b64 exec, -1")
a.label("L_sync_done")
a("s_barrier")
a(f"v_mov_b32 v1, {XREG}")
a("ds_read_b32 v0, v1")
a("s_waitcnt lgkmcnt(0)")
a(f"v_readfirstlane_b32 s{S_MASK}, v0")
hstamp()
a.label("L_shares")
a(f"s_cmp_eq_u32 s{S_MASK}, 0"); a("s_cbranch_scc1 L_fin_done")
a(f"s_ff1_i32_b32 s{S_SH}, s{S_MASK}")
a(f"s_bitset0_b32 s{S_MASK}, s{S_SH}")
a(f"s_cmp_eq_u32 s{S_SH}, s{S_J}"); a(f"s_cselect_b32 s{S_X1}, s{S_MPOK}, 0")
a(f"s_cmp_eq_u32 s{S_X1}, 1"); a("s_cbranch_scc1 L_haveg")
share_scalars(S_SH)
load_mp("mpl2")
a("s_waitcnt vmcnt(0)")
calc_g()
a(f"s_mov_b32 s{S_MPOK}, 0")
a.label("L_haveg")
fin()
a("s_branch L_shares")
a.label("L_fin_done")
hstamp()
vm.ops = []
if OPT["stamps"]:
    a("s_waitcnt vmcnt(0) lgkmcnt(0)")
    stamp(OPT["fine"] != 4)
    a("s_waitcnt lgkmcnt(0)")
    a(f"s_cmp_lg_u32 s{S_W}, {OPT['swave']}"); a("s_cbranch_scc1 L_end")
    a(f"s_lshl_b32 s{S_TMP}, s2, 7"); a(f"s_add_u32 s{S_TMP}, s{S_TMP}, {STAMP_OFF}")
    a("v_mov_b32 v20, 0")
    a("v_mov_b32 v0, s98")
    for i in range(15): a(f"v_mov_b32 v{i+1}, s{S_ST+2*min(i, nstamp[0]-1)}")
    for q in range(4): a(f"buffer_store_dwordx4 {vr(4*q,4)}, v20, s[{S_WS}:{S_WS+3}], s{S_TMP} offen offset:{16*q}")
a.label("L_end")
a("s_endpgm")
for p, lab in slow:
    a.label(f"L_slow{lab}")
    rescale(p, False)
    a(f"s_branch L_ret{lab}")
main_text = a.text()

KMAIN = NAME + "_kernel"
src = HEADER_COMMENT
src += """; Fused kernel, one workgroup per (64-token tile t = id>>3, KV head j = id&7), 4 waves, 16x16x32 bf16 MFMA throughout.
;   LayerNorm (two-pass, fp32) -> MLP slice GEMM1+GELU -> Q projection -> MLP slice GEMM2 (partial, bf16, ws)
;   -> merge of the two key halves -> O projection (partial, bf16, ws) -> cross-workgroup reduction of the 8 partials
;   (flags tagged with a per-launch nonce, bounded polling, last arriver finishes abandoned shares) -> x + s*silu(mlp).
;   Weights / K / V are streamed global->LDS by DMA into a 4-slot ring; generated by a scheduling script.
"""
src += f"; @launch grid=(256,1,1) block=(256,1,1) lds={LDS_TOTAL}\n"
src += '.amdgcn_target "amdgcn-amd-amdhsa--gfx950"\n.text\n'
src += kernel_begin(KMAIN) + main_text
src += kernel_desc(KMAIN, 512, 102, 256)
open(sys.argv[1], "w").write(src)
```

```python
import sys, math, struct
from asmlib import Asm, NAME, HEADER_COMMENT, kernel_begin, kernel_desc, vr, ar

OPT = dict(x_b=0, x_nat=0, ew=1, dpos=0, x_g=0, mpin=1, slp=4, polls=64, noearly=0, xdma=0, swave=0, fine=0, cpf=1, tlbw=0, pfpos=3, gcap=12, tt=1, xs=1, mpf=1, spf=1, x_nodma=0, x_nobar=0, x_nosm=0, x_nopf=0, x_nolg0=0, d0=2, sm1a=68, smend=123, W=2, dstep=4, pfd=6, qlsc=0, kvpf=3, gelu_end=11, gran=128, stamps=0, prefetch=1, thr=0x4f800000, dump="", sm0a=36, sm0b=76, sm1b=120, kstep=6, vstep=3)
for x in sys.argv[2:]:
    k, v = x.split("=")
    OPT[k] = int(v, 0) if k != "dump" else v

def f32(x):
    return "0x%08x" % struct.unpack("<I", struct.pack("<f", x))[0]

UNIT = 1056; BLK = 16 * UNIT; PS = 2 * BLK
XREG = 4 * PS
LDS_TOTAL = 163840
STATS = XREG
HL = XREG
ML = XREG
SP_OFF = 0
MP_OFF = 0x1000000
QX_OFF = 0x1E00000
QX_OFF = 0x2000000
FLG_OFF = 0x2000000
PART = 57344
DUMP_OFF = 0x3000000
STAMP_OFF = 0x7000000
WS_SIZE = 0x8000000

S_W = 3; S_WSP = 4
S_K, S_V, S_X, S_WQ, S_WO, S_W1, S_W2, S_WS, S_B1 = 8, 12, 16, 20, 24, 28, 32, 36, 40
S_J, S_T = 44, 45
S_LDSW = 46; S_GKV = 47
S_KOFF, S_VOFF = 48, 49
S_SO = 50; S_CNT = 51; S_THR = 52
S_A, S_C = 53, 54
S_TMP = 55
S_BG1, S_BQP, S_BG2, S_BOP = 60, 61, 62, 63
S_M0 = 64
S_ST = 68
S_X1 = 100; S_X2 = 101
S_NONCE = 59

V_Q = 0; V_S = 128; V_P = 160; V_NEG = 192; V_F = 208; V_SC = 224; V_T = 232; V_L = 240
V_KA2 = 246 + 0
V_KA2 = 224
V_KA = 248; V_VA = 249; V_DO = 250; V_LANE = 251
V_AA = [252, 253]; V_DW1 = 254; V_DWQ = 255; V_DWW = 247
V_B4 = 240
V_ROWP, V_CC = 244, 245
A_PF = 255
A_BIAS = 224

a = Asm()

class Tracker:
    def __init__(self, name, maxc): self.ops = []; self.name = name; self.maxc = maxc
    def issue(self, tag): self.ops.append(tag)
    def count(self, tag):
        idx = max([i for i, t in enumerate(self.ops) if t == tag], default=None)
        return None if idx is None else len(self.ops) - 1 - idx
    def wait(self, tag):
        n = self.count(tag)
        if n is None: return
        a(f"s_waitcnt {self.name}({min(n, self.maxc)})")
        n = min(n, self.maxc)
        self.ops = self.ops[len(self.ops) - n:] if n > 0 else []
    def wait_all(self):
        a(f"s_waitcnt {self.name}(0)"); self.ops = []
vm = Tracker("vmcnt", 63)
lg = Tracker("lgkmcnt", 15)
def vmem(ins, tag): a(ins); vm.issue(tag)
def lds(ins, tag="x"): a(ins); lg.issue(tag)

class It:
    def __init__(self, cost, fn, kind="m"): self.cost = cost; self.fn = fn; self.kind = kind
def kind_of(x):
    if isinstance(x, It): return x.kind
    op = x.split()[0]
    if op.startswith("s_"): return "s"
    if op.startswith(("ds_", "buffer_", "global_")): return "m"
    return "v"
def cost(x):
    if isinstance(x, It): return x.cost
    op = x.split()[0]
    if op.startswith("s_"): return 0
    if op.startswith(("v_exp", "v_log", "v_rcp", "v_rsq", "v_sqrt")): return 8
    if op.startswith("buffer_"): return 8
    return 4
def do(x):
    if isinstance(x, It): x.fn()
    elif callable(x): x()
    else: a(x)
def I_vm(ins, tag): return It(8, lambda: vmem(ins, tag), "m")
def I_lds(ins, tag="x"): return It(8 if "write" in ins else 4, lambda: lds(ins, tag), "m")
def I_wvm(tag): return It(0, lambda: vm.wait(tag), "s")
def I_wlg(tag): return It(0, lambda: lg.wait(tag), "s")

class Gap:
    def __init__(self): self.s = []; self.m = []; self.v = []; self.cap = 8
    def add(self, x, force=False):
        k = kind_of(x); c = cost(x)
        if k == "s":
            if self.v: self.v.append(x)
            elif self.m and getattr(self, "strict", False): self.m.append(x)
            else: self.s.append(x)
        elif k == "m":
            if self.v: self.v.append(x)
            else: self.m.append(x)
        else: self.v.append(x)
        self.cap -= c
    def items(self): return self.s + self.m + self.v

def place_stream(gaps, stream, first, last):
    idxs = list(range(first, last + 1))
    free = sum(max(gaps[g].cap, 0) for g in idxs)
    need = sum(cost(x) for x in stream)
    ratio = min(1.0, need / max(free, 1))
    k = 0; used = 0.0; budget = 0.0
    for j, g in enumerate(idxs):
        G = gaps[g]; G.strict = True
        budget += max(G.cap, 0) * ratio + 1e-9
        lastg = j == len(idxs) - 1
        while k < len(stream):
            x = stream[k]; c = cost(x)
            if lastg or c == 0 or (c <= G.cap and used + c <= budget + 4):
                if kind_of(x) == "m" and G.v and not lastg: break
                G.add(x); used += c; k += 1
            else: break
    assert k == len(stream), (k, len(stream))

KMAIN = "fused_main_kernel"; KFIN = "fused_final_kernel"
nstamp = [0]
def fstamp():
    if OPT["fine"] == 1: stamp(True)
def gstamp():
    if OPT["fine"] == 2: stamp(True)
def hstamp():
    if OPT["fine"] == 3: stamp(True)
def stamp(force=False):
    if not OPT["stamps"]: return
    if OPT["fine"] == 1 and not force and nstamp[0] >= 3: return
    if OPT["fine"] == 1 and force and nstamp[0] >= 15: return
    if OPT["fine"] in (2, 3) and not force: return
    i = nstamp[0]; nstamp[0] += 1
    assert i < 12, i
    a(f"s_memtime s[{S_ST+2*i}:{S_ST+2*i+1}]")
def srd(base, lo, hi, size):
    a(f"s_mov_b32 s{base}, s{lo}"); a(f"s_mov_b32 s{base+1}, s{hi}")
    a(f"s_mov_b32 s{base+2}, {size}"); a(f"s_mov_b32 s{base+3}, 0x20000")
def reg(spec, off, n):
    kind, base = spec
    return (vr if kind == "v" else ar)(base + off, n)

def dma_stage(kind, s, ps):
    out = []
    if kind in ("G1", "QP"):
        rs = 3584 if kind == "G1" else 8192
        sr_ = S_W1 if kind == "G1" else S_WQ
        base = S_BG1 if kind == "G1" else S_BQP
        vo = V_DW1 if kind == "G1" else V_DWQ
        for k in range(8):
            rho = 8 * (k >> 2) + (k & 3)
            rows = (64 * s if kind == "G1" else 32 * s) + rho
            out.append(([f"s_add_u32 s{S_SO}, s{base}, {rows * rs}", f"s_add_u32 m0, s{S_M0+ps}, {k*UNIT}"],
                        f"buffer_load_dwordx4 v{vo}, s[{sr_}:{sr_+3}], s{S_SO} offen lds"))
    else:
        sr_ = S_W2 if kind == "G2" else S_WO
        base = S_BG2 if kind == "G2" else S_BOP
        for k in range(8):
            sal = []
            if k % 4 == 0: sal.append(f"s_add_u32 s{S_SO}, s{base}, {(32 * s + k) * 896}")
            sal.append(f"s_add_u32 m0, s{S_M0+ps}, {k*UNIT - 896*(k%4)}")
            out.append((sal, f"buffer_load_dwordx4 v{V_DWW}, s[{sr_}:{sr_+3}], s{S_SO} offen offset:{896*(k%4)} lds"))
    return out
def dma_kv(which, ps):
    sr_ = S_K if which == "K" else S_V
    so = S_KOFF if which == "K" else S_VOFF
    out = []
    for k in range(8):
        sal = [f"s_add_u32 s{so}, s{so}, 0x8000", f"s_mov_b32 m0, s{S_M0+ps}"] if k == 0 else ["s_add_u32 m0, m0, 544"]
        out.append((sal, f"buffer_load_dwordx4 v{V_DO}, s[{sr_}:{sr_+3}], s{so} offen offset:{512*k} lds"))
    return out
def emit_units(units, tag):
    for sal, d in units:
        for x in sal: a(x)
        a("s_nop 0")
        vmem(d, tag)
def stage_dma(gs):
    if gs < 7: return dma_stage("G1", gs, gs % 4)
    if gs < 21: return dma_stage("QP", gs - 7, gs % 4)
    if gs < 28: return dma_stage("G2", gs - 21, gs % 4)
    if gs == 28: return dma_kv("K", 0)
    if gs == 29: return dma_kv("K", 1)
    if gs == 30: return dma_kv("V", 2)
    return None

LA = 3; R = 4
gctr = [0]
def read_sched(groups, post, delay, pre_issued):
    n = len(groups); post = post or []; delay = delay or {}
    sched = {}
    for i in range(pre_issued, n + LA):
        G = delay.get(i, i - LA)
        rs = groups[i]["reads"] if i < n else (post[i - n][0] if i - n < len(post) else [])
        for k in range(len(rs)): sched.setdefault(G, []).append((i, k))
    return sched
def rgap(g, j):
    if g.get("stage") is not None and OPT["tt"]: return min(j // 2, 3)
    return min(j, 3)
def prep_groups(groups, pre_issued=0, post=None, delay=None):
    sched = read_sched(groups, post, delay, pre_issued)
    for G, g in enumerate(groups):
        g["gaps"] = [Gap() for _ in range(4)]
        if g.get("stage") is not None:
            for gp in g["gaps"]: gp.cap = OPT["gcap"]
        for q, _ in enumerate(sched.get(G, [])): g["gaps"][rgap(g, q)].cap -= 4
    return [gp for g in groups for gp in g["gaps"]]
def emit_groups(groups, pre_issued=0, post=None, delay=None, W=None):
    n = len(groups)
    post = post or []
    W = W or OPT["W"]
    G0 = gctr[0]
    def info(i):
        if i < n: return groups[i]["reads"], groups[i]["ring"]
        return post[i - n] if i - n < len(post) else ([], None)
    def fmt(x, i, ring):
        o = 4 * ((G0 + i) % R)
        return x.format(r=reg(ring, o, 4), r0=reg(ring, o, 2), r1=reg(ring, o + 2, 2), A=reg(ring, o, 4))
    sched = read_sched(groups, post, delay, pre_issued)
    def issue(i, k):
        rs, ring = info(i)
        lds(fmt(rs[k], i, ring), ("f", G0 + i))
    for G in sorted(g for g in sched if g < 0):
        for (i, k) in sched[G]: issue(i, k)
    for i, g in enumerate(groups):
        for x in g.get("top", []): do(x)
        if W == 2 and (G0 + i) % 2 == 0 and i + 1 < n and lg.count(("f", G0 + i + 1)) is not None and not groups[i + 1].get("top"):
            lg.wait(("f", G0 + i + 1))
        lg.wait(("f", G0 + i))
        rl = sched.get(i, [])
        for q, m in enumerate(g["mf"]):
            a(fmt(m, i, g["ring"]))
            gp = g["gaps"][q]
            if q == 3 and OPT["ew"] and i + 1 < n and not groups[i + 1].get("top"):
                j = i + 1
                if W == 2 and (G0 + j) % 2 == 0 and j + 1 < n and lg.count(("f", G0 + j + 1)) is not None and not groups[j + 1].get("top"):
                    lg.wait(("f", G0 + j + 1))
                lg.wait(("f", G0 + j))
            for x in gp.s: do(x)
            for j, (ii, k) in enumerate(rl):
                if rgap(g, j) == q: issue(ii, k)
            for x in gp.m + gp.v: do(x)
    gctr[0] += n

def place_units(gaps, pos, units, tag, step):
    for sal, d in units:
        while gaps[pos].cap < 8: pos += 1
        tgt = gaps[pos - 1]
        assert not tgt.v
        for x in sal: (tgt.m if tgt.m else tgt.s).append(x)
        gaps[pos].add(I_vm(d, tag) if tag is not None else d)
        pos += step
def trd(aa, off):
    return [f"ds_read_b64_tr_b16 {{r0}}, v{aa} offset:{off}", f"ds_read_b64_tr_b16 {{r1}}, v{aa} offset:{off+512}"]
def mf16(d, b, c): return f"v_mfma_f32_16x16x32_bf16 {d}, {{A}}, {b}, {c}"

def gemm_groups(kind, nstage, gs0, accf, bf, ring, aa, tagp, first_top=True):
    groups = []
    for s in range(nstage):
        gs = gs0 + s; ps = gs % 4
        av = aa[ps // 2]; pso = (ps % 2) * PS
        first = len(groups)
        if kind == "G1": items = [(pso + blk * BLK + fb * 32, fb, 2 * s + blk) for blk in range(2) for fb in range(4)]
        elif kind == "QP": items = [(pso + ((db // 2) * 64 + (db % 2) * 8 if not OPT["x_nat"] else db * 32), db, s) for db in range(8)]
        else: items = [(pso + nb * 32, nb, s) for nb in range(7)]
        for off, blk, ks in items:
            groups.append(dict(reads=trd(av, off), ring=ring, stage=gs, first=(len(groups) == first),
                               mf=[mf16(accf(blk, qb), bf(ks, qb), accf(blk, qb) if ks > 0 else "0") for qb in range(4)], top=[]))
        if s > 0 or first_top:
            groups[first]["top"] = [lambda gs=gs: vm.wait((tagp, gs + 1)), "s_barrier"]
    return groups
def gemm_dma(groups, gaps, dmaf, tagp, skip=()):
    for G, g in enumerate(groups):
        if g.get("first"):
            gs = g["stage"]
            if (gs + 3) in skip: continue
            units = dmaf(gs + 3)
            if not units: continue
            ng = sum(1 for x in groups if x["stage"] == gs)
            dq = 1 if OPT["tt"] else 2
            if OPT["dpos"] == 0:
                pos = [4 * (G + i) + dq for i in range(ng)]
                if ng < len(units): pos = sorted(pos + [4 * (G + 3) + dq + 1])
            elif OPT["dpos"] == 1:
                pos = [4 * (G + i) + q for i in range(4) for q in (1, 3)]
            elif OPT["dpos"] == 2:
                pos = [4 * G + x for x in (1, 3, 5, 9, 11, 13, 17, 21)]
            else:
                pos = [4 * G + x for x in (1, 3, 6+1, 9, 11, 15, 17, 19)]
            for u, p_ in zip(units, pos): place_units(gaps, p_, [u], (tagp, gs + 3), 1)

def xlane(op, v, t):
    for sw in ("v_permlane16_swap_b32", "v_permlane32_swap_b32"):
        a(f"v_mov_b32 v{t}, v{v}"); a("s_nop 1")
        a(f"{sw} v{v}, v{t}"); a("s_nop 1")
        a(f"{op} v{v}, v{v}, v{t}")
def xlane4(op, vs, ts):
    for sw in ("v_permlane16_swap_b32", "v_permlane32_swap_b32"):
        for v, t in zip(vs, ts): a(f"v_mov_b32 v{t}, v{v}")
        for v, t in zip(vs, ts): a(f"{sw} v{v}, v{t}")
        for v, t in zip(vs, ts): a(f"{op} v{v}, v{v}, v{t}")
def round_bf16(v, t):
    a(f"v_cvt_pk_bf16_f32 v{t}, v{v}, v{v}")
    a(f"v_lshlrev_b32 v{v}, 16, v{t}")

def dump_regs(name, kind, base, n):
    if OPT["dump"] != name: return
    a("s_nop 7"); a("s_nop 7"); a("s_waitcnt vmcnt(0) lgkmcnt(0)")
    a(f"s_lshl_b32 s{S_TMP}, s2, 2"); a(f"s_add_u32 s{S_TMP}, s{S_TMP}, s{S_W}")
    a(f"s_mul_i32 s{S_TMP}, s{S_TMP}, {n*256}")
    a(f"s_add_u32 s{S_TMP}, s{S_TMP}, {DUMP_OFF}")
    a(f"v_lshlrev_b32 v{V_T+7}, 2, v{V_LANE}")
    for i in range(n):
        if kind == "a":
            a(f"v_accvgpr_read_b32 v{V_T+6}, a{base+i}"); src = V_T + 6
        else: src = base + i
        a(f"buffer_store_dword v{src}, v{V_T+7}, s[{S_WS}:{S_WS+3}], s{S_TMP} offen")
        a(f"s_add_u32 s{S_TMP}, s{S_TMP}, 256")
        if kind == "a": a("s_waitcnt vmcnt(0)")
    a("s_waitcnt vmcnt(0)")
    a("s_endpgm")

a("s_cmp_ge_u32 s2, 256")
a("s_cbranch_scc1 L_end")
a("s_load_dwordx2 s[16:17], s[0:1], 0")
if OPT["stamps"]: a("s_memtime s[98:99]")
a(f"v_lshrrev_b32 v{V_T}, 6, v0")
a(f"v_and_b32 v{V_LANE}, 63, v0")
a(f"v_readfirstlane_b32 s{S_W}, v{V_T}")
VQ_, VG_ = V_T + 1, V_T + 2
a(f"v_and_b32 v{VQ_}, 15, v{V_LANE}")
a(f"v_lshrrev_b32 v{VG_}, 4, v{V_LANE}")
a(f"s_lshr_b32 s{S_T}, s2, 3")
a(f"v_mul_u32_u24 v{V_T+3}, 896, v{VQ_}")
a(f"s_lshl_b32 s{S_TMP}, s{S_T}, 2"); a(f"s_add_u32 s{S_TMP}, s{S_TMP}, s{S_W}")
a(f"v_lshl_add_u32 v{V_T+3}, v{VG_}, 4, v{V_T+3}")
a(f"s_mul_i32 s{S_TMP}, s{S_TMP}, {16*896}")
a(f"s_mov_b32 s{S_X+2}, 1835008"); a(f"s_mov_b32 s{S_X+3}, 0x20000")
a("s_waitcnt lgkmcnt(0)")
XR = 0
if OPT["xdma"]:
    a(f"s_lshl_b32 s{S_TMP+1}, s{S_W}, 10"); a(f"s_add_u32 s{S_TMP+1}, s{S_TMP+1}, {2*PS}")
    for ks in range(14):
        a(f"s_add_u32 m0, s{S_TMP+1}, {ks*4096 - 64*ks}")
        a("s_nop 0")
        vmem(f"buffer_load_dwordx4 v{V_T+3}, s[{S_X}:{S_X+3}], s{S_TMP} offen offset:{64*ks} lds", "x")
else:
    for ks in range(14):
        vmem(f"buffer_load_dwordx4 {vr(XR+4*ks,4)}, v{V_T+3}, s[{S_X}:{S_X+3}], s{S_TMP} offen offset:{64*ks}", "x")
a("s_load_dwordx16 s[68:83], s[0:1], 0")
a("s_load_dwordx2 s[84:85], s[0:1], 64")
a("s_load_dwordx2 s[4:5], s[0:1], 96")
a("s_load_dwordx4 s[92:95], s[0:1], 72")
a("s_load_dwordx2 s[96:97], s[0:1], 88")
if OPT["cpf"]:
    a("s_getpc_b64 s[6:7]")
    a.label("L_pc0")
    a(f"s_sub_u32 s6, s6, L_pc0-{NAME}_kernel"); a("s_subb_u32 s7, s7, 0")
    a(f"s_lshl_b32 s{S_TMP+1}, s{S_T}, 11")
    a(f"v_lshlrev_b32 v{V_T+4}, 9, v{V_T}")
    a(f"v_and_b32 v{V_T+5}, 3, v{V_LANE}"); a(f"v_lshl_add_u32 v{V_T+4}, v{V_T+5}, 7, v{V_T+4}")
    a(f"v_add_u32 v{V_T+4}, s{S_TMP+1}, v{V_T+4}")
    a(f"global_load_dword a{A_PF}, v{V_T+4}, s[6:7]")
    vm.issue("cpf")
    a(f"global_load_dword a{A_PF}, v{V_T+4}, s[6:7] offset:64")
    vm.issue("cpf")
a(f"s_and_b32 s{S_J}, s2, 7")
PX, PK, PV_, PWQ, PWO, PW1, PB1, PW2 = 68, 70, 72, 74, 76, 80, 82, 84
a("s_waitcnt lgkmcnt(0)")
a(f"s_cmp_lg_u32 s{S_W}, 0"); a("s_cbranch_scc1 L_nonce")
a("s_memrealtime s[6:7]")
a(f"s_mov_b32 s{S_B1}, s96"); a(f"s_mov_b32 s{S_B1+1}, s97"); a(f"s_mov_b32 s{S_B1+2}, 256"); a(f"s_mov_b32 s{S_B1+3}, 0x20000")
a(f"s_lshl_b32 s{S_X1}, s{S_T}, 2"); a(f"s_add_u32 s{S_X1}, s{S_X1}, 128")
a("s_waitcnt lgkmcnt(0)")
a(f"s_or_b32 s{S_NONCE}, s6, 1")
a("s_mov_b64 exec, 1")
a(f"v_mov_b32 v96, s{S_NONCE}"); a("v_mov_b32 v97, 0"); a("v_mov_b32 v98, 0")
a(f"buffer_atomic_cmpswap v[96:97], v98, s[{S_B1}:{S_B1+3}], s{S_X1} offen sc0")
a("s_mov_b64 exec, -1")
a.label("L_nonce")
a(f"s_lshl_b32 s{S_TMP}, s{S_J}, 20")
a(f"s_add_u32 s{S_K}, s{PK}, s{S_TMP}"); a(f"s_addc_u32 s{S_K+1}, s{PK+1}, 0")
a(f"s_mov_b32 s{S_K+2}, 0x100000"); a(f"s_mov_b32 s{S_K+3}, 0x20000")
a(f"s_add_u32 s{S_V}, s{PV_}, s{S_TMP}"); a(f"s_addc_u32 s{S_V+1}, s{PV_+1}, 0")
a(f"s_mov_b32 s{S_V+2}, 0x100000"); a(f"s_mov_b32 s{S_V+3}, 0x20000")
srd(S_WQ, PWQ, PWQ+1, 3670016)
srd(S_WO, PWO, PWO+1, 3670016)
srd(S_W1, PW1, PW1+1, 1605632)
srd(S_W2, PW2, PW2+1, 1605632)
srd(S_WS, S_WSP, S_WSP+1, WS_SIZE)
srd(S_B1, PB1, PB1+1, 3584)
stamp()
a(f"s_lshr_b32 s{S_A}, s{S_W}, 1"); a(f"s_and_b32 s{S_C}, s{S_W}, 1")
a(f"s_mul_i32 s{S_TMP}, s{S_A}, {BLK}"); a(f"s_mul_i32 s{S_TMP+1}, s{S_C}, {8*UNIT}")
a(f"s_add_u32 s{S_LDSW}, s{S_TMP}, s{S_TMP+1}")
for i in range(4): a(f"s_add_u32 s{S_M0+i}, s{S_LDSW}, {i*PS}")
a(f"s_lshl_b32 s{S_TMP}, s{S_A}, 14"); a(f"s_lshl_b32 s{S_TMP+1}, s{S_C}, 12")
a(f"s_add_u32 s{S_GKV}, s{S_TMP}, s{S_TMP+1}")
a(f"s_sub_u32 s{S_KOFF}, s{S_GKV}, 0x8000"); a(f"s_sub_u32 s{S_VOFF}, s{S_GKV}, 0x8000")
a(f"s_lshl_b32 s{S_TMP}, s{S_A}, 5"); a(f"s_lshl_b32 s{S_TMP+1}, s{S_C}, 4"); a(f"s_add_u32 s{S_TMP}, s{S_TMP}, s{S_TMP+1}")
a(f"s_mul_i32 s{S_BG1}, s{S_TMP}, 3584"); a(f"s_mul_i32 s{S_TMP+1}, s{S_J}, 448"); a(f"s_add_u32 s{S_BG1}, s{S_BG1}, s{S_TMP+1}")
a(f"s_lshl_b32 s{S_TMP}, s{S_C}, 17")
a(f"s_lshl_b32 s{S_TMP+1}, s{S_J}, 10"); a(f"s_add_u32 s{S_TMP}, s{S_TMP}, s{S_TMP+1}")
a(f"s_lshl_b32 s{S_TMP+1}, s{S_A}, 9"); a(f"s_add_u32 s{S_BQP}, s{S_TMP}, s{S_TMP+1}")
a(f"s_mul_i32 s{S_TMP}, s{S_J}, 224"); a(f"s_lshl_b32 s{S_TMP+1}, s{S_C}, 3"); a(f"s_add_u32 s{S_TMP}, s{S_TMP}, s{S_TMP+1}")
a(f"s_mul_i32 s{S_BG2}, s{S_TMP}, 896"); a(f"s_mul_i32 s{S_TMP+2}, s{S_A}, 448"); a(f"s_add_u32 s{S_BG2}, s{S_BG2}, s{S_TMP+2}")
a(f"s_lshl_b32 s{S_TMP}, s{S_J}, 9"); a(f"s_add_u32 s{S_TMP}, s{S_TMP}, s{S_TMP+1}")
a(f"s_mul_i32 s{S_BOP}, s{S_TMP}, 896"); a(f"s_add_u32 s{S_BOP}, s{S_BOP}, s{S_TMP+2}")
a(f"s_mov_b32 s{S_THR}, {OPT['thr']}")
def dma_voffsets(which):
    a(f"v_lshrrev_b32 v{V_T+4}, 5, v{V_LANE}")
    a(f"v_and_b32 v{V_T+5}, 31, v{V_LANE}")
    a(f"v_lshlrev_b32 v{V_T+5}, 4, v{V_T+5}")
    if "1" in which:
        a(f"v_mul_u32_u24 v{V_DW1}, {4*3584}, v{V_T+4}"); a(f"v_add_u32 v{V_DW1}, v{V_DW1}, v{V_T+5}")
    if "q" in which: a(f"v_lshl_add_u32 v{V_DWQ}, v{V_T+4}, 15, v{V_T+5}")
    if "o" in which: a(f"v_lshl_add_u32 v{V_DO}, v{V_T+4}, 13, v{V_T+5}")
    if "w" in which:
        a(f"v_mul_u32_u24 v{V_DWW}, {16*896}, v{V_T+4}"); a(f"v_add_u32 v{V_DWW}, v{V_DWW}, v{V_T+5}")
        a(f"v_cmp_lt_u32 vcc, {27*16}, v{V_T+5}")
        a(f"v_mov_b32 v{V_T+6}, 0x40000000")
        a("s_nop 1")
        a(f"v_cndmask_b32 v{V_DWW}, v{V_DWW}, v{V_T+6}, vcc")
dma_voffsets("1qow")
if OPT["pfpos"] < 3:
    emit_units(stage_dma(0), ("st", 0))
    emit_units(stage_dma(1), ("st", 1))
def rowp_cc():
    a(f"v_bfe_u32 v{V_ROWP}, v{V_LANE}, 2, 2")
    a(f"v_lshrrev_b32 v{V_CC}, 4, v{V_LANE}")
    a(f"v_lshl_add_u32 v{V_ROWP}, v{V_CC}, 2, v{V_ROWP}")
    a(f"v_mul_u32_u24 v{V_ROWP}, {UNIT}, v{V_ROWP}")
    a(f"v_and_b32 v{V_CC}, 3, v{V_LANE}")
rowp_cc()

PFD = OPT["pfd"]
def prefetch(kind, gran):
    dst = "v227" if kind == "wo" else f"a{A_PF}"
    sh = 6 if gran == 64 else 7
    a(f"s_lshl_b32 s{S_TMP}, s{S_T}, 2"); a(f"s_add_u32 s{S_TMP}, s{S_TMP}, s{S_W}")
    T0, T1 = V_T + 4, V_T + 5
    def masked(n):
        if n < 64:
            a(f"v_cmp_lt_u32 vcc, {n-1}, v{V_LANE}")
            a(f"v_mov_b32 v{T1}, 0x40000000")
            a("s_nop 1")
            a(f"v_cndmask_b32 v{T0}, v{T0}, v{T1}, vcc")
    if kind in ("w1", "wq"):
        rowb = 512 if kind == "w1" else 1024
        rs = 3584 if kind == "w1" else 8192
        if kind == "w1": rowb, per_row = 640, 8
        per_row = 8 if kind == "w1" else rowb // gran
        step = 64 if kind == "w1" else gran
        n = 448 * per_row // 128
        a(f"s_mul_i32 s{S_TMP}, s{S_TMP}, {n}")
        a(f"v_add_u32 v{T0}, s{S_TMP}, v{V_LANE}")
        lgp = per_row.bit_length() - 1
        a(f"v_lshrrev_b32 v{T1}, {lgp}, v{T0}")
        a(f"v_and_b32 v{T0}, {per_row-1}, v{T0}")
        a(f"v_mul_u32_u24 v{T0}, {step}, v{T0}")
        a(f"s_mov_b32 s{S_TMP+1}, {rs}")
        a(f"v_mad_u32_u24 v{T0}, v{T1}, s{S_TMP+1}, v{T0}")
        masked(n)
        a(f"s_mul_i32 s{S_TMP+1}, s{S_J}, {448 if kind == 'w1' else 1024}")
        sr_ = S_W1 if kind == "w1" else S_WQ
        vmem(f"buffer_load_dword a{A_PF}, v{T0}, s[{sr_}:{sr_+3}], s{S_TMP+1} offen", "pf")
    else:
        size = {"w2": 200704, "wo": 458752, "k": 1 << 20, "v": 1 << 20, "k0": PFD * 32768, "v0": PFD * 32768}[kind]
        sr_ = {"w2": S_W2, "wo": S_WO, "k": S_K, "v": S_V, "k0": S_K, "v0": S_V}[kind]
        n = (size // gran + 127) // 128
        a(f"s_mul_i32 s{S_TMP}, s{S_TMP}, {n*gran}")
        if kind in ("w2", "wo"):
            a(f"s_mul_i32 s{S_TMP+1}, s{S_J}, {size}"); a(f"s_add_u32 s{S_TMP}, s{S_TMP}, s{S_TMP+1}")
        a(f"v_lshlrev_b32 v{T0}, {sh}, v{V_LANE}")
        masked(n)
        for i in range((n + 63) // 64):
            vmem(f"buffer_load_dword {dst}, v{T0}, s[{sr_}:{sr_+3}], s{S_TMP} offen", "pf")
            if i + 1 < (n + 63) // 64: a(f"s_add_u32 s{S_TMP}, s{S_TMP}, {64*gran}")
GR = OPT["gran"]
def early_pf(which):
    if not OPT["prefetch"]: return
    for kind in which: prefetch(kind, GR)
if OPT["pfpos"] == 0:
    early_pf(("w1", "wq", "w2", "k0", "v0"))
if OPT["pfpos"] == 4: early_pf(("w1", "wq", "w2"))
if OPT["pfpos"] in (0, 1, 4):
    a(f"v_lshlrev_b32 v{V_T+6}, 3, v{VG_}")
    a(f"s_mul_i32 s{S_TMP}, s{S_J}, 448"); a(f"s_lshl_b32 s{S_TMP+1}, s{S_W}, 7"); a(f"s_add_u32 s{S_TMP}, s{S_TMP}, s{S_TMP+1}")
    for fb in range(4):
        vmem(f"buffer_load_dwordx2 {ar(A_BIAS+2*fb,2)}, v{V_T+6}, s[{S_B1}:{S_B1+3}], s{S_TMP} offen offset:{32*fb}", "b1")
if OPT["pfpos"] == 1: early_pf(("w1",))

vm.wait("x")
if OPT["xdma"]:
    a(f"v_lshlrev_b32 v{V_T+6}, 4, v{V_LANE}")
    a(f"s_lshl_b32 s{S_TMP}, s{S_W}, 10"); a(f"s_add_u32 s{S_TMP}, s{S_TMP}, {2*PS}")
    a(f"v_add_u32 v{V_T+6}, s{S_TMP}, v{V_T+6}")
    for ks in range(14): lds(f"ds_read_b128 {vr(XR+4*ks,4)}, v{V_T+6} offset:{ks*4096}", "xr")
    lg.wait_all()
stamp()
XF = 112
for i in range(56):
    a(f"v_lshlrev_b32 v{XF+2*i}, 16, v{XR+i}")
    a(f"v_and_b32 v{XF+2*i+1}, 0xffff0000, v{XR+i}")
ACC = 56
fstamp()
if OPT["pfpos"] in (3, 4): emit_units(stage_dma(0), ("st", 0))
fstamp()
for c in range(4): a(f"v_pk_add_f32 {vr(ACC+2*c,2)}, {vr(XF+4*c,2)}, {vr(XF+4*c+2,2)}")
for n_, i in enumerate(range(8, 56)):
    c = n_ % 4
    a(f"v_pk_add_f32 {vr(ACC+2*c,2)}, {vr(ACC+2*c,2)}, {vr(XF+2*i,2)}")
a(f"v_pk_add_f32 {vr(ACC,2)}, {vr(ACC,2)}, {vr(ACC+2,2)}")
a(f"v_pk_add_f32 {vr(ACC+4,2)}, {vr(ACC+4,2)}, {vr(ACC+6,2)}")
a(f"v_pk_add_f32 {vr(ACC,2)}, {vr(ACC,2)}, {vr(ACC+4,2)}")
a(f"v_add_f32 v{ACC}, v{ACC}, v{ACC+1}")
xlane("v_add_f32", ACC, ACC+1)
VMEAN, VMB = ACC + 2, ACC + 4
a(f"v_mul_f32 v{VMB}, {f32(1.0/448)}, v{ACC}")
a(f"v_mov_b32 v{VMB+1}, v{VMB}")
VAR = 64
XCL = 2 * PS
if OPT["pfpos"] == 1: early_pf(("wq", "w2"))
fstamp()
if OPT["pfpos"] in (3, 4): emit_units(stage_dma(1), ("st", 1))
fstamp()
if OPT["pfpos"] == 2:
    a(f"v_lshlrev_b32 v{V_T+4}, 3, v{VG_}")
    a(f"s_mul_i32 s{S_TMP}, s{S_J}, 448"); a(f"s_lshl_b32 s{S_TMP+1}, s{S_W}, 7"); a(f"s_add_u32 s{S_TMP}, s{S_TMP}, s{S_TMP+1}")
    for fb in range(4):
        vmem(f"buffer_load_dwordx2 {ar(A_BIAS+2*fb,2)}, v{V_T+4}, s[{S_B1}:{S_B1+3}], s{S_TMP} offen offset:{32*fb}", "b1")
    early_pf(("w1", "wq", "w2"))

a(f"v_lshlrev_b32 v{V_T+6}, 4, v{V_LANE}")
a(f"s_lshl_b32 s{S_TMP}, s{S_W}, 10"); a(f"s_add_u32 s{S_TMP}, s{S_TMP}, {XCL}")
a(f"v_add_u32 v{V_T+6}, s{S_TMP}, v{V_T+6}")
for ks in range(14):
    for i in range(4*ks, 4*ks+4):
        a(f"v_pk_add_f32 {vr(XF+2*i,2)}, {vr(XF+2*i,2)}, {vr(VMB,2)} neg_lo:[0,1] neg_hi:[0,1]")
    for i in range(4*ks, 4*ks+4):
        c = i % 4
        if i < 4: a(f"v_pk_mul_f32 {vr(VAR+2*c,2)}, {vr(XF+2*i,2)}, {vr(XF+2*i,2)}")
        else: a(f"v_pk_fma_f32 {vr(VAR+2*c,2)}, {vr(XF+2*i,2)}, {vr(XF+2*i,2)}, {vr(VAR+2*c,2)}")
if OPT["pfpos"] == 3:
    a(f"v_lshlrev_b32 v{V_T+4}, 3, v{VG_}")
    a(f"s_mul_i32 s{S_TMP}, s{S_J}, 448"); a(f"s_lshl_b32 s{S_TMP+1}, s{S_W}, 7"); a(f"s_add_u32 s{S_TMP}, s{S_TMP}, s{S_TMP+1}")
    for fb in range(4):
        vmem(f"buffer_load_dwordx2 {ar(A_BIAS+2*fb,2)}, v{V_T+4}, s[{S_B1}:{S_B1+3}], s{S_TMP} offen offset:{32*fb}", "b1")
    early_pf(("w1", "wq", "w2"))

fstamp()
a(f"v_pk_add_f32 {vr(VAR,2)}, {vr(VAR,2)}, {vr(VAR+2,2)}")
a(f"v_pk_add_f32 {vr(VAR+4,2)}, {vr(VAR+4,2)}, {vr(VAR+6,2)}")
a(f"v_pk_add_f32 {vr(VAR,2)}, {vr(VAR,2)}, {vr(VAR+4,2)}")
a(f"v_add_f32 v{VAR}, v{VAR}, v{VAR+1}")
xlane("v_add_f32", VAR, VAR+1)
a(f"v_mul_f32 v{VAR}, {f32(1.0/448)}, v{VAR}")
a(f"v_mov_b32 v{VAR+4}, v{VAR}")
round_bf16(VAR+4, VAR+1)
a(f"v_add_f32 v{VAR+4}, {f32(1e-5)}, v{VAR+4}")
round_bf16(VAR+4, VAR+1)
a(f"v_sqrt_f32 v{VAR+4}, v{VAR+4}"); a("s_nop 0")
round_bf16(VAR+4, VAR+1)
a(f"v_rcp_f32 v{VAR+5}, v{VAR+4}"); a("s_nop 0")
fstamp()
CQ = math.log2(math.e) / 16
a(f"v_mul_f32 v{VAR+2}, {f32(CQ)}, v{VAR+5}")
a(f"v_mov_b32 v{VAR+3}, v{VAR+2}")
for ks in range(14):
    for i in range(4*ks, 4*ks+4):
        a(f"v_pk_mul_f32 {vr(XF+2*i,2)}, {vr(XF+2*i,2)}, {vr(VAR+2,2)}")
    for i in range(4*ks, 4*ks+4):
        a(f"v_cvt_pk_bf16_f32 v{XR+i}, v{XF+2*i}, v{XF+2*i+1}")
    lds(f"ds_write_b128 v{V_T+6}, {vr(XR+4*ks,4)} offset:{ks*4096}")
a(f"v_mul_f32 v{VAR+6}, v{VAR+5}, v{VAR+5}")
a(f"v_mul_f32 v{VAR+6}, v{VAR+6}, v{VAR}")
round_bf16(VAR+6, VAR+7)
a(f"v_add_f32 v{VAR+6}, {f32(1e-5)}, v{VAR+6}")
round_bf16(VAR+6, VAR+7)
a(f"v_sqrt_f32 v{VAR+6}, v{VAR+6}"); a("s_nop 0")
round_bf16(VAR+6, VAR+7)
a(f"v_rcp_f32 v{VAR+6}, v{VAR+6}"); a("s_nop 0")
a(f"v_mul_f32 v{VAR+6}, {f32(1.0/CQ)}, v{VAR+6}")
a(f"s_lshl_b32 s{S_TMP}, s{S_W}, 6"); a(f"s_add_u32 s{S_TMP}, s{S_TMP}, {STATS}")
a(f"v_lshlrev_b32 v{V_T+5}, 2, v{VQ_}"); a(f"v_add_u32 v{V_T+5}, s{S_TMP}, v{V_T+5}")
lds(f"ds_write_b32 v{V_T+5}, v{VAR+6}")
a(f"v_lshlrev_b32 v{V_T+6}, 4, v{V_LANE}"); a(f"v_add_u32 v{V_T+6}, {XCL}, v{V_T+6}")
a(f"v_lshlrev_b32 v{V_T+7}, 2, v{VQ_}"); a(f"v_add_u32 v{V_T+7}, {STATS}, v{V_T+7}")
a(f"s_lshl_b32 s{S_TMP}, s{S_W}, 7")
a(f"v_lshl_add_u32 v{V_AA[0]}, v{V_CC}, 3, v{V_ROWP}")
a(f"v_add_u32 v{V_AA[0]}, s{S_TMP}, v{V_AA[0]}")
a(f"v_add_u32 v{V_AA[1]}, {2*PS}, v{V_AA[0]}")
a(f"s_cmp_lg_u32 s{S_W}, 0"); a("s_cbranch_scc1 L_nonce2")
a("s_waitcnt vmcnt(0)") if False else None
vm_n = vm.count(("st", 0))
a(f"s_waitcnt vmcnt({min(63, len(vm.ops) - [i for i, t in enumerate(vm.ops) if t == ('st', 0)][0])})")
a(f"v_readfirstlane_b32 s{S_TMP}, v96")
a(f"s_cmp_eq_u32 s{S_TMP}, 0"); a(f"s_cselect_b32 s{S_NONCE}, s{S_NONCE}, s{S_TMP}")
a(f"v_mov_b32 v97, s{S_NONCE}"); a(f"v_mov_b32 v98, {STATS + 512}")
a("ds_write_b32 v98, v97")
a.label("L_nonce2")
fstamp()
lg.wait_all()
a("s_barrier")
fstamp()
a(f"v_mov_b32 v98, {STATS + 512}")
lds("ds_read_b32 v97, v98", "nn")
for f in range(56):
    lds(f"ds_read_b128 {ar(4*f,4)}, v{V_T+6} offset:{f*1024}", "xc")
    if f % 12 == 11: a("s_waitcnt lgkmcnt(4)"); lg.ops = lg.ops[-4:]
for qb in range(4): lds(f"ds_read_b32 v{V_SC+2*qb+1}, v{V_T+7} offset:{qb*64}", "sc")
lg.wait_all()
a(f"v_readfirstlane_b32 s{S_NONCE}, v97")
fstamp()
vm.wait(("st", 1))
fstamp()
a("s_barrier")
dump_regs("xc", "a", 0, 224)
stamp(OPT["fine"] not in (2, 3))
emit_units(stage_dma(2), ("st", 2))
emit_units(stage_dma(3), ("st", 3))
if OPT["pfpos"] in (1, 2, 3, 4): early_pf(("k0", "v0"))

RING_A = ("a", 236); RING_V = ("v", V_F)
xcf = lambda ks, qb: ar((ks * 4 + qb) * 4, 4)
H1 = 0; HP = 64; QA = 96; GA = 112
h1acc = lambda fb, qb: vr(H1 + (fb * 4 + qb) * 4, 4)
qacc = lambda db, qb: vr(QA + (db * 4 + qb) * 4, 4)
hfrag = lambda ks, qb: ar((ks * 4 + qb) * 4, 4)
g2acc = lambda nb, qb: ar(GA + (nb * 4 + qb) * 4, 4)
VQA = [V_DW1 - 0, 0]
VQA = [V_KA, V_VA]
a(f"s_mul_i32 s{S_TMP}, s{S_A}, {BLK}"); a(f"s_lshl_b32 s{S_TMP+1}, s{S_C}, 8"); a(f"s_add_u32 s{S_TMP}, s{S_TMP}, s{S_TMP+1}")
a(f"v_lshl_add_u32 v{VQA[0]}, v{V_CC}, {4 if not OPT['x_nat'] else 3}, v{V_ROWP}")
a(f"v_add_u32 v{VQA[0]}, s{S_TMP}, v{VQA[0]}")
a(f"v_add_u32 v{VQA[1]}, {2*PS}, v{VQA[0]}")

def att_reads(p, f):
    if f < 16:
        kb, x = f // 8, f % 8
        return [f"ds_read_b128 {{r}}, v{V_KA if x < 4 else V_KA2} offset:{((p + 1) % 2) * PS + kb*512 + x*64}"]
    return trd(V_VA, (p % 2) * PS + (f - 16) * 32)
g1 = gemm_groups("G1", 7, 0, h1acc, xcf, RING_A, V_AA, "st", first_top=False)
qp = gemm_groups("QP", 14, 7, qacc, xcf, RING_A, VQA, "st")
g2 = gemm_groups("G2", 7, 21, g2acc, hfrag, RING_A, V_AA, "st")
allg = g1 + qp + g2
POSTA = [(att_reads(-1, i), RING_V) for i in range(LA)]
allgaps = prep_groups(allg, post=POSTA)
gemm_dma(allg, allgaps, stage_dma, "st", skip=(3,))
fq = allgaps[4*56:4*168]; fg = allgaps[4*168:]

C1 = 2 * math.sqrt(2 / math.pi) * math.log2(math.e); C2 = C1 * 0.044715
def gelu_stream():
    st = [f"s_mov_b32 s{S_X1}, {f32(-C2)}", f"v_mov_b32 v{V_T+7}, {f32(-C1)}", I_wvm("b1")]
    for fb in range(4):
        st += [f"v_accvgpr_read_b32 v{V_T}, a{A_BIAS+2*fb}", f"v_accvgpr_read_b32 v{V_T+1}, a{A_BIAS+2*fb+1}", "s_nop 0",
               f"v_lshlrev_b32 v{V_B4}, 16, v{V_T}", f"v_and_b32 v{V_B4+1}, 0xffff0000, v{V_T}",
               f"v_lshlrev_b32 v{V_B4+2}, 16, v{V_T+1}", f"v_and_b32 v{V_B4+3}, 0xffff0000, v{V_T+1}"]
        for qb in range(4):
            base = H1 + (fb * 4 + qb) * 4
            st += [f"v_fma_f32 v{base+r}, v{base+r}, v{V_SC+2*qb+1}, v{V_B4+r}" for r in range(4)]
            st += [f"v_mul_f32 v{V_T+r}, v{base+r}, v{base+r}" for r in range(4)]
            st += [f"v_fma_f32 v{V_T+r}, v{V_T+r}, s{S_X1}, v{V_T+7}" for r in range(4)]
            st += [f"v_mul_f32 v{V_T+r}, v{V_T+r}, v{base+r}" for r in range(4)]
            st += [f"v_exp_f32 v{V_T+r}, v{V_T+r}" for r in range(4)]
            st += [f"v_add_f32 v{V_T+r}, 1.0, v{V_T+r}" for r in range(4)]
            st += [f"v_rcp_f32 v{V_T+r}, v{V_T+r}" for r in range(4)]
            st += [f"v_mul_f32 v{base+r}, v{base+r}, v{V_T+r}" for r in range(4)]
            hp = HP + ((fb // 2) * 4 + qb) * 4 + (fb % 2) * 2
            st += [f"v_cvt_pk_bf16_f32 v{hp}, v{base}, v{base+1}", f"v_cvt_pk_bf16_f32 v{hp+1}, v{base+2}, v{base+3}"]
    st += [f"s_lshl_b32 s{S_X1}, s{S_W}, 1", f"s_add_u32 s{S_X2}, s{S_X1}, 1", f"s_min_u32 s{S_X2}, s{S_X2}, 6",
           f"s_lshl_b32 s{S_X1}, s{S_X1}, 12", f"s_lshl_b32 s{S_X2}, s{S_X2}, 12",
           f"v_lshlrev_b32 v{V_T+6}, 4, v{V_LANE}", f"v_add_u32 v{V_T+6}, {HL}, v{V_T+6}",
           f"v_add_u32 v{V_T+5}, s{S_X2}, v{V_T+6}", f"v_add_u32 v{V_T+4}, s{S_X1}, v{V_T+6}"]
    st += [I_lds(f"ds_write_b128 v{V_T+5}, {vr(HP+16+4*qb,4)} offset:{qb*1024}", "hw") for qb in range(4)]
    st += [I_lds(f"ds_write_b128 v{V_T+4}, {vr(HP+4*qb,4)} offset:{qb*1024}", "hw") for qb in range(4)]
    st += [I_wlg("hw")]
    return st
GE = OPT["gelu_end"]
_gs = gelu_stream()
if OPT["x_g"] == 1: _gs = [x for x in _gs if not (isinstance(x, str) and x.startswith(("v_fma", "v_mul", "v_exp", "v_add_f32", "v_rcp", "v_cvt")))]
if OPT["x_g"] == 2: _gs = [x.replace("v_exp_f32", "v_mov_b32").replace("v_rcp_f32", "v_mov_b32") if isinstance(x, str) else x for x in _gs]
if OPT["x_g"] == 3: _gs = [x for x in _gs if not (isinstance(x, str) and x.startswith(("v_exp", "v_rcp")))]
place_stream(fq, _gs, 4*2, 4*(8*GE) - 1)
st = [f"s_mul_i32 s{S_X1}, s{S_A}, {BLK}", f"s_mul_i32 s{S_X2}, s{S_C}, 224", f"s_add_u32 s{S_X1}, s{S_X1}, s{S_X2}",
      f"v_lshl_add_u32 v{V_AA[0]}, v{V_CC}, 3, v{V_ROWP}", f"v_add_u32 v{V_AA[0]}, s{S_X1}, v{V_AA[0]}", f"v_add_u32 v{V_AA[1]}, {2*PS}, v{V_AA[0]}"]
st += [I_lds(f"ds_read_b128 {ar(4*f,4)}, v{V_T+6} offset:{f*1024}", "hr") for f in range(28)] + [I_wlg("hr")]
place_stream(fq, st, 4*(8*(GE+1)), 4*(8*14) - 5)

def q_frag(f):
    x, qb = f // 4, f % 4
    b0 = QA + ((2 * x) * 4 + qb) * 4; b1_ = QA + ((2 * x + 1) * 4 + qb) * 4
    st = []
    t = 4 * f
    st += [f"v_cvt_pk_bf16_f32 v{t}, v{b0}, v{b0+1}", f"v_cvt_pk_bf16_f32 v{t+1}, v{b0+2}, v{b0+3}",
           f"v_cvt_pk_bf16_f32 v{t+2}, v{b1_}, v{b1_+1}", f"v_cvt_pk_bf16_f32 v{t+3}, v{b1_+2}, v{b1_+3}"]
    return st
UQW, UQR = V_T + 5, V_T + 4
def q_write(fs, tag): return [I_lds(f"ds_write_b128 v{UQW}, {vr(4*f,4)} offset:{(f - fs[0])*1024}", tag) for f in fs] + [I_wlg(tag)]
def q_read(fs, tag): return [I_lds(f"ds_read_b128 {vr(64+4*f,4)}, v{UQR} offset:{(f - fs[0])*1024}", tag) for f in fs] + [I_wlg(tag)]
R1, R2, R3 = list(range(0, 7)), list(range(7, 14)), [14, 15]
SG = lambda s: 4 * 7 * (s - 21)
st = [f"s_mul_i32 s{S_X1}, s{S_W}, 7168", f"s_xor_b32 s{S_X2}, s{S_W}, 1", f"s_mul_i32 s{S_X2}, s{S_X2}, 7168",
      f"v_lshlrev_b32 v{V_T+6}, 4, v{V_LANE}", f"v_add_u32 v{V_T+6}, {XREG}, v{V_T+6}",
      f"v_add_u32 v{UQW}, s{S_X1}, v{V_T+6}", f"v_add_u32 v{UQR}, s{S_X2}, v{V_T+6}"]
for f in R1: st += q_frag(f)
st += q_write(R1, "qw1")
place_stream(fg, st, SG(21) + 6, SG(22) - 1)
st = q_read(R1, "qr1")
for f in R2[:4]: st += q_frag(f)
place_stream(fg, st, SG(22) + 1, SG(23) - 1)
st = []
for f in R2[4:]: st += q_frag(f)
st += q_write(R2, "qw2")
place_stream(fg, st, SG(23) + 1, SG(24) - 1)
st = q_read(R2, "qr2")
for f in R3: st += q_frag(f)
place_stream(fg, st, SG(24) + 1, SG(25) - 1)
place_stream(fg, q_write(R3, "qw3"), SG(25) + 1, SG(26) - 1)
place_stream(fg, q_read(R3, "qr3"), SG(26) + 1, SG(26) + 12)
st = [f"v_and_b32 v{V_T}, 15, v{V_LANE}", f"v_lshrrev_b32 v{V_T+1}, 4, v{V_LANE}",
      f"s_mul_i32 s{S_X1}, s{S_C}, {BLK}", f"s_lshl_b32 s{S_X2}, s{S_C}, 8",
      f"v_mul_u32_u24 v{V_KA}, {UNIT}, v{V_T}", f"v_lshl_add_u32 v{V_KA}, v{V_T+1}, 4, v{V_KA}",
      f"v_add_u32 v{V_KA}, s{S_X1}, v{V_KA}",
      f"v_subrev_u32 v{V_KA2}, s{S_X2}, v{V_KA}", f"v_add_u32 v{V_KA}, s{S_X2}, v{V_KA}",
      f"v_lshl_add_u32 v{V_VA}, v{V_CC}, 3, v{V_ROWP}", f"v_add_u32 v{V_VA}, s{S_X1}, v{V_VA}", f"v_add_u32 v{V_VA}, {2*PS}, v{V_VA}"]
st += [f"v_mov_b32 v{V_NEG+i}, 0" for i in range(16)]
def _pfs():
    a(f"s_cmp_eq_u32 s{S_C}, 0")
    a(f"s_cselect_b32 s{S_B1}, s{S_K}, s{S_V}"); a(f"s_cselect_b32 s{S_B1+1}, s{S_K+1}, s{S_V+1}")
    a(f"s_mov_b32 s{S_B1+2}, 0x100000")
    a(f"s_mov_b32 s{S_TMP+3}, {(PFD-1)*0x8000}")
    a(f"s_mov_b32 s{S_W2}, s96"); a(f"s_mov_b32 s{S_W2+1}, s97"); a(f"s_mov_b32 s{S_W2+2}, 256")
    a(f"s_lshl_b32 s{S_X1}, s{S_T}, 10"); a(f"s_lshl_b32 s{S_X2}, s{S_A}, 9"); a(f"s_add_u32 s{S_X1}, s{S_X1}, s{S_X2}")
    a(f"v_lshlrev_b32 v226, 7, v{V_LANE}"); a(f"v_add_u32 v226, s{S_X1}, v226")
    a(f"v_cmp_lt_u32 vcc, 3, v{V_LANE}"); a(f"v_mov_b32 v227, 0x40000000"); a("s_nop 1")
    a(f"v_cndmask_b32 v226, v226, v227, vcc")
st += [It(8, _pfs, "v")]
place_stream(fg, st, SG(26) + 13, SG(28) - 1)

emit_groups(allg[:56], post=[(g["reads"], g["ring"]) for g in allg[56:59]])
stamp()
emit_groups(allg[56:168], pre_issued=LA, post=[(g["reads"], g["ring"]) for g in allg[168:171]])
dump_regs("hp", "v", HP, 32)
stamp()
if OPT["prefetch"] and OPT["kvpf"] == 2:
    for kind in ("k", "v"): prefetch(kind, GR)
emit_groups(allg[168:], pre_issued=LA, post=POSTA)
stamp()

def att_mf(p, f, czero=False):
    out = []
    for qb in range(4):
        if f < 16:
            kb, x = f // 8, f % 8
            S = V_S + (kb * 4 + qb) * 4
            out.append(mf16(vr(S, 4), vr(V_Q + (x * 4 + qb) * 4, 4), vr(V_NEG + 4 * qb, 4) if x == 0 else vr(S, 4)))
        else:
            o = ar(((f - 16) * 4 + qb) * 4, 4)
            out.append(mf16(o, vr(V_P + (p % 2) * 16 + 4 * qb, 4), "0" if czero else o))
    return out
def sm_stream(p, kb):
    st = []
    Pb = V_P + ((p + 1) % 2) * 16
    lo = V_L + (p % 2) * 4; ln = V_L + ((p + 1) % 2) * 4
    items = [(qb, r) for qb in range(4) for r in range(4)]
    n = len(items)
    T = lambda k: V_T + (k % 8)
    for k in range(n + 3):
        if k < n:
            qb, r = items[k]
            st.append(f"v_exp_f32 v{T(k)}, v{V_S + (kb*4+qb)*4 + r}")
        if 1 <= k <= n:
            qb, r = items[k - 1]
            src = lo + qb if (kb == 0 and r == 0) else ln + qb
            st.append(f"v_add_f32 v{ln + qb}, v{T(k-1)}, v{src}")
        if k >= 3 and (k - 3) % 2 == 0 and (k - 2) < n:
            j = k - 3
            qb, r = items[j]
            st.append(f"v_cvt_pk_bf16_f32 v{Pb + qb*4 + kb*2 + r//2}, v{T(j)}, v{T(j+1)}")
    return st
def rescale(p, first):
    lo = V_L + (p % 2) * 4
    a("s_nop 7"); a("s_nop 3")
    MX = V_T
    for qb in range(4):
        b0 = V_S + qb * 4; b1_ = V_S + (4 + qb) * 4
        a(f"v_max3_f32 v{MX+qb}, v{b0}, v{b0+1}, v{b0+2}")
    for qb in range(4):
        b0 = V_S + qb * 4; b1_ = V_S + (4 + qb) * 4
        a(f"v_max3_f32 v{MX+qb}, v{MX+qb}, v{b0+3}, v{b1_}")
    for qb in range(4):
        b0 = V_S + qb * 4; b1_ = V_S + (4 + qb) * 4
        a(f"v_max3_f32 v{MX+qb}, v{MX+qb}, v{b1_+1}, v{b1_+2}")
    for qb in range(4):
        b1_ = V_S + (4 + qb) * 4
        a(f"v_max_f32 v{MX+qb}, v{MX+qb}, v{b1_+3}")
    a("s_nop 0")
    xlane4("v_max_f32", [MX + q for q in range(4)], [V_T + 4 + q for q in range(4)])
    if not first:
        for qb in range(4): a(f"v_max_f32 v{MX+qb}, 0, v{MX+qb}")
    for qb in range(4):
        for kb in range(2):
            for r in range(4):
                a(f"v_sub_f32 v{V_S+(kb*4+qb)*4+r}, v{V_S+(kb*4+qb)*4+r}, v{MX+qb}")
        for r in range(4):
            a(f"v_sub_f32 v{V_NEG+qb*4+r}, v{V_NEG+qb*4+r}, v{MX+qb}")
    if not first:
        for qb in range(4): a(f"v_exp_f32 v{MX+qb}, -v{MX+qb}")
        a("s_nop 0")
        for qb in range(4): a(f"v_mul_f32 v{lo+qb}, v{lo+qb}, v{MX+qb}")
        for d in range(16):
            for qb in range(4):
                for r in range(4): a(f"v_accvgpr_read_b32 v{V_T+4+r}, a{(d*4+qb)*4+r}")
                a("s_nop 0")
                for r in range(4): a(f"v_mul_f32 v{V_T+4+r}, v{V_T+4+r}, v{MX+qb}")
                for r in range(4): a(f"v_accvgpr_write_b32 a{(d*4+qb)*4+r}, v{V_T+4+r}")
    for kb in range(2):
        st = sm_stream(p, kb)
        for i, x in enumerate(st):
            a(x)
            if x.startswith("v_exp") and i + 1 < len(st) and not st[i+1].startswith("v_exp"):
                dst = x.split()[1].rstrip(",")
                if dst in st[i+1]: a("s_nop 0")
    a("s_nop 1")
slow = []
V_PFO, V_PFD = 226, 227
S_PFS = S_B1; S_PFO = S_TMP + 3
def sm_place(gaps, p, g_s0, g_s1, g_end):
    Pb = V_P + ((p + 1) % 2) * 16
    lo = V_L + (p % 2) * 4; ln = V_L + ((p + 1) % 2) * 4
    items = [(kb, qb, r) for kb in range(2) for qb in range(4) for r in range(4)]
    NT = 8
    T = lambda k: V_T + (k % NT)
    E = [f"v_exp_f32 v{T(k)}, v{V_S + (kb*4+qb)*4 + r}" for k, (kb, qb, r) in enumerate(items)]
    A = []
    for k, (kb, qb, r) in enumerate(items):
        src = lo + qb if (kb == 0 and r == 0) else ln + qb
        A.append(f"v_add_f32 v{ln + qb}, v{T(k)}, v{src}")
    C = [f"v_cvt_pk_bf16_f32 v{Pb + items[2*j][1]*4 + items[2*j][0]*2 + items[2*j][2]//2}, v{T(2*j)}, v{T(2*j+1)}" for j in range(16)]
    e = a_ = c = 0
    egap = {}
    for g in range(g_s0, g_end + 1):
        G = gaps[g]
        while G.cap >= 4:
            ra = a_ < 32 and a_ < e and egap[a_] < g
            rc = c < 16 and 2*c + 1 < e and egap[2*c+1] < g
            can_e = e < 32 and G.cap >= 8 and not G.v and (e < 16 or g >= g_s1) and (e < NT or (a_ > e - NT and c > (e - NT) // 2))
            pending = (e - a_) + (e // 2 - c)
            remaining_gaps = g_end - g
            if can_e and (pending < 5 or not (ra or rc)):
                G.add(E[e]); egap[e] = g; e += 1; break
            elif rc and (c <= a_ // 2 or not ra):
                G.add(C[c]); c += 1
            elif ra:
                G.add(A[a_]); a_ += 1
            elif rc:
                G.add(C[c]); c += 1
            else: break
    assert e == 32 and a_ == 32 and c == 16, (e, a_, c)

def period(p, qk=True, pv=True, sm=True, dK=None, dV=None, wait30="s_waitcnt vmcnt(1)", post=None, lab="", pre_issued=LA,
           czero=False, extra=None, top0=None, dtag=None, pf=False, nobar=False, midbar=None, postbar=None):
    fl = [f for f in range(32) if (f < 16 and qk) or (f >= 16 and pv)]
    n = len(fl)
    groups = [dict(reads=att_reads(p, f), mf=att_mf(p, f, czero), top=[], ring=RING_V) for f in fl]
    if top0: groups[0]["top"] = top0
    delay = {}
    inloop = lab in ("A", "B")
    if not nobar:
        groups[n - 2]["top"] = [wait30, "s_waitcnt lgkmcnt(0)", lambda: lg.ops.clear(), "s_barrier"]
        if inloop and OPT["x_nobar"] == 1: groups[n - 2]["top"] = ["s_waitcnt lgkmcnt(0)", lambda: lg.ops.clear()]
        if inloop and OPT["x_nobar"] == 2: groups[n - 2]["top"] = ["s_waitcnt lgkmcnt(0)", lambda: lg.ops.clear(), "s_barrier"]
        if postbar: groups[n - 2]["top"] = groups[n - 2]["top"] + [postbar]
        delay = {n: n - 2}
    if inloop and OPT["x_nodma"]: dK = dV = None
    if inloop and OPT["x_nopf"]: pf = False
    if inloop and OPT["x_nosm"]: sm = False
    if midbar is not None: groups[midbar]["top"] = groups[midbar]["top"] + ["s_barrier"]
    gaps = prep_groups(groups, pre_issued, post, delay)
    units = (dK or []) + (dV or [])
    if units: place_units(gaps, OPT["d0"], units, dtag, min(OPT["dstep"], (4 * n - 12) // len(units)))
    if pf:
        ins = f"buffer_load_dword v{V_PFD}, v{V_PFO}, s[{S_PFS}:{S_PFS+3}], s{S_PFO} offen"
        pos = min(4 * (n - 4), OPT["d0"] + 16 * OPT["dstep"] + 2)
        place_units(gaps, pos, [([f"s_add_u32 s{S_PFO}, s{S_PFO}, 0x8000"], ins)], "pf" if dtag else None, 1)
    if sm:
        sm_place(gaps, p, OPT["sm0a"], OPT["sm1a"], OPT["smend"])
        ln = V_L + ((p + 1) % 2) * 4
        tail = [f"v_max3_f32 v{V_T}, v{ln}, v{ln+1}, v{ln+2}", f"v_max_f32 v{V_T}, v{V_T}, v{ln+3}", f"v_cmp_lt_f32 vcc, s{S_THR}, v{V_T}"]
        for k, x in enumerate(tail): gaps[OPT["smend"] + 1 + k].add(x)
    if extra:
        for st, f0, f1 in extra: place_stream(gaps, st, f0, f1)
    emit_groups(groups, pre_issued=pre_issued, post=post, delay=delay)
    if sm:
        a(f"s_cbranch_vccnz L_slow{lab}")
        a.label(f"L_ret{lab}")
        slow.append((p, lab))
PR = lambda p, base=0: [(att_reads(p, base + i), RING_V) for i in range(LA)]

def store_stream(accreg, is_agpr, wsoff, tag, sreg, flags=""):
    st = [f"v_lshlrev_b32 v{V_T+6}, 4, v{V_LANE}",
          f"s_lshl_b32 s{sreg}, s{S_J}, 5", f"s_add_u32 s{sreg}, s{sreg}, s{S_T}",
          f"s_lshl_b32 s{sreg}, s{sreg}, 2", f"s_add_u32 s{sreg}, s{sreg}, s{S_W}",
          f"s_mul_i32 s{sreg}, s{sreg}, 14336", f"s_add_u32 s{sreg}, s{sreg}, {wsoff}"]
    return st
def store_body(accreg, is_agpr, tag, sreg, stage_regs, tmp, flags=""):
    st = []
    for s in range(14):
        nb, qp_ = s // 2, s % 2
        t = stage_regs + 4 * (s % 2)
        for hh in range(2):
            base = accreg + (nb * 4 + 2 * qp_ + hh) * 4
            if is_agpr:
                st += [f"v_accvgpr_read_b32 v{tmp+r}, a{base+r}" for r in range(4)] + ["s_nop 0"]
                src = tmp
            else: src = base
            st += [f"v_cvt_pk_bf16_f32 v{t+2*hh}, v{src}, v{src+1}", f"v_cvt_pk_bf16_f32 v{t+2*hh+1}, v{src+2}, v{src+3}"]
        st += [I_vm(f"buffer_store_dwordx4 {vr(t,4)}, v{V_T+6}, s[{S_WS}:{S_WS+3}], s{sreg} offen{flags}", tag), f"s_add_u32 s{sreg}, s{sreg}, 1024"]
    return st

top0 = [lambda: vm.wait(("st", 29)), "s_barrier"]
period(-1, qk=True, pv=False, sm=False, wait30=(lambda: vm.wait(("st", 30))), post=PR(0), top0=top0, dtag="kk")
for i in range(8): a(f"v_mov_b32 v{V_L+i}, 0")
n0 = len(a.lines)
rescale(-1, True)
rs = [l.strip() for l in a.lines[n0:]]; del a.lines[n0:]
def mp_items():
    VA = 252; TM = 228; sreg = S_X1
    st = [f"v_lshlrev_b32 v{VA}, 4, v{V_LANE}",
          f"s_lshl_b32 s{sreg}, s{S_J}, 5", f"s_add_u32 s{sreg}, s{sreg}, s{S_T}",
          f"s_lshl_b32 s{sreg}, s{sreg}, 2", f"s_add_u32 s{sreg}, s{sreg}, s{S_W}",
          f"s_mul_i32 s{sreg}, s{sreg}, 14336", f"s_add_u32 s{sreg}, s{sreg}, {MP_OFF}"]
    fl = ["", " sc1", " nt", " sc0 sc1"][OPT["mpf"]]
    for s_ in range(14):
        nb, qp_ = s_ // 2, s_ % 2
        t = V_P + 16 + 4 * (s_ % 2)
        for hh in range(2):
            base = GA + (nb * 4 + 2 * qp_ + hh) * 4
            st += [f"v_accvgpr_read_b32 v{TM+r}, a{base+r}" for r in range(4)]
            st += [f"v_cvt_pk_bf16_f32 v{t+2*hh}, v{TM}, v{TM+1}", f"v_cvt_pk_bf16_f32 v{t+2*hh+1}, v{TM+2}, v{TM+3}"]
        if OPT["x_b"] == 1: st += ["s_nop 3"]
        st += [I_vm(f"buffer_store_dwordx4 {vr(t,4)}, v{VA}, s[{S_WS}:{S_WS+3}], s{sreg} offen{fl}", "mp"), f"s_add_u32 s{sreg}, s{sreg}, 1024"]
        if OPT["x_b"] == 2: st += ["s_nop 3"]
    return st
mp = mp_items()
units = dma_kv("K", 0) + dma_kv("V", 3)
per = max(1, len(rs) // 17)
ui = 0
for k, x in enumerate(rs):
    if k % per == per - 1 and ui < len(units) and not x.startswith("s_nop"):
        sal, d = units[ui]; ui += 1
        for y in sal: a(y)
        a(x); vmem(d, "kv0")
    else:
        a(x)
while ui < len(units):
    sal, d = units[ui]; ui += 1
    for y in sal: a(y)
    a("s_nop 0"); vmem(d, "kv0")
for x in mp: do(x)
if OPT["x_b"] == 3: a("s_waitcnt vmcnt(0)")
if OPT["prefetch"]: prefetch("wo", GR)
dump_regs("q", "v", V_Q, 128)
stamp()
PFL = OPT["kvpf"] == 3
W30 = "s_waitcnt vmcnt(1)" if PFL else "s_waitcnt vmcnt(0)"
S_DBG = S_W2
def mp_signal():
    a(f"s_cmp_lg_u32 s{S_W}, 0"); a("s_cbranch_scc1 L_mpsig")
    a(f"s_lshl_b32 s{S_X1}, s{S_T}, 8"); a(f"s_lshl_b32 s{S_X2}, s{S_J}, 2"); a(f"s_add_u32 s{S_X1}, s{S_X1}, s{S_X2}"); a(f"s_add_u32 s{S_X1}, s{S_X1}, {FLG_OFF}")
    a("s_mov_b64 exec, 1")
    a(f"v_mov_b32 v228, s{S_NONCE}"); a("v_mov_b32 v229, 0")
    a(f"buffer_store_dword v228, v229, s[{S_WS}:{S_WS+3}], s{S_X1} offen sc1")
    a("s_mov_b64 exec, -1")
    a.label("L_mpsig")
period(0, post=PR(1), lab="Z", czero=True, wait30=(lambda: vm.wait("kv0")), pf=PFL, dtag="pf0")
vm.ops = []
a(f"s_mov_b32 s{S_CNT}, 15")
a(".p2align 6")
a.label("L_loop")
sv = list(lg.ops)
period(1, dK=dma_kv("K", 1), dV=dma_kv("V", 2), post=PR(2), lab="A", pf=PFL, wait30=W30)
period(2, dK=dma_kv("K", 0), dV=dma_kv("V", 3), post=PR(3), lab="B", pf=PFL, wait30=W30)
assert len(lg.ops) == len(sv), (lg.ops, sv)
a(f"s_sub_u32 s{S_CNT}, s{S_CNT}, 1")
a(f"s_cmp_lg_u32 s{S_CNT}, 0")
a("s_cbranch_scc1 L_loop")
stamp()
mp_signal()
V_DWW = V_SC + 1
dma_voffsets("w")
op_dma = lambda s: dma_stage("OP", s, s % 4) if s < 16 else None
vm.ops = []
LF = V_L + 4 * ((30 + 1) % 2)
SCL = 16; SCP = 24
VA1, VA2, VMGW, VMGR, VL16 = 28, 29, 30, 31, 228
def stats_a():
    st = []
    vs = [LF + q for q in range(4)]; ts = [q for q in range(4)]
    for sw in ("v_permlane16_swap_b32", "v_permlane32_swap_b32"):
        st += [f"v_mov_b32 v{t}, v{v}" for v, t in zip(vs, ts)]
        st += [f"{sw} v{v}, v{t}" for v, t in zip(vs, ts)]
        st += [f"v_add_f32 v{v}, v{v}, v{t}" for v, t in zip(vs, ts)]
    for qb in range(4):
        st += [f"v_sub_f32 v{2*qb}, 0, v{V_NEG+4*qb}", f"v_mov_b32 v{2*qb+1}, v{LF+qb}"]
    st += [f"v_and_b32 v{VA2}, 15, v{V_LANE}", f"v_lshlrev_b32 v{VA2}, 3, v{VA2}",
           f"s_lshl_b32 s{S_X1}, s{S_W}, 9", f"s_add_u32 s{S_X1}, s{S_X1}, {ML}", f"v_add_u32 v{VA1}, s{S_X1}, v{VA2}",
           f"s_xor_b32 s{S_X1}, s{S_X1}, 512", f"v_add_u32 v{VA2}, s{S_X1}, v{VA2}"]
    st += [I_lds(f"ds_write_b64 v{VA1}, {vr(2*qb,2)} offset:{qb*128}", "mlw") for qb in range(4)]
    st += [I_wlg("mlw")]
    return st
def stats_b():
    st = [I_lds(f"ds_read_b64 {vr(8+2*qb,2)}, v{VA2} offset:{qb*128}", "mlr") for qb in range(4)]
    st += [f"v_lshlrev_b32 v{VL16}, 4, v{V_LANE}",
           f"s_lshl_b32 s{S_X1}, s{S_W}, 14", f"s_add_u32 s{S_X1}, s{S_X1}, {2*PS}", f"v_add_u32 v{VMGW}, s{S_X1}, v{VL16}",
           f"s_xor_b32 s{S_X2}, s{S_W}, 1", f"s_lshl_b32 s{S_X2}, s{S_X2}, 14", f"s_add_u32 s{S_X2}, s{S_X2}, {2*PS}", f"v_add_u32 v{VMGR}, s{S_X2}, v{VL16}"]
    st += [I_wlg("mlr")]
    st += [f"v_max_f32 v{20+qb}, v{2*qb}, v{8+2*qb}" for qb in range(4)]
    for qb in range(4): st += [f"v_sub_f32 v{2*qb}, v{2*qb}, v{20+qb}", f"v_sub_f32 v{8+2*qb}, v{8+2*qb}, v{20+qb}"]
    for qb in range(4): st += [f"v_exp_f32 v{2*qb}, v{2*qb}", f"v_exp_f32 v{8+2*qb}, v{8+2*qb}"]
    st += [f"v_mul_f32 v{2*qb+1}, v{2*qb+1}, v{2*qb}" for qb in range(4)]
    st += [f"v_fma_f32 v{2*qb+1}, v{9+2*qb}, v{8+2*qb}, v{2*qb+1}" for qb in range(4)]
    st += [f"v_rcp_f32 v{2*qb+1}, v{2*qb+1}" for qb in range(4)]
    st += [f"v_mul_f32 v{SCL+qb}, v{2*qb}, v{2*qb+1}" for qb in range(4)]
    st += [f"v_mul_f32 v{SCP+qb}, v{8+2*qb}, v{2*qb+1}" for qb in range(4)]
    return st
assert ML % 1024 == 0
period(1, qk=False, pv=True, sm=False, dK=op_dma(0), dV=op_dma(1), dtag=("s3", 1), nobar=True, pre_issued=0,
       extra=[(stats_a(), 1, 27), (stats_b(), 29, 63)], midbar=7)
stamp()

gstamp()
a("s_nop 7"); a("s_nop 3")
a("s_barrier")
gstamp()
OFR = 32
TS = 96
TK = 160
def bsel(reg):
    if reg % 2 == 0: return vr(reg, 2), "op_sel_hi:[1,0]", "op_sel_hi:[1,0,1]"
    return vr(reg - 1, 2), "op_sel:[0,1]", "op_sel:[0,1,0]"
def merge_variant(c):
    send0 = 8 * (1 - c); keep0 = 8 * c
    for rho in range(2):
        blocks = [(dl, qb) for dl in range(4) for qb in range(4)]
        for k, (dl, qb) in enumerate(blocks):
            sb = ((send0 + 4*rho + dl) * 4 + qb) * 4
            lds(f"ds_write_b128 v{VMGW}, {ar(sb,4)} offset:{k*1024}")
            kb_ = ((keep0 + 4*rho + dl) * 4 + qb) * 4
            t = TS + 4 * k
            for r in range(4): a(f"v_accvgpr_read_b32 v{t+r}, a{kb_+r}")
            pr, s2, s3 = bsel(SCL + qb)
            for r in (0, 2): a(f"v_pk_mul_f32 {vr(t+r,2)}, {vr(t+r,2)}, {pr} {s2}")
        if c == 0: gstamp()
        lg.wait_all()
        a("s_barrier")
        if c == 0: gstamp()
        for k in range(16): lds(f"ds_read_b128 {vr(TK+4*k,4)}, v{VMGR} offset:{k*1024}", ("mr", k // 2))
        for k2 in range(8):
            lg.wait(("mr", k2))
            for k in (2*k2, 2*k2+1):
                dl, qb = blocks[k]
                t = TS + 4 * k; u = TK + 4 * k
                pr, s2, s3 = bsel(SCP + qb)
                for r in (0, 2): a(f"v_pk_fma_f32 {vr(t+r,2)}, {vr(u+r,2)}, {pr}, {vr(t+r,2)} {s3}")
            for k in (2*k2, 2*k2+1):
                dl, qb = blocks[k]
                t = TS + 4 * k
                d = 4 * rho + dl
                o = OFR + ((d // 2) * 4 + qb) * 4 + (d % 2) * 2
                a(f"v_cvt_pk_bf16_f32 v{o}, v{t}, v{t+1}"); a(f"v_cvt_pk_bf16_f32 v{o+1}, v{t+2}, v{t+3}")
        if c == 0: gstamp()
        a("s_barrier")
sv = list(lg.ops)
a(f"s_cmp_eq_u32 s{S_C}, 0")
a("s_cbranch_scc0 L_mv1")
merge_variant(0)
a("s_branch L_mvd")
a.label("L_mv1")
lg.ops = list(sv)
merge_variant(1)
a.label("L_mvd")
for f in range(16): lds(f"ds_write_b128 v{VMGW}, {vr(OFR+4*f,4)} offset:{f*1024}")
a(f"v_add_u32 v{VL16}, {2*PS}, v{VL16}")
rowp_cc()
a(f"v_lshl_add_u32 v{V_AA[0]}, v{V_CC}, 3, v{V_ROWP}")
a(f"s_mul_i32 s{S_TMP}, s{S_A}, {BLK}"); a(f"s_mul_i32 s{S_TMP+1}, s{S_C}, 224"); a(f"s_add_u32 s{S_TMP}, s{S_TMP}, s{S_TMP+1}")
a(f"v_add_u32 v{V_AA[0]}, s{S_TMP}, v{V_AA[0]}")
a(f"v_add_u32 v{V_AA[1]}, {2*PS}, v{V_AA[0]}")
lg.wait_all()
gstamp()
a("s_barrier")
gstamp()
for f in range(64):
    lds(f"ds_read_b128 {ar(4*f,4)}, v{VL16} offset:{f*1024}")
    if f % 12 == 11: a("s_waitcnt lgkmcnt(4)"); lg.ops = lg.ops[-4:]
lg.wait_all()
vm.wait(("s3", 1))
a("s_barrier")
dump_regs("o", "a", 0, 256)
stamp(OPT["fine"] in (0, 2, 3))
emit_units(op_dma(2), ("s3", 2))
emit_units(op_dma(3), ("s3", 3))

ofrag = lambda ks, qb: ar((ks * 4 + qb) * 4, 4)
OA = 0
opacc = lambda nb, qb: vr(OA + (nb * 4 + qb) * 4, 4)
S_OUT = S_W1; S_B2 = S_WQ; S_FL = 8
S_MPOK = S_CNT; S_SH = S_KOFF; S_MASK = S_VOFF
S_PO = [S_BG1, S_BQP]; S_RO = [S_BG2, S_GKV]; S_BO = [S_LDSW, S_PFO]
VMP = 112; VG_G = 176; VXR = 192; VB2 = 200; VLN = 204; VXO = 205; VBO = 206
JS = 32 * PART
uid = [0]
def share_scalars(sh):
    for b in range(2):
        t0, t1, t2 = S_TMP, S_TMP + 1, S_TMP + 2
        a(f"s_mul_i32 s{t0}, s{sh}, 7"); a(f"s_add_u32 s{t0}, s{t0}, s{S_W}")
        if b: a(f"s_add_u32 s{t0}, s{t0}, 4")
        a(f"s_mul_i32 s{S_PO[b]}, s{S_T}, {PART}"); a(f"s_lshl_b32 s{t1}, s{t0}, 10"); a(f"s_add_u32 s{S_PO[b]}, s{S_PO[b]}, s{t1}")
        a(f"s_mul_hi_u32 s{t1}, s{t0}, 0x12492493")
        a(f"s_mul_i32 s{t2}, s{t1}, 14"); a(f"s_sub_u32 s{t2}, s{t0}, s{t2}")
        a(f"s_mul_i32 s{t1}, s{t1}, 112"); a(f"s_lshr_b32 s{t0}, s{t2}, 1"); a(f"s_lshl_b32 s{t0}, s{t0}, 4"); a(f"s_add_u32 s{t1}, s{t1}, s{t0}")
        a(f"s_lshl_b32 s{S_BO[b]}, s{t1}, 1")
        a(f"s_and_b32 s{t2}, s{t2}, 1"); a(f"s_lshl_b32 s{t2}, s{t2}, 5"); a(f"s_lshl_b32 s{t0}, s{S_T}, 6"); a(f"s_add_u32 s{t2}, s{t2}, s{t0}")
        a(f"s_mul_i32 s{t2}, s{t2}, 896"); a(f"s_add_u32 s{S_RO[b]}, s{t2}, s{S_BO[b]}")
        if b:
            a(f"s_cmp_lt_u32 s{S_W}, 3")
            for r_ in (S_PO[b], S_RO[b], S_BO[b]): a(f"s_cselect_b32 s{r_}, s{r_}, 0x40000000")
def load_mp(tag):
    for b in range(2):
        for jj in range(8):
            a(f"s_add_u32 s{S_SO}, s{S_PO[b]}, {MP_OFF + jj*JS}")
            vmem(f"buffer_load_dwordx4 {vr(VMP + (b*8+jj)*4,4)}, v{VLN}, s[{S_WS}:{S_WS+3}], s{S_SO} offen sc1", tag)
    for b in range(2):
        vmem(f"buffer_load_dwordx2 {vr(VXR+4*b,2)}, v{VXO}, s[{S_X}:{S_X+3}], s{S_RO[b]} offen", tag)
        a(f"s_add_u32 s{S_SO}, s{S_RO[b]}, 14336")
        vmem(f"buffer_load_dwordx2 {vr(VXR+4*b+2,2)}, v{VXO}, s[{S_X}:{S_X+3}], s{S_SO} offen", tag)
        vmem(f"buffer_load_dwordx2 {vr(VB2+2*b,2)}, v{VBO}, s[{S_B2}:{S_B2+3}], s{S_BO[b]} offen", tag)
def sum8(dst, src0, T0):
    for jj in range(8):
        for i in range(4):
            r = src0 + 4*jj + i
            if jj == 0:
                a(f"v_lshlrev_b32 v{dst+2*i}, 16, v{r}"); a(f"v_and_b32 v{dst+2*i+1}, 0xffff0000, v{r}")
            else:
                a(f"v_lshlrev_b32 v{T0}, 16, v{r}"); a(f"v_and_b32 v{T0+1}, 0xffff0000, v{r}")
                a(f"v_pk_add_f32 {vr(dst+2*i,2)}, {vr(dst+2*i,2)}, {vr(T0,2)}")
def calc_g():
    a(f"s_mov_b32 s{S_SO}, {f32(-math.log2(math.e))}")
    for b in range(2):
        g = VG_G + 8*b
        sum8(g, VMP + b*32, V_T)
        for i in range(2):
            a(f"v_lshlrev_b32 v{V_T+2+2*i}, 16, v{VB2+2*b+i}"); a(f"v_and_b32 v{V_T+3+2*i}, 0xffff0000, v{VB2+2*b+i}")
        for e in range(8): a(f"v_add_f32 v{g+e}, v{g+e}, v{V_T+2+e%4}")
        E = V_F + 8*b
        for e in range(8): a(f"v_mul_f32 v{E+e}, s{S_SO}, v{g+e}")
        for e in range(8): a(f"v_exp_f32 v{E+e}, v{E+e}")
        for e in range(8): a(f"v_add_f32 v{E+e}, 1.0, v{E+e}")
        for e in range(8): a(f"v_rcp_f32 v{E+e}, v{E+e}")
        a("s_nop 0")
        for e in range(8): a(f"v_mul_f32 v{g+e}, v{g+e}, v{E+e}")
def fin():
    VSP = 0
    for b in range(2):
        for jj in range(8):
            a(f"s_add_u32 s{S_SO}, s{S_PO[b]}, {SP_OFF + jj*JS}")
            a(f"buffer_load_dwordx4 {vr(VSP + (b*8+jj)*4,4)}, v{VLN}, s[{S_WS}:{S_WS+3}], s{S_SO} offen sc1")
    for b in range(2):
        a(f"s_waitcnt vmcnt({8 if b == 0 else 0})")
        sm_ = 64 + 8*b
        sum8(sm_, VSP + b*32, V_T)
        for hh in range(2):
            for i in range(2):
                a(f"v_lshlrev_b32 v{V_T+2}, 16, v{VXR+4*b+2*hh+i}"); a(f"v_and_b32 v{V_T+3}, 0xffff0000, v{VXR+4*b+2*hh+i}")
                e = 4*hh + 2*i
                a(f"v_fma_f32 v{sm_+e}, v{sm_+e}, v{VG_G+8*b+e}, v{V_T+2}"); a(f"v_fma_f32 v{sm_+e+1}, v{sm_+e+1}, v{VG_G+8*b+e+1}, v{V_T+3}")
        o = 80 + 4*b
        for hh in range(2):
            a(f"v_cvt_pk_bf16_f32 v{o+2*hh}, v{sm_+4*hh}, v{sm_+4*hh+1}"); a(f"v_cvt_pk_bf16_f32 v{o+2*hh+1}, v{sm_+4*hh+2}, v{sm_+4*hh+3}")
        a(f"buffer_store_dwordx2 {vr(o,2)}, v{VXO}, s[{S_OUT}:{S_OUT+3}], s{S_RO[b]} offen")
        a(f"s_add_u32 s{S_SO}, s{S_RO[b]}, 14336")
        a(f"buffer_store_dwordx2 {vr(o+2,2)}, v{VXO}, s[{S_OUT}:{S_OUT+3}], s{S_SO} offen")

op = gemm_groups("OP", 16, 0, opacc, ofrag, RING_V, V_AA, "s3", first_top=False)
def op_pre():
    srd(S_OUT, 94, 95, 1835008); srd(S_B2, 92, 93, 896)
    a(f"v_lshlrev_b32 v{VLN}, 4, v{V_LANE}")
    a(f"v_and_b32 v{V_T}, 15, v{V_LANE}"); a(f"v_lshrrev_b32 v{V_T+1}, 4, v{V_LANE}")
    a(f"v_mul_u32_u24 v{VXO}, 896, v{V_T}"); a(f"v_lshl_add_u32 v{VXO}, v{V_T+1}, 3, v{VXO}")
    a(f"v_lshlrev_b32 v{VBO}, 3, v{V_T+1}")
    a(f"s_lshl_b32 s{S_X1}, s{S_T}, 8"); a(f"s_add_u32 s{S_X1}, s{S_X1}, {FLG_OFF}")
    a(f"s_load_dwordx8 s[{S_FL}:{S_FL+7}], s[{S_WSP}:{S_WSP+1}], s{S_X1}")
def op_flag():
    a("s_waitcnt lgkmcnt(0)"); lg.ops.clear()
    a(f"s_mov_b32 s{S_X2}, 0")
    for k in range(8):
        a(f"s_xor_b32 s{S_FL+k}, s{S_FL+k}, s{S_NONCE}"); a(f"s_or_b32 s{S_X2}, s{S_X2}, s{S_FL+k}")
    a(f"s_cmp_eq_u32 s{S_X2}, {0 if not OPT['noearly'] else 99}")
    a(f"s_cselect_b32 s{S_MPOK}, 1, 0")
    share_scalars_x(S_J)
def share_scalars_x(sh):
    share_scalars(sh)
op[7 * 9]["top"].append(op_pre)
op[7 * 12]["top"].append(op_flag)
opgaps = prep_groups(op)
gemm_dma(op, opgaps, op_dma, "s3", skip=(3,))
st = []
for b in range(2):
    for jj in range(8):
        st += [f"s_add_u32 s{S_X2}, s{S_PO[b]}, {MP_OFF + jj*JS}",
               I_vm(f"buffer_load_dwordx4 {vr(VMP + (b*8+jj)*4,4)}, v{VLN}, s[{S_WS}:{S_WS+3}], s{S_X2} offen sc1", "mpl")]
for b in range(2):
    st += [I_vm(f"buffer_load_dwordx2 {vr(VXR+4*b,2)}, v{VXO}, s[{S_X}:{S_X+3}], s{S_RO[b]} offen", "mpl"),
           f"s_add_u32 s{S_X2}, s{S_RO[b]}, 14336",
           I_vm(f"buffer_load_dwordx2 {vr(VXR+4*b+2,2)}, v{VXO}, s[{S_X}:{S_X+3}], s{S_X2} offen", "mpl"),
           I_vm(f"buffer_load_dwordx2 {vr(VB2+2*b,2)}, v{VBO}, s[{S_B2}:{S_B2+3}], s{S_BO[b]} offen", "mpl")]
if OPT["mpin"]: place_stream(opgaps, st, 4 * 7 * 13 + 1, 4 * 7 * 16 - 1)
emit_groups(op)
stamp(); hstamp()
a("s_nop 7"); a("s_nop 1")
for x in store_stream(OA, False, SP_OFF, "sp", S_X1) + store_body(OA, False, "sp", S_X1, V_F, V_T + 4, " sc1"): do(x)
hstamp()
vm.wait("sp")
hstamp()
a("s_barrier")
hstamp()
a(f"s_cmp_lg_u32 s{S_W}, 0"); a("s_cbranch_scc1 L_posted")
a(f"s_lshl_b32 s{S_X1}, s{S_T}, 2")
a(f"s_lshl_b32 s{S_X2}, s{S_T}, 8"); a(f"s_add_u32 s{S_X2}, s{S_X2}, {FLG_OFF + 128}")
a("s_mov_b64 exec, 1")
a(f"s_lshl_b32 s{S_TMP}, s{S_J}, 2"); a(f"v_mov_b32 v2, s{S_TMP}"); a(f"v_mov_b32 v4, s{S_NONCE}")
a(f"buffer_store_dword v4, v2, s[{S_WS}:{S_WS+3}], s{S_X2} offen sc1")
a("v_mov_b32 v0, 1"); a("v_mov_b32 v1, 0")
a(f"buffer_atomic_add v0, v1, s[{S_DBG}:{S_DBG+3}], s{S_X1} offen sc0")
a("s_mov_b64 exec, -1")
a.label("L_posted")
if not OPT["mpin"]:
    load_mp("mpl")
    a("s_waitcnt vmcnt(0)")
calc_g()
hstamp()
a(f"s_cmp_lg_u32 s{S_W}, 0"); a("s_cbranch_scc1 L_sync_done")
a(f"v_lshlrev_b32 v3, 2, v{V_LANE}")
a(f"s_lshl_b32 s{S_MASK}, 1, s{S_J}")
a(f"s_mov_b32 s{S_TMP+2}, {OPT['polls']}")
a("s_mov_b64 exec, 0xff")
a.label("L_poll")
a(f"s_cmp_eq_u32 s{S_TMP+2}, 0"); a("s_cbranch_scc1 L_abandon")
a(f"buffer_load_dword v5, v3, s[{S_WS}:{S_WS+3}], s{S_X2} offen sc1")
a("s_waitcnt vmcnt(0)")
a(f"v_cmp_eq_u32 vcc, s{S_NONCE}, v5")
a("s_nop 4")
a("s_cmp_eq_u64 vcc, 0xff"); a("s_cbranch_scc1 L_polled")
a(f"s_sub_u32 s{S_TMP+2}, s{S_TMP+2}, 1")
a(f"s_sleep {OPT['slp']}")
a("s_branch L_poll")
a.label("L_abandon")
a("s_mov_b64 exec, 1")
a("s_waitcnt vmcnt(0)")
a(f"v_readfirstlane_b32 s{S_TMP}, v0")
a(f"s_and_b32 s{S_TMP}, s{S_TMP}, 0xff")
a(f"s_cmp_eq_u32 s{S_TMP}, 7"); a("s_cbranch_scc1 L_polled")
a(f"s_add_u32 s{S_TMP+1}, s{S_J}, 8"); a(f"s_lshl_b32 s{S_TMP+1}, 1, s{S_TMP+1}")
a(f"v_mov_b32 v6, s{S_TMP+1}")
a(f"buffer_atomic_or v6, v1, s[{S_DBG}:{S_DBG+3}], s{S_X1} offen sc0")
a("s_waitcnt vmcnt(0)")
a(f"v_readfirstlane_b32 s{S_TMP}, v6")
a(f"s_and_b32 s{S_TMP}, s{S_TMP}, 0xff")
a(f"s_cmp_eq_u32 s{S_TMP}, 8")
a(f"s_cselect_b32 s{S_MASK}, s{S_MASK}, 0")
a("s_branch L_decided")
a.label("L_polled")
a("s_mov_b64 exec, 1")
a(f"v_readfirstlane_b32 s{S_TMP}, v0")
a(f"s_and_b32 s{S_TMP+1}, s{S_TMP}, 0xff")
a(f"s_cmp_eq_u32 s{S_TMP+1}, 7"); a("s_cbranch_scc0 L_decided")
a(f"s_bfe_u32 s{S_TMP+1}, s{S_TMP}, 0x80008"); a(f"s_or_b32 s{S_MASK}, s{S_MASK}, s{S_TMP+1}")
a.label("L_decided")
a(f"v_mov_b32 v0, s{S_MASK}"); a(f"v_mov_b32 v1, {XREG}")
a("ds_write_b32 v1, v0")
a("s_waitcnt lgkmcnt(0)")
a("s_mov_b64 exec, -1")
a.label("L_sync_done")
a("s_barrier")
a(f"v_mov_b32 v1, {XREG}")
a("ds_read_b32 v0, v1")
a("s_waitcnt lgkmcnt(0)")
a(f"v_readfirstlane_b32 s{S_MASK}, v0")
hstamp()
a.label("L_shares")
a(f"s_cmp_eq_u32 s{S_MASK}, 0"); a("s_cbranch_scc1 L_fin_done")
a(f"s_ff1_i32_b32 s{S_SH}, s{S_MASK}")
a(f"s_bitset0_b32 s{S_MASK}, s{S_SH}")
a(f"s_cmp_eq_u32 s{S_SH}, s{S_J}"); a(f"s_cselect_b32 s{S_X1}, s{S_MPOK}, 0")
a(f"s_cmp_eq_u32 s{S_X1}, 1"); a("s_cbranch_scc1 L_haveg")
share_scalars(S_SH)
load_mp("mpl2")
a("s_waitcnt vmcnt(0)")
calc_g()
a(f"s_mov_b32 s{S_MPOK}, 0")
a.label("L_haveg")
fin()
a("s_branch L_shares")
a.label("L_fin_done")
hstamp()
vm.ops = []
if OPT["stamps"]:
    a("s_waitcnt vmcnt(0) lgkmcnt(0)")
    stamp(True)
    a("s_waitcnt lgkmcnt(0)")
    a(f"s_cmp_lg_u32 s{S_W}, {OPT['swave']}"); a("s_cbranch_scc1 L_end")
    a(f"s_lshl_b32 s{S_TMP}, s2, 7"); a(f"s_add_u32 s{S_TMP}, s{S_TMP}, {STAMP_OFF}")
    a("v_mov_b32 v20, 0")
    a("v_mov_b32 v0, s98")
    for i in range(15): a(f"v_mov_b32 v{i+1}, s{S_ST+2*min(i, nstamp[0]-1)}")
    for q in range(4): a(f"buffer_store_dwordx4 {vr(4*q,4)}, v20, s[{S_WS}:{S_WS+3}], s{S_TMP} offen offset:{16*q}")
a.label("L_end")
a("s_endpgm")
for p, lab in slow:
    a.label(f"L_slow{lab}")
    rescale(p, False)
    a(f"s_branch L_ret{lab}")
main_text = a.text()

KMAIN = NAME + "_kernel"
src = HEADER_COMMENT
src += f"; @launch grid=(256,1,1) block=(256,1,1) lds={LDS_TOTAL}\n"
src += '.amdgcn_target "amdgcn-amd-amdhsa--gfx950"\n.text\n'
src += kernel_begin(KMAIN) + main_text
src += kernel_desc(KMAIN, 512, 102, 256)
open(sys.argv[1], "w").write(src)
```
